```python
import torch

def _softmax(x, axis=-1):
    return torch.softmax(x, dim=axis)
def _gelu(x):
    return torch.nn.functional.gelu(x, approximate="tanh")
def _silu(x):
    return torch.nn.functional.silu(x)
def _sigmoid(x):
    return torch.sigmoid(x)
def _layernorm(x, axis=-1, eps=1e-5):
    m = x.mean(dim=axis, keepdim=True)
    v = x.var(dim=axis, keepdim=True, unbiased=False)
    return (x - m) / torch.sqrt(v + eps)
def _scatter_add(tgt, idx, src, axis=0):
    return tgt.clone().index_add_(axis, idx, src)
def _segment_sum(src, seg, n):
    out = torch.zeros((n,) + src.shape[1:], dtype=src.dtype)
    return out.index_add_(0, seg, src)
def _pad(x, pw):
    flat = tuple(v for pair in reversed(pw) for v in pair)
    return torch.nn.functional.pad(x, flat)

kernel_name = 'gated_mix__ssm_conv_s4__linear_attn_block__prompt'

def setup_inputs():

    _w = (lambda a: (lambda t: t.to(torch.bfloat16) if t.is_floating_point() else t)(torch.as_tensor(a)))
    def _A_setup():
        B, L, D, N = 1, 2048, 512, 128
        A_re = -(lambda _x: torch.exp(torch.as_tensor(_x)))((lambda *s: torch.randn(*s, dtype=torch.bfloat16) * 6.4)(D, N))
        A_im = torch.pi * (lambda *s: torch.randn(*s, dtype=torch.bfloat16) * 0.05)(D, N)
        B_re = (lambda *s: torch.randn(*s, dtype=torch.bfloat16) * 0.2)(D, N)
        B_im = (lambda *s: torch.randn(*s, dtype=torch.bfloat16) * 0.2)(D, N)
        C_re = (lambda *s: torch.randn(*s, dtype=torch.bfloat16) * 0.2)(D, N)
        C_im = (lambda *s: torch.randn(*s, dtype=torch.bfloat16) * 0.2)(D, N)
        log_dt = (lambda *s: torch.randn(*s, dtype=torch.bfloat16) * 0.05)(D) * 0.5 - 4.0
        Dskip = (lambda *s: torch.randn(*s, dtype=torch.bfloat16) * 0.05)(D)
        return {
            "u": _w((lambda *s: torch.randn(*s, dtype=torch.bfloat16) * 0.05)(B, L, D)),
            "A_re": _w(A_re),
            "A_im": _w(A_im),
            "B_re": _w(B_re),
            "B_im": _w(B_im),
            "C_re": _w(C_re),
            "C_im": _w(C_im),
            "log_dt": _w(log_dt),
            "Dskip": _w(Dskip),
        }
    _A_in = _A_setup()

    def _B_setup():
        B, S, D = 1, 2048, 512
        return {
            "x": _w((lambda *s: torch.randn(*s, dtype=torch.bfloat16) * 0.05)(B, S, D)),
            "wqkv": _w((lambda *s: torch.randn(*s, dtype=torch.bfloat16) * 0.8)(D, 3 * D)),
            "wo": _w((lambda *s: torch.randn(*s, dtype=torch.bfloat16) * 0.05)(D, D)),
        }
    _B_in = _B_setup()

    return {
        "A_u": _A_in["u"],
        "A_A_re": _A_in["A_re"],
        "A_A_im": _A_in["A_im"],
        "A_B_re": _A_in["B_re"],
        "A_B_im": _A_in["B_im"],
        "A_C_re": _A_in["C_re"],
        "A_C_im": _A_in["C_im"],
        "A_log_dt": _A_in["log_dt"],
        "A_Dskip": _A_in["Dskip"],
        "B_x": _B_in["x"],
        "B_wqkv": _B_in["wqkv"],
        "B_wo": _B_in["wo"],
        "gate_w": _w((lambda *s: torch.randn(*s, dtype=torch.bfloat16) * 0.05)(512) * 16.0),
    }

def reference(A_u, A_A_re, A_A_im, A_B_re, A_B_im, A_C_re, A_C_im, A_log_dt, A_Dskip, B_x, B_wqkv, B_wo, gate_w):
    def _A_ref(u, A_re, A_im, B_re, B_im, C_re, C_im, log_dt, Dskip):
        Bsz, L, D = u.shape
        dt = torch.exp(log_dt)[:, None]
        A = A_re + 1j * A_im
        Bc = B_re + 1j * B_im
        Cc = C_re + 1j * C_im
        logdA = dt * A
        dB = dt * Bc
        l = (lambda x, dt: x.to(dt))(torch.arange(L), A_re.dtype)
        P = torch.exp(logdA[:, :, None] * l[None, None, :])
        K = torch.einsum("dn,dnl,dn->dl", Cc, P, dB).real
        L2 = 2 * L
        Kp = _pad(K, ((0, 0), (0, L)))
        up = (lambda x, *d: x.permute(*d))(u, 0, 2, 1)
        up = _pad(up, ((0, 0), (0, 0), (0, L)))
        Kf = (lambda x, axes=(-2,-1): torch.fft.rfft2(x.float(), dim=axes))(Kp[:, None, :], axes=(-2, -1))
        Uf = (lambda x, axes=(-2,-1): torch.fft.rfft2(x.float(), dim=axes))(up[:, :, None, :], axes=(-2, -1))
        Yf = Uf * Kf[None, :, :, :]
        y = (lambda x, s, axes=(-2,-1): torch.fft.irfft2(x, s=s, dim=axes).to(torch.bfloat16))(Yf, (1, L2), axes=(-2, -1))[:, :, 0, :L]
        y = (lambda x, *d: x.permute(*d))(y, 0, 2, 1) + u * Dskip[None, None, :]
        return y

    def _B_ref(x, wqkv, wo):
        B, S, D = x.shape
        H = 32; Dh = D // H
        qkv = (lambda x, *d: x.permute(*d))((x @ wqkv).reshape(B, S, 3, H, Dh), 2, 0, 3, 1, 4)
        q, k, v = qkv[0], qkv[1], qkv[2]
        phi = lambda t: torch.where(t > 0, t + 1, torch.exp(t)) + 1e-6
        pq, pk = phi(q), phi(k)
        kv = torch.einsum("bhsd,bhse->bhde", pk, v)
        z = torch.einsum("bhsd->bhd", pk)
        num = torch.einsum("bhqd,bhde->bhqe", pq, kv)
        den = torch.einsum("bhqd,bhd->bhq", pq, z)[..., None] + 1e-6
        o = num / den
        return (lambda x, *d: x.permute(*d))(o, 0, 2, 1, 3).reshape(B, S, D) @ wo

    x = A_u
    g = _sigmoid((x * gate_w).sum(-1, keepdims=True))
    a = _A_ref(x, A_A_re, A_A_im, A_B_re, A_B_im, A_C_re, A_C_im, A_log_dt, A_Dskip)
    b = _B_ref(x, B_wqkv, B_wo)
    return g * a + (1 - g) * b
```

```python
import re

TRANS = ("v_exp_f32","v_log_f32","v_rcp_f32","v_rsq_f32","v_sqrt_f32","v_sin_f32","v_cos_f32","v_rcp_iflag_f32")
MFMA_PASS = {"v_mfma_f32_32x32x16_bf16":8, "v_mfma_f32_16x16x32_bf16":4, "v_mfma_f32_32x32x16_f16":8, "v_mfma_f32_16x16x32_f16":4}

def parse_regs(tok):
    tok = tok.strip()
    neg = tok.startswith('-')
    if neg: tok = tok[1:]
    m = re.match(r"^abs\((.*)\)$", tok)
    if m: tok = m.group(1)
    m = re.match(r"^\|(.*)\|$", tok)
    if m: tok = m.group(1)
    m = re.match(r"^([vsa])(\d+)$", tok)
    if m: return [(m.group(1), int(m.group(2)))]
    m = re.match(r"^([vsa])\[(\d+):(\d+)\]$", tok)
    if m: return [(m.group(1), i) for i in range(int(m.group(2)), int(m.group(3))+1)]
    if tok == "vcc": return [("s", 106), ("s", 107)]
    if tok == "vcc_lo": return [("s",106)]
    if tok == "vcc_hi": return [("s",107)]
    if tok == "exec": return [("s", 126), ("s", 127)]
    if tok == "m0": return [("s", 124)]
    return []

class Ins:
    __slots__=("text","op","ops","kind","wr","rd","passes","srcC","is_trans","dpp","lds_dma","wide_store","ab")
    def __init__(self, text):
        self.text = text
        t = text.split(";")[0].strip()
        parts = t.split(None, 1)
        self.op = parts[0]
        rest = parts[1] if len(parts) > 1 else ""
        ops = []; depth = 0; cur = ""
        for ch in rest:
            if ch in "[(": depth += 1
            if ch in "])": depth -= 1
            if ch == "," and depth == 0:
                ops.append(cur.strip()); cur = ""
            else: cur += ch
        if cur.strip(): ops.append(cur.strip())
        mods = ""
        if ops:
            lp = ops[-1]
            depth = 0; pos = None
            for i,ch in enumerate(lp):
                if ch in "[(": depth += 1
                if ch in "])": depth -= 1
                if ch == " " and depth == 0:
                    pos = i; break
            if pos is not None:
                mods = lp[pos:]; ops[-1] = lp[:pos]
        self.ops = ops
        op = self.op
        base = re.sub(r"_(e32|e64|dpp|sdwa)$", "", op)
        self.passes = 0; self.srcC = []; self.is_trans = False; self.dpp = False; self.lds_dma=False; self.wide_store=False; self.ab=[]
        wr = []; rd = []
        R = lambda i: parse_regs(ops[i]) if i < len(ops) else []
        if op.startswith("v_mfma"):
            self.kind = "mfma"; self.passes = MFMA_PASS[op]
            wr = R(0); self.ab = R(1)+R(2); self.srcC = R(3); rd = self.ab + self.srcC
        elif op.startswith("v_"):
            self.kind = "valu"
            self.is_trans = base in TRANS
            self.dpp = ("quad_perm" in mods or "row_" in mods or "wave_" in mods or op.endswith("_dpp"))
            if base.startswith("v_cmp"):
                wr = R(0); rd = sum((R(i) for i in range(1,len(ops))), [])
                if base.startswith("v_cmpx"): wr += [("s",126),("s",127)]
            elif base in ("v_permlane32_swap_b32","v_permlane16_swap_b32","v_swap_b32"):
                wr = R(0)+R(1); rd = R(0)+R(1)
            elif base in ("v_readfirstlane_b32","v_readlane_b32"):
                wr = R(0); rd = sum((R(i) for i in range(1,len(ops))), [])
            elif base in ("v_add_co_u32","v_sub_co_u32","v_addc_co_u32","v_subb_co_u32"):
                wr = R(0)+R(1); rd = sum((R(i) for i in range(2,len(ops))), [])
            else:
                wr = R(0); rd = sum((R(i) for i in range(1,len(ops))), [])
                if base in ("v_fmac_f32","v_dot2c_f32_bf16","v_pk_fmac_f16","v_writelane_b32") or self.dpp:
                    rd += R(0)
                if base == "v_cndmask_b32" and len(ops) == 3: rd += [("s",106),("s",107)]
        elif op.startswith("ds_"):
            self.kind = "ds"
            if op.startswith("ds_read") or op.startswith("ds_bpermute") or op.startswith("ds_permute") or op.startswith("ds_swizzle"):
                wr = R(0); rd = sum((R(i) for i in range(1,len(ops))), [])
            else:
                rd = sum((R(i) for i in range(len(ops))), [])
        elif op.startswith("buffer_") or op.startswith("global_") or op.startswith("flat_"):
            self.kind = "vmem"
            is_lds = (" lds" in (" "+mods+" ")) or ("load_lds" in op)
            if op in ("buffer_inv","buffer_wbl2"):
                pass
            elif is_lds:
                self.lds_dma = True
                rd = sum((R(i) for i in range(len(ops))), []) + [("s",124)]
            elif "load" in op:
                wr = R(0); rd = sum((R(i) for i in range(1,len(ops))), [])
            elif "atomic" in op and ("sc0" in mods):
                wr = R(0); rd = sum((R(i) for i in range(1,len(ops))), [])
            else:
                rd = sum((R(i) for i in range(len(ops))), [])
                if re.search(r"x3|x4", op):
                    self.wide_store = True
        elif op.startswith("s_"):
            self.kind = "salu"
            if op in ("s_nop","s_waitcnt","s_barrier","s_endpgm","s_branch","s_sleep","s_setprio") or op.startswith("s_cbranch"):
                pass
            elif op.startswith("s_cmp"):
                rd = sum((R(i) for i in range(len(ops))), [])
            elif op.startswith("s_load") or op.startswith("s_buffer_load") or op in ("s_memtime","s_memrealtime"):
                wr = R(0); rd = sum((R(i) for i in range(1,len(ops))), [])
            else:
                wr = R(0); rd = sum((R(i) for i in range(1,len(ops))), [])
                if "saveexec" in op: wr += [("s",126),("s",127)]
        else:
            raise ValueError("unknown op: "+text)
        self.wr = set(wr); self.rd = set(rd)
        self.srcC = set(self.srcC); self.ab = set(self.ab)
    def states(self):
        if self.op == "s_nop": return int(self.ops[0], 0) + 1
        return 1

def need(prev, cur):
    n = 0
    vw = {r for r in prev.wr if r[0] in "va"}
    sw = {r for r in prev.wr if r[0] == "s"}
    if prev.kind == "valu":
        if cur.kind == "mfma" and (vw & cur.rd): n = max(n, 2)
        if cur.kind == "valu":
            if prev.is_trans and not cur.is_trans and (vw & cur.rd): n = max(n, 1)
            if cur.dpp and (vw & cur.rd): n = max(n, 2)
            if cur.op.startswith("v_permlane") and (vw & cur.rd): n = max(n, 2)
            if (cur.op.startswith("v_readfirstlane") or cur.op.startswith("v_readlane")) and (vw & cur.rd): n = max(n, 1)
            if sw & cur.rd: n = max(n, 2)
            if (cur.op.startswith("v_readlane") or cur.op.startswith("v_writelane")) and (sw & cur.rd): n = max(n, 4)
            if (("s",126) in sw) and cur.dpp: n = max(n,5)
            if "sdwa" in prev.op and "dst_sel:DWORD" not in prev.text and (vw & (cur.rd|cur.wr)): n = max(n,1)
        if cur.kind == "vmem" and (sw & cur.rd): n = max(n, 5)
        if cur.kind == "mfma" and (("s",126) in sw): n = max(n,4)
        if cur.kind == "salu" and (sw & cur.rd): n = max(n, 1)
    if prev.kind == "mfma":
        p = prev.passes
        raw = {2:5,4:8,8:12,16:20}[p]; ovl = {2:4,4:6,8:10,16:18}[p]; war = {2:1,4:3,8:7,16:15}[p]
        if cur.kind == "mfma":
            if vw & cur.ab: n = max(n, raw)
            if vw & cur.srcC:
                if not (vw == cur.srcC and cur.passes == p): n = max(n, ovl)
            if (vw & cur.wr) and not (vw == cur.wr): n = max(n, ovl)
        elif cur.kind in ("valu","ds","vmem"):
            if vw & (cur.rd | cur.wr): n = max(n, raw)
            if cur.kind == "valu" and (prev.srcC & cur.wr): n = max(n, war)
    if prev.kind == "salu":
        if (("s",124) in sw) and cur.lds_dma: n = max(n, 1)
    if prev.kind == "vmem" and prev.wide_store:
        data = {r for r in prev.rd if r[0] in "va"}
        if cur.kind == "valu" and (data & cur.wr): n = max(n, 2)
        elif cur.kind in ("ds","vmem") and (data & cur.wr): n = max(n, 1)
    return n

class Asm:
    def __init__(self):
        self.items = []
    def __call__(self, s):
        for line in s.split("\n"):
            line = line.strip()
            if not line or line.startswith(";"): continue
            self.items.append(line)
    def label(self, name): self.items.append(name + ":")
    def raw(self, s): self.items.append("@raw " + s)
    def comment(self, s): self.items.append("@raw ; " + s)

    def finalize(self):
        WINDOW = 24
        items = self.items
        parsed = []
        for it in items:
            if it.startswith("@raw "): parsed.append(("raw", it[5:]))
            elif it.endswith(":"): parsed.append(("label", it[:-1]))
            else: parsed.append(("ins", Ins(it)))
        labelpos = {p[1]: i for i, p in enumerate(parsed) if p[0] == "label"}
        out = []
        hists = [[]]
        pending = {}
        def req(hist, ins):
            r = 0
            for (p, age) in hist:
                k = need(p, ins) - age
                if k > r: r = k
            return r
        def advance(hist, ins):
            st = ins.states()
            nh = [(p, a + st) for (p, a) in hist if a + st < WINDOW]
            if ins.kind != "salu" or ins.wr: nh.append((ins, 0))
            return nh
        npad = 0
        for i, p in enumerate(parsed):
            if p[0] == "raw":
                out.append(p[1]); continue
            if p[0] == "label":
                if p[1] in pending:
                    hists = hists + pending.pop(p[1])
                if len(hists) > 6:
                    merged = {}
                    for h in hists:
                        for (q,a) in h:
                            if id(q) not in merged or merged[id(q)][1] > a: merged[id(q)] = (q,a)
                    hists = [list(merged.values())]
                out.append(p[1] + ":"); continue
            ins = p[1]
            r = max(req(h, ins) for h in hists)
            is_branch = ins.op == "s_branch" or ins.op.startswith("s_cbranch")
            if is_branch:
                tgt = ins.ops[0]
                if labelpos.get(tgt, 1<<30) < i:
                    for h in hists:
                        hh = advance(h, ins)
                        j = labelpos[tgt] + 1; steps = 0; extra = 0
                        while j < len(parsed) and steps < WINDOW:
                            q = parsed[j]
                            if q[0] == "ins":
                                k = req(hh, q[1])
                                if k > extra - 0: extra = max(extra, k)
                                hh = [(pp, a + q[1].states()) for (pp, a) in hh]
                                steps += q[1].states()
                                if q[1].op == "s_branch" or q[1].op == "s_endpgm": break
                            j += 1
                        r = max(r, extra)
            if r > 0:
                npad += r
                rr = r
                while rr > 0:
                    k = min(rr, 16)
                    nop = Ins("s_nop %d" % (k - 1))
                    out.append("    " + nop.text)
                    hists = [advance(h, nop) for h in hists]
                    rr -= k
            out.append("    " + ins.text)
            hists = [advance(h, ins) for h in hists]
            if is_branch:
                tgt = ins.ops[0]
                if labelpos.get(tgt, -1) > i:
                    pending.setdefault(tgt, []).extend([list(h) for h in hists])
                if ins.op == "s_branch": hists = [[]]
            if ins.op == "s_endpgm": hists = [[]]
        self.npad = npad
        return "\n".join(out) + "\n"
```

```python
from gen import *
import gen as G

K2_LDS = 163840
K2_VGPR = 256

def phi_pairs(a, src, n, dst, tmp, s_l2e, s_eps):
    for i in range(0, n, 2):
        t = tmp + 4*((i//2) % 2) if False else tmp
        x = src + i
        a(f"v_pk_mul_f32 {v(tmp,2)}, {v(x,2)}, {s(s_l2e,2)}")
        a(f"v_max_f32 v{x}, 0, v{x}")
        a(f"v_exp_f32_e64 v{tmp}, v{tmp} clamp")
        a(f"v_max_f32 v{x+1}, 0, v{x+1}")
        a(f"v_exp_f32_e64 v{tmp+1}, v{tmp+1} clamp")
        a(f"v_pk_add_f32 {v(x,2)}, {v(x,2)}, {s(s_eps,2)}")
        a(f"v_pk_add_f32 {v(x,2)}, {v(x,2)}, {v(tmp,2)}")
        a(f"v_cvt_pk_bf16_f32 v{dst+i//2}, v{x}, v{x+1}")
        tmp = tmp ^ 2 if False else tmp

def phi_block(a, src, n, dst, tmpbase, s_l2e, s_eps):
    np_ = n // 2
    T = lambda p: tmpbase + 2*(p % 4)
    for g0 in range(0, np_, 4):
        ps = list(range(g0, min(np_, g0+4)))
        for p in ps:
            x = src + 2*p
            a(f"v_pk_mul_f32 {v(T(p),2)}, {v(x,2)}, {s(s_l2e,2)}")
        for p in ps:
            x = src + 2*p
            a(f"v_exp_f32_e64 v{T(p)}, v{T(p)} clamp")
            a(f"v_max_f32 v{x}, 0, v{x}")
            a(f"v_exp_f32_e64 v{T(p)+1}, v{T(p)+1} clamp")
            a(f"v_max_f32 v{x+1}, 0, v{x+1}")
        for p in ps:
            x = src + 2*p
            a(f"v_pk_add_f32 {v(x,2)}, {v(x,2)}, {s(s_eps,2)}")
        for p in ps:
            x = src + 2*p
            a(f"v_pk_add_f32 {v(x,2)}, {v(x,2)}, {v(T(p),2)}")
        for p in ps:
            x = src + 2*p
            a(f"v_cvt_pk_bf16_f32 v{dst+p}, v{x}, v{x+1}")

def role_b(a, st):
    S_RB=51; S_HG=52; S_RG=53; S_CG=54; S_T0=55; S_T1=64; S_T2=65
    SX=56; SW=60
    S_CX=66
    S_L2E=82; S_EPS=84
    S_KVB=86
    S_M=88
    XA=[2,3,4,5]; WA=6; QA=7; X0=8; X1=9; W=10; GW=12; GT=20; GP=28
    FR=48
    ACCQ=80; ACCK=96; ACCV=112; XF=128
    a(f"s_and_b32 s{S_T0}, s{S_XCD}, 3")
    a(f"s_lshl_b32 s{S_RB}, s{S_T0}, 2")
    a(f"s_and_b32 s{S_T0}, s{S_IDX}, 3")
    a(f"s_add_u32 s{S_RB}, s{S_RB}, s{S_T0}")
    a(f"s_lshr_b32 s{S_T0}, s{S_XCD}, 2")
    a(f"s_lshl_b32 s{S_HG}, s{S_T0}, 2")
    a(f"s_lshr_b32 s{S_T0}, s{S_IDX}, 2")
    a(f"s_add_u32 s{S_HG}, s{S_HG}, s{S_T0}")
    a(f"s_and_b32 s{S_RG}, s{S_WAVE}, 3")
    a(f"s_lshr_b32 s{S_CG}, s{S_WAVE}, 2")
    a(f"v_lshrrev_b32 v11, 3, v1")
    a(f"v_and_b32 v20, 7, v1")
    a(f"v_lshrrev_b32 v21, 1, v11")
    a(f"v_xor_b32 v21, v21, v20")
    a(f"s_lshl_b32 s{S_T0}, s{S_RB}, 7")
    a(f"s_lshl_b32 s{S_T1}, s{S_WAVE}, 4")
    a(f"s_add_u32 s{S_T0}, s{S_T0}, s{S_T1}")
    a(f"v_add_u32 v22, s{S_T0}, v11")
    a(f"v_lshlrev_b32 v22, 10, v22")
    a(f"v_lshl_add_u32 v{X0}, v21, 4, v22")
    a(f"v_xor_b32 v21, 4, v21")
    a(f"v_lshl_add_u32 v{X1}, v21, 4, v22")
    a(f"v_add_u32 v{X1}, 8192, v{X1}")
    a(f"v_lshrrev_b32 v21, 4, v1")
    a(f"v_and_b32 v21, 1, v21")
    a(f"v_lshlrev_b32 v21, 2, v21")
    a(f"v_xor_b32 v21, v21, v20")
    a(f"s_lshl_b32 s{S_T0}, s{S_WAVE}, 3")
    a(f"v_add_u32 v22, s{S_T0}, v11")
    a(f"v_mul_u32_u24 v22, 3072, v22")
    a(f"v_lshl_add_u32 v{W}, v21, 4, v22")
    a(f"s_lshl_b32 s{S_T0}, s{S_HG}, 7")
    a(f"v_add_u32 v{W}, s{S_T0}, v{W}")
    a(f"v_and_b32 v23, 3, v0")
    a(f"v_lshlrev_b32 v23, 5, v23")
    a(f"v_add_u32 v23, s{S_T0}, v23")
    a("s_waitcnt lgkmcnt(0)")
    a(f"s_mov_b32 s{SX}, s{S_U}"); a(f"s_mov_b32 s{SX+1}, s{S_U+1}"); a(f"s_mov_b32 s{SX+2}, {2048*1024}"); a(f"s_mov_b32 s{SX+3}, 0x20000")
    a(f"s_mov_b32 s{SW}, s{S_WQKV}"); a(f"s_mov_b32 s{SW+1}, s{S_WQKV+1}"); a(f"s_mov_b32 s{SW+2}, {512*3072}"); a(f"s_mov_b32 s{SW+3}, 0x20000")
    a(f"global_load_dwordx4 {v(GW,4)}, v23, {s(S_GW,2)}")
    a(f"global_load_dwordx4 {v(GW+4,4)}, v23, {s(S_GW,2)} offset:16")
    a(f"s_lshl_b32 s{S_M}, s{S_WAVE}, 10")
    a(f"s_lshl_b32 s{S_M+1}, s{S_WAVE}, 11")
    def chunk_off(i):
        a(f"s_add_u32 s{S_T0}, s{S_HG}, {i}")
        a(f"s_and_b32 s{S_T0}, s{S_T0}, 7")
        a(f"s_lshl_b32 s66, s{S_T0}, 7")
        a(f"s_mul_i32 s67, s{S_T0}, 196608")
    def dma(m0base_s, m0imm, voff, srd, soff):
        a(f"s_add_u32 m0, s{m0base_s}, {m0imm}")
        a(f"buffer_load_dwordx4 v{voff}, {s(srd,4)}, s{soff} offen lds")
    def issue_chunk(i):
        slot = (i & 3) * 32768
        chunk_off(i)
        dma(S_M+1, slot, X0, SX, 66)
        dma(S_M+1, slot + 1024, X1, SX, 66)
        a(f"s_add_u32 s{S_T1}, s67, 1024")
        dma(S_M, slot + 16384, W, SW, S_T1)
        a(f"s_add_u32 s{S_T1}, s67, 2048")
        dma(S_M, slot + 24576, W, SW, S_T1)
    def issue_q(i, ldsoff):
        chunk_off(i)
        dma(S_M, ldsoff, W, SW, 67)
    for i in range(4): issue_chunk(i)
    for i in range(4): issue_q(i, 131072 + 8192*i)
    st.stamp(a, "b_issued")
    a(f"v_and_b32 v20, 31, v1")
    a(f"s_lshl_b32 s{S_T0}, s{S_RG}, 5")
    a(f"v_add_u32 v20, s{S_T0}, v20")
    a(f"v_lshrrev_b32 v21, 5, v1")
    a(f"v_bfe_u32 v22, v20, 1, 3")
    a(f"v_xor_b32 v22, v22, v21")
    a(f"v_lshlrev_b32 v22, 4, v22")
    a(f"v_lshl_add_u32 v{XA[0]}, v20, 7, v22")
    for ks in range(1,4):
        a(f"v_xor_b32 v{XA[ks]}, {32*ks}, v{XA[0]}")
    a(f"v_and_b32 v20, 15, v1")
    a(f"v_lshrrev_b32 v22, 2, v20")
    a(f"v_lshl_add_u32 v23, v21, 3, v22")
    a(f"v_lshlrev_b32 v23, 7, v23")
    a(f"v_bfe_u32 v24, v1, 4, 1")
    a(f"v_lshlrev_b32 v24, 1, v24")
    a(f"s_lshl_b32 s{S_T0}, s{S_CG}, 2")
    a(f"v_add_u32 v24, s{S_T0}, v24")
    a(f"v_bfe_u32 v25, v20, 1, 1")
    a(f"v_add_u32 v24, v24, v25")
    a(f"v_bfe_u32 v25, v22, 1, 1")
    a(f"v_lshlrev_b32 v25, 2, v25")
    a(f"v_xor_b32 v24, v24, v25")
    a(f"v_lshl_add_u32 v23, v24, 4, v23")
    a(f"v_and_b32 v25, 1, v20")
    a(f"v_lshl_add_u32 v{WA}, v25, 3, v23")
    a(f"v_add_u32 v{QA}, 131072, v{WA}")
    a(f"s_mov_b32 s{S_L2E}, {LOG2E}"); a(f"s_mov_b32 s{S_L2E+1}, {LOG2E}")
    a(f"s_mov_b32 s{S_EPS}, 0x358637bd"); a(f"s_mov_b32 s{S_EPS+1}, 0x358637bd")
    a(f"s_add_u32 s{S_KVB}, s{S_WS}, {WS_KV}"); a(f"s_addc_u32 s{S_KVB+1}, s{S_WS+1}, 0")
    a(f"v_lshrrev_b32 v26, 2, v0")
    a(f"v_and_b32 v27, 3, v0")
    a(f"v_lshlrev_b32 v27, 1, v27")
    a(f"v_bfe_u32 v29, v26, 1, 3")
    a(f"v_xor_b32 v27, v27, v29")
    a(f"v_lshlrev_b32 v27, 4, v27")
    a(f"v_lshl_add_u32 v26, v26, 7, v27")
    a(f"v_xor_b32 v27, 16, v26")
    waits = [16, 12, 12, 12, 8, 8, 8, 4]
    for i in range(8):
        slot = (i & 1) * 32768
        if i in (2, 6) or i == 4:
            for r in XA + [WA]:
                a(f"v_xor_b32 v{r}, 0x10000, v{r}")
        a(f"s_waitcnt vmcnt({waits[i]})")
        a("s_barrier")
        if i == 0: st.stamp(a, "b_first")
        def rd(ks):
            a(f"ds_read_b128 {v(XF + 16*i + 4*ks, 4)}, v{XA[ks]} offset:{slot}")
            for T, toff in ((0, 16384), (1, 24576)):
                for rdx in range(2):
                    a(f"ds_read_b64_tr_b16 {v(FR + 8*ks + 4*T + 2*rdx, 2)}, v{WA} offset:{slot + toff + 2048*ks + 512*rdx}")
        def mm(ks):
            x = v(XF + 16*i + 4*ks, 4)
            cK = "0" if (i == 0 and ks == 0) else v(ACCK,16)
            cV = "0" if (i == 0 and ks == 0) else v(ACCV,16)
            a(f"v_mfma_f32_32x32x16_bf16 {v(ACCK,16)}, {x}, {v(FR+8*ks,4)}, {cK}")
            a(f"v_mfma_f32_32x32x16_bf16 {v(ACCV,16)}, {x}, {v(FR+8*ks+4,4)}, {cV}")
        rd(0); rd(1)
        if i == 0:
            a(f"ds_read_b128 {v(GT,4)}, v26")
            a(f"ds_read_b128 {v(GT+4,4)}, v27")
        if 1 <= i <= 4: issue_chunk(i + 3)
        if i == 5:
            for k in range(4): issue_q(4 + k, 8192*k)
        extra = 2 if i == 0 else 0
        a(f"s_waitcnt lgkmcnt({5+extra})")
        mm(0)
        rd(2)
        a(f"s_waitcnt lgkmcnt(5)")
        mm(1)
        if i == 0:
            a(f"v_mov_b32 v{GP}, 0")
            for k in range(8):
                a(f"v_dot2_f32_bf16 v{GP}, v{GT+k}, v{GW+k}, v{GP}")
        rd(3)
        a(f"s_waitcnt lgkmcnt(5)")
        mm(2)
        a(f"s_waitcnt lgkmcnt(0)")
        mm(3)
    st.stamp(a, "b_pass1")
    a(f"v_xor_b32 v{WA}, 0x10000, v{WA}")
    a(f"v_add_f32_dpp v{GP}, v{GP}, v{GP} quad_perm:[1,0,3,2] row_mask:0xf bank_mask:0xf")
    a(f"v_add_f32_dpp v{GP}, v{GP}, v{GP} quad_perm:[2,3,0,1] row_mask:0xf bank_mask:0xf")
    a("v_mov_b32 v20, 0")
    a(f"global_load_dword v21, v20, {s(S_DBG,2)} sc1")
    PK=48; VV=56; D1=64; D2=ACCK; ONE=20+4
    phi_block(a, ACCK, 16, PK, 32, S_L2E, S_EPS)
    for p in range(8):
        a(f"v_cvt_pk_bf16_f32 v{VV+p}, v{ACCV+2*p}, v{ACCV+2*p+1}")
    for k in range(4): a(f"v_mov_b32 v{ONE+k}, 0x3f803f80")
    for sg in range(2):
        c = "0" if sg == 0 else v(D1,16)
        a(f"v_mfma_f32_32x32x16_bf16 {v(D1,16)}, {v(PK+4*sg,4)}, {v(VV+4*sg,4)}, {c}")
    for sg in range(2):
        c = "0" if sg == 0 else v(D2,16)
        a(f"v_mfma_f32_32x32x16_bf16 {v(D2,16)}, {v(PK+4*sg,4)}, {v(ONE,4)}, {c}")
    a(f"v_and_b32 v30, 15, v1")
    a(f"v_bfe_u32 v31, v1, 4, 1")
    a(f"v_lshrrev_b32 v29, 5, v1")
    a(f"v_mul_u32_u24 v30, 68, v30")
    a(f"v_mul_u32_u24 v32, 1156, v31")
    a(f"v_add_u32 v30, v30, v32")
    a(f"v_lshl_add_u32 v30, v29, 5, v30")
    a(f"s_mul_i32 s{S_T0}, s{S_RG}, 4624")
    a(f"s_mul_i32 s{S_T1}, s{S_CG}, 2312")
    a(f"s_add_u32 s{S_T0}, s{S_T0}, s{S_T1}")
    a(f"s_add_u32 s{S_T0}, s{S_T0}, 32768")
    a(f"v_add_u32 v30, s{S_T0}, v30")
    a(f"v_cmp_eq_u32 vcc, 1, v31")
    for j in range(8):
        a(f"v_cndmask_b32 v{32+j}, v{D1+j}, v{D1+8+j}, vcc")
    for j in range(0, 8, 2):
        a(f"ds_write2_b32 v30, v{32+j}, v{33+j} offset0:{j} offset1:{j+1}")
    for j in range(8):
        a(f"v_cndmask_b32 v{40+j}, v{D2+j}, v{D2+8+j}, vcc")
    a(f"v_add_u32 v30, {16*68}, v30")
    a("s_mov_b32 s64, 0x00010001"); a("s_mov_b32 s65, 0x00010001")
    a("s_mov_b64 exec, s[64:65]")
    for j in range(0, 8, 2):
        a(f"ds_write2_b32 v30, v{40+j}, v{41+j} offset0:{j} offset1:{j+1}")
    a("s_mov_b64 exec, -1")
    a("s_waitcnt vmcnt(0) lgkmcnt(0)")
    a("s_barrier")
    a.label("L_b_poll")
    a("v_readfirstlane_b32 s64, v21")
    a("s_cmp_eq_u32 s64, 1")
    a("s_cbranch_scc1 L_b_flagok")
    a("s_sleep 2")
    a(f"global_load_dword v21, v20, {s(S_DBG,2)} sc1")
    a("s_waitcnt vmcnt(0)")
    a("s_branch L_b_poll")
    a.label("L_b_flagok")
    a(f"s_lshr_b32 s64, s{S_WAVE}, 1")
    a(f"s_and_b32 s65, s{S_WAVE}, 1")
    a(f"v_lshrrev_b32 v30, 4, v1")
    a(f"v_and_b32 v31, 15, v1")
    a(f"s_lshl_b32 s{S_T0}, s65, 3")
    a(f"v_add_u32 v30, s{S_T0}, v30")
    a(f"v_mul_u32_u24 v32, 68, v30")
    a(f"v_lshl_add_u32 v32, v31, 2, v32")
    a(f"s_mul_i32 s{S_T0}, s64, 1156")
    a(f"s_add_u32 s{S_T0}, s{S_T0}, 32768")
    a(f"v_add_u32 v32, s{S_T0}, v32")
    a(f"s_lshl_b32 s{S_T0}, s{S_HG}, 2")
    a(f"s_add_u32 s{S_T0}, s{S_T0}, s64")
    a(f"s_mul_i32 s{S_T0}, s{S_T0}, 1088")
    a(f"v_lshlrev_b32 v33, 6, v30")
    a(f"v_lshl_add_u32 v33, v31, 2, v33")
    a(f"v_add_u32 v33, s{S_T0}, v33")
    for n in range(3):
        for rg in range(4):
            a(f"ds_read_b32 v{34+4*n+rg}, v32 offset:{rg*4624 + n*4*68}")
    a("s_waitcnt lgkmcnt(0)")
    for n in range(3):
        a(f"v_add_f32 v{34+4*n}, v{34+4*n}, v{35+4*n}")
        a(f"v_add_f32 v{36+4*n}, v{36+4*n}, v{37+4*n}")
        a(f"v_add_f32 v{34+4*n}, v{34+4*n}, v{36+4*n}")
    a(f"global_atomic_add_f32 v33, v34, {s(S_KVB,2)}")
    a(f"global_atomic_add_f32 v33, v38, {s(S_KVB,2)} offset:256")
    a(f"s_cmp_eq_u32 s65, 1")
    a("s_cbranch_scc0 L_b_noz")
    a("s_mov_b64 exec, 0xffff")
    a(f"global_atomic_add_f32 v33, v42, {s(S_KVB,2)} offset:512")
    a("s_mov_b64 exec, -1")
    a.label("L_b_noz")
    a(f"v_lshrrev_b32 v30, 2, v0")
    a(f"s_lshl_b32 s{S_T0}, s{S_RB}, 7")
    a(f"v_add_u32 v30, s{S_T0}, v30")
    a(f"v_lshlrev_b32 v30, 2, v30")
    a(f"v_add_u32 v30, {KV_BYTES}, v30")
    a("s_mov_b32 s64, 0x11111111"); a("s_mov_b32 s65, 0x11111111")
    a("s_mov_b64 exec, s[64:65]")
    a(f"global_atomic_add_f32 v30, v{GP}, {s(S_KVB,2)}")
    a("s_mov_b64 exec, -1")
    st.stamp(a, "b_atom")
    QF=48
    steps = [(i, ks) for i in range(8) for ks in range(4)]
    def rdq(n):
        i, ks = steps[n]
        for rdx in range(2):
            if i < 4: a(f"ds_read_b64_tr_b16 {v(QF+4*(n%8)+2*rdx,2)}, v{QA} offset:{8192*i + 2048*ks + 512*rdx}")
            else:     a(f"ds_read_b64_tr_b16 {v(QF+4*(n%8)+2*rdx,2)}, v{WA} offset:{8192*(i-4) + 2048*ks + 512*rdx}")
    PF = 6
    for n in range(PF): rdq(n)
    for n in range(32):
        issued = min(32, n + PF)
        a(f"s_waitcnt lgkmcnt({2*(issued - n - 1)})")
        i, ks = steps[n]
        c = "0" if n == 0 else v(ACCQ,16)
        a(f"v_mfma_f32_32x32x16_bf16 {v(ACCQ,16)}, {v(QF+4*(n%8),4)}, {v(XF+16*i+4*ks,4)}, {c}")
        if n + PF < 32: rdq(n + PF)
    st.stamp(a, "b_pass2")
    phi_block(a, ACCQ, 16, 40, 32, S_L2E, S_EPS)
    a(f"s_lshl_b32 s{S_T0}, s{S_RB}, 2")
    a(f"s_add_u32 s{S_T0}, s{S_T0}, s{S_RG}")
    a(f"s_lshl_b32 s{S_T0}, s{S_T0}, 5")
    a(f"s_lshl_b32 s{S_T1}, s{S_HG}, 2")
    a(f"s_add_u32 s{S_T0}, s{S_T0}, s{S_T1}")
    a(f"s_lshl_b32 s{S_T1}, s{S_CG}, 1")
    a(f"s_add_u32 s{S_T0}, s{S_T0}, s{S_T1}")
    a(f"s_lshl_b32 s{S_T0}, s{S_T0}, 10")
    a(f"s_add_u32 s{S_T0}, s{S_T0}, {WS_PQ}")
    a(f"v_lshlrev_b32 v30, 4, v1")
    a(f"v_add_u32 v30, s{S_T0}, v30")
    a(f"global_store_dwordx4 v30, v[40:43], {s(S_WS,2)}")
    a(f"global_store_dwordx4 v30, v[44:47], {s(S_WS,2)} offset:1024")
    st.stamp(a, "b_end")

def kernel2(a, st):
    S_WO=8; S_OUT=10; S_WS=14
    S_W=16; S_SB=17; S_CB=18; S_T0=19; S_T1=20; SRD=24; S_M0=28; S_SO=29; S_CNT=30
    a("s_cmp_ge_u32 s2, 256")
    a("s_cbranch_scc1 L_k2_end")
    a("s_load_dwordx2 s[8:9], s[0:1], 88")
    a("s_load_dwordx2 s[10:11], s[0:1], 104")
    a("s_load_dwordx4 s[12:15], s[0:1], 112")
    if st.on: a("s_memtime s[68:69]")
    a("v_lshrrev_b32 v1, 6, v0")
    a(f"v_readfirstlane_b32 s{S_W}, v1")
    a("v_and_b32 v1, 63, v0")
    a(f"s_and_b32 s{S_T0}, s2, 7")
    a(f"s_lshr_b32 s{S_T1}, s2, 3")
    a(f"s_and_b32 s{S_CB}, s{S_T1}, 3")
    a(f"s_lshr_b32 s{S_T1}, s{S_T1}, 2")
    a(f"s_lshl_b32 s{S_SB}, s{S_T0}, 3")
    a(f"s_add_u32 s{S_SB}, s{S_SB}, s{S_T1}")
    M=2; HH=3
    a(f"v_and_b32 v{M}, 31, v1")
    a(f"v_lshrrev_b32 v{HH}, 5, v1")
    a(f"s_lshl_b32 s{S_T0}, s{S_SB}, 5")
    a(f"s_lshl_b32 s{S_T1}, s{S_W}, 3")
    a(f"s_add_u32 s{S_T0}, s{S_T0}, s{S_T1}")
    a(f"s_lshl_b32 s{S_T0}, s{S_T0}, 10")
    a(f"s_add_u32 s{S_T0}, s{S_T0}, {WS_PQ}")
    a(f"v_lshlrev_b32 v4, 4, v1")
    a(f"v_add_u32 v4, s{S_T0}, v4")
    a(f"v_add_u32 v5, 4096, v4")
    a(f"v_min_u32 v6, 16, v{M}")
    a(f"v_lshlrev_b32 v6, 6, v6")
    a(f"v_lshl_add_u32 v6, v{HH}, 5, v6")
    a(f"s_mul_i32 s{S_T0}, s{S_W}, {8*1088}")
    a(f"s_add_u32 s{S_T0}, s{S_T0}, {WS_KV}")
    a(f"v_add_u32 v6, s{S_T0}, v6")
    a(f"v_add_u32 v7, {4*1088}, v6")
    a(f"s_lshl_b32 s{S_T0}, s{S_SB}, 7")
    a(f"s_add_u32 s{S_T0}, s{S_T0}, {WS_G}")
    a(f"v_lshlrev_b32 v8, 2, v{M}")
    a(f"v_add_u32 v8, s{S_T0}, v8")
    a(f"s_lshl_b32 s{S_T0}, s{S_CB}, 7")
    a(f"s_lshl_b32 s{S_T1}, s{S_W}, 5")
    a(f"s_add_u32 s{S_T0}, s{S_T0}, s{S_T1}")
    a(f"v_add_u32 v9, s{S_T0}, v{M}")
    a(f"v_lshlrev_b32 v9, 12, v9")
    a(f"v_lshl_add_u32 v9, v{HH}, 4, v9")
    a(f"s_lshl_b32 s{S_T0}, s{S_SB}, 6")
    a(f"v_add_u32 v9, s{S_T0}, v9")
    a(f"v_lshrrev_b32 v10, 4, v1")
    a(f"v_and_b32 v11, 15, v1")
    a(f"v_lshlrev_b32 v12, 2, v10")
    a(f"v_xor_b32 v11, v11, v12")
    a(f"v_lshlrev_b32 v11, 4, v11")
    a(f"v_lshl_add_u32 v10, v10, 10, v11")
    a(f"s_lshl_b32 s{S_T0}, s{S_CB}, 8")
    a(f"v_add_u32 v10, s{S_T0}, v10")
    PQ=32; KV=64; G_=13; AT=16
    a("s_waitcnt lgkmcnt(0)")
    ws = s(S_WS,2)
    for n in range(8):
        a(f"global_load_dwordx4 {v(PQ+4*n,4)}, v{4 if n<4 else 5}, {ws} offset:{(n%4)*1024}")
        base = 6 if n < 4 else 7
        a(f"global_load_dwordx4 {v(KV+8*n,4)}, v{base}, {ws} offset:{(n%4)*1088}")
        a(f"global_load_dwordx4 {v(KV+8*n+4,4)}, v{base}, {ws} offset:{(n%4)*1088+16}")
    a(f"global_load_dword v{G_}, v8, {ws}")
    a(f"global_load_dwordx4 {v(AT,4)}, v9, {ws}")
    a(f"global_load_dwordx4 {v(AT+4,4)}, v9, {ws} offset:32")
    a(f"s_mov_b32 s{SRD}, s{S_WO}"); a(f"s_mov_b32 s{SRD+1}, s{S_WO+1}"); a(f"s_mov_b32 s{SRD+2}, {512*1024}"); a(f"s_mov_b32 s{SRD+3}, 0x20000")
    a(f"s_lshl_b32 s{S_M0}, s{S_W}, 10")
    a(f"s_lshl_b32 s{S_SO}, s{S_W}, 12")
    for n in range(32):
        a(f"s_add_u32 m0, s{S_M0}, {n*4096}")
        a(f"buffer_load_dwordx4 v10, {s(SRD,4)}, s{S_SO} offen lds")
        if n < 31: a(f"s_add_u32 s{S_SO}, s{S_SO}, 16384")
    st.stamp(a, "k2_issued")
    a(f"v_and_b32 v11, 15, v1")
    a(f"v_lshrrev_b32 v12, 2, v11")
    a(f"v_lshl_add_u32 v14, v{HH}, 2, v12")
    a(f"v_lshlrev_b32 v14, 8, v14")
    a(f"v_bfe_u32 v15, v1, 4, 1")
    a(f"v_lshlrev_b32 v15, 1, v15")
    a(f"s_lshl_b32 s{S_T0}, s{S_W}, 2")
    a(f"v_add_u32 v15, s{S_T0}, v15")
    a(f"v_bfe_u32 v24, v11, 1, 1")
    a(f"v_add_u32 v15, v15, v24")
    a(f"v_lshlrev_b32 v24, 2, v12")
    a(f"v_xor_b32 v15, v15, v24")
    a(f"v_lshl_add_u32 v14, v15, 4, v14")
    a(f"v_and_b32 v24, 1, v11")
    WR=14; WR2=15
    a(f"v_lshl_add_u32 v{WR}, v24, 3, v14")
    a(f"v_add_u32 v{WR2}, 65536, v{WR}")
    OFA=12
    a(f"v_lshlrev_b32 v{OFA}, 4, v1")
    a(f"v_add_u32 v{OFA}, 131072, v{OFA}")
    a(f"s_lshl_b32 s{S_T0}, s{S_W}, 13")
    a(f"v_add_u32 v11, s{S_T0}, v{OFA}")
    a(f"v_and_b32 v128, 7, v{M}")
    a(f"v_and_b32 v129, 1, v128")
    a(f"v_lshlrev_b32 v129, 4, v129")
    a(f"v_mov_b32 v130, 0x3f80")
    a(f"v_lshlrev_b32 v130, v129, v130")
    a(f"v_lshrrev_b32 v128, 1, v128")
    a(f"v_bfe_u32 v129, v{M}, 3, 1")
    a(f"v_cmp_eq_u32 vcc, v129, v{HH}")
    a(f"v_cndmask_b32 v130, 0, v130, vcc")
    a(f"v_lshrrev_b32 v129, 4, v{M}")
    a(f"v_lshl_add_u32 v128, v129, 2, v128")
    for k in range(8):
        a(f"v_cmp_eq_u32 vcc, {k}, v128")
        a(f"v_cndmask_b32 v{24+k}, 0, v130, vcc")
    D=128
    AF=160
    OO=168
    a("s_mov_b32 s32, 0x358637bd")
    def kvcvt(n):
        for k in range(4):
            a(f"v_cvt_pk_bf16_f32 v{AF+4*(n%2)+k}, v{KV+8*n+2*k}, v{KV+8*n+2*k+1}")
    def omfma(n):
        a(f"v_mfma_f32_32x32x16_bf16 {v(D+16*(n%2),16)}, {v(AF+4*(n%2),4)}, {v(PQ+4*n,4)}, 0")
    def onorm(n):
        d = D + 16*(n%2); o = OO + 4*(n%2)
        a(f"v_add_f32 v{d+8}, s32, v{d+8}")
        a(f"v_rcp_f32 v{d+8}, v{d+8}")
        for k in range(0, 8, 2):
            a(f"v_pk_mul_f32 {v(d+k,2)}, {v(d+k,2)}, {v(d+8,2)} op_sel_hi:[1,0]")
        for k in range(4):
            a(f"v_cvt_pk_bf16_f32 v{o+k}, v{d+2*k}, v{d+2*k+1}")
        a(f"ds_write_b128 v11, {v(o,4)} offset:{1024*n}")
    for n in range(8):
        a(f"s_waitcnt vmcnt({59 - 3*(n+1)})")
        kvcvt(n); omfma(n)
        if n > 0: onorm(n-1)
    onorm(7)
    st.stamp(a, "k2_odone")
    ACCA=176; ACCB=192
    a(f"s_waitcnt vmcnt(32)")
    a(f"v_mfma_f32_32x32x16_bf16 {v(ACCA,16)}, {v(AT,4)}, v[24:27], 0")
    a(f"v_mfma_f32_32x32x16_bf16 {v(ACCA,16)}, {v(AT+4,4)}, v[28:31], {v(ACCA,16)}")
    a(f"v_mul_f32 v{G_}, 0xbfb8aa3b, v{G_}")
    a(f"v_exp_f32 v{G_}, v{G_}")
    a(f"v_add_f32 v{G_}, 1.0, v{G_}")
    a(f"v_rcp_f32 v{G_}, v{G_}")
    FW=32; FO=96
    for q in range(4):
        a(f"s_waitcnt vmcnt({24 - 8*q}) lgkmcnt(0)")
        a("s_barrier")
        if q == 0: st.stamp(a, "k2_b0")
        for n in range(8):
            h = 8*q + n
            wr = WR if h < 16 else WR2
            off = (h % 16) * 4096
            a(f"ds_read_b64_tr_b16 {v(FW+4*n,2)}, v{wr} offset:{off}")
            a(f"ds_read_b64_tr_b16 {v(FW+4*n+2,2)}, v{wr} offset:{off+2048}")
            a(f"ds_read_b128 {v(FO+4*n,4)}, v{OFA} offset:{1024*h}")
            if n >= 3:
                m_ = n - 3
                a(f"s_waitcnt lgkmcnt(9)")
                c = "0" if (q == 0 and m_ == 0) else v(ACCB,16)
                a(f"v_mfma_f32_32x32x16_bf16 {v(ACCB,16)}, {v(FW+4*m_,4)}, {v(FO+4*m_,4)}, {c}")
        for m_ in range(5, 8):
            a(f"s_waitcnt lgkmcnt({3*(7-m_)})")
            a(f"v_mfma_f32_32x32x16_bf16 {v(ACCB,16)}, {v(FW+4*m_,4)}, {v(FO+4*m_,4)}, {v(ACCB,16)}")
    st.stamp(a, "k2_gemm")
    a(f"s_lshl_b32 s{S_T0}, s{S_SB}, 5")
    a(f"v_add_u32 v4, s{S_T0}, v{M}")
    a(f"v_lshlrev_b32 v4, 10, v4")
    a(f"v_lshl_add_u32 v4, v{HH}, 4, v4")
    a(f"s_lshl_b32 s{S_T0}, s{S_CB}, 8")
    a(f"s_lshl_b32 s{S_T1}, s{S_W}, 6")
    a(f"s_add_u32 s{S_T0}, s{S_T0}, s{S_T1}")
    a(f"v_add_u32 v4, s{S_T0}, v4")
    for k in range(16):
        a(f"v_sub_f32 v{ACCA+k}, v{ACCA+k}, v{ACCB+k}")
    for k in range(16):
        a(f"v_fma_f32 v{ACCA+k}, v{ACCA+k}, v{G_}, v{ACCB+k}")
    P=32
    for k in range(8):
        a(f"v_cvt_pk_bf16_f32 v{P+k}, v{ACCA+2*k}, v{ACCA+2*k+1}")
    for base in (P, P+4):
        a(f"v_permlane32_swap_b32 v{base}, v{base+2}")
        a(f"v_permlane32_swap_b32 v{base+1}, v{base+3}")
    a(f"global_store_dwordx4 v4, {v(P,4)}, {s(S_OUT,2)}")
    a(f"global_store_dwordx4 v4, {v(P+4,4)}, {s(S_OUT,2)} offset:32")
    st.stamp(a, "k2_end")
    if st.on:
        a(f"s_lshl_b32 s94, s2, 3")
        a(f"s_add_u32 s94, s94, s{S_W}")
        a(f"s_lshl_b32 s94, s94, 6")
        a(f"s_add_u32 s94, s94, {9<<20}")
        a("v_mov_b32 v250, s94")
        for i in range(12):
            a(f"v_mov_b32 v251, s{68+i}")
            a("s_mov_b64 exec, 1")
            a(f"global_store_dword v250, v251, {s(S_WS,2)} offset:{4*i}")
            a("s_mov_b64 exec, -1")
    a.label("L_k2_end")
    a("s_endpgm")
```

```python
import sys, math
from asmlib import Asm

NAME = "gated_mix__ssm_conv_s4__linear_attn_block__prompt"
WS_AT = 0
WS_PQ = 2 << 20
WS_KV = 4 << 20
KV_BYTES = 32 * 1088
WS_G = WS_KV + KV_BYTES
ZERO_BYTES = KV_BYTES + 8192
LOG2E = 0x3fb8aa3b
INV2PI = 0x3e22f983

FT_STRIDE = 60 * 528
ROWB = 528
U_BASE = 4 * FT_STRIDE
U_CH = 9280
U1_OFF = 4640
KC1 = 4224
XCH = 8704

def v(i, n=1):
    return f"v{i}" if n == 1 else f"v[{i}:{i+n-1}]"
def s(i, n=1):
    return f"s{i}" if n == 1 else f"s[{i}:{i+n-1}]"

class Stamps:
    def __init__(self, on): self.on = on; self.n = 0
    def stamp(self, a, name):
        if not self.on: return
        a(f"s_memtime s[96:97]")
        a(f"s_waitcnt lgkmcnt(0)")
        a(f"s_mov_b32 s{70+self.n}, s96")
        self.n += 1

def cmul(a, dst, x, y, tmp):
    a(f"v_pk_mul_f32 {v(tmp,2)}, {v(x,2)}, {v(y,2)} op_sel:[0,0] op_sel_hi:[0,1]")
    a(f"v_pk_fma_f32 {v(dst,2)}, {v(x,2)}, {v(y,2)}, {v(tmp,2)} op_sel:[1,1,0] op_sel_hi:[1,0,1] neg_lo:[1,0,0]")

def cmul2(a, dsts, xs, ys, tmps):
    for d, x, y, t in zip(dsts, xs, ys, tmps):
        a(f"v_pk_mul_f32 {v(t,2)}, {v(x,2)}, {v(y,2)} op_sel:[0,0] op_sel_hi:[0,1]")
    for d, x, y, t in zip(dsts, xs, ys, tmps):
        a(f"v_pk_fma_f32 {v(d,2)}, {v(x,2)}, {v(y,2)}, {v(t,2)} op_sel:[1,1,0] op_sel_hi:[1,0,1] neg_lo:[1,0,0]")

def cexp(a, dst, ar, ai, scale, t0, t1):
    if scale is None:
        a(f"v_exp_f32 {v(t0)}, {v(ar)}")
        a(f"v_fract_f32 {v(t1)}, {v(ai)}")
    else:
        a(f"v_mul_f32 {v(t0)}, {scale}, {v(ar)}")
        a(f"v_mul_f32 {v(t1)}, {scale}, {v(ai)}")
        a(f"v_exp_f32 {v(t0)}, {v(t0)}")
        a(f"v_fract_f32 {v(t1)}, {v(t1)}")
    a(f"v_cos_f32 {v(dst)}, {v(t1)}")
    a(f"v_sin_f32 {v(dst+1)}, {v(t1)}")
    a(f"v_mul_f32 {v(dst)}, {v(dst)}, {v(t0)}")
    a(f"v_mul_f32 {v(dst+1)}, {v(dst+1)}, {v(t0)}")

S_U=16; S_ARE=18; S_AIM=20; S_BRE=22; S_BIM=24; S_CRE=26; S_CIM=28; S_LDT=30
S_DSK=32; S_WQKV=36; S_WO=38; S_GW=40; S_OUT=42; S_DBG=44; S_WS=46
S_WAVE=48; S_XCD=49; S_IDX=50

def k1_prologue(a, st):
    a("s_cmp_ge_u32 s2, 256")
    a("s_cbranch_scc1 L_k1_end")
    a("s_load_dwordx16 s[16:31], s[0:1], 0")
    a("s_load_dwordx4 s[32:35], s[0:1], 64")
    a("s_load_dwordx4 s[36:39], s[0:1], 80")
    a("s_load_dwordx4 s[40:43], s[0:1], 96")
    a("s_load_dwordx4 s[44:47], s[0:1], 112")
    if st.on:
        a("s_memtime s[68:69]")
    a("v_lshrrev_b32 v1, 6, v0")
    a(f"v_readfirstlane_b32 s{S_WAVE}, v1")
    a("v_and_b32 v1, 63, v0")
    a(f"s_and_b32 s{S_XCD}, s2, 7")
    a(f"s_lshr_b32 s{S_IDX}, s2, 4")
    a("s_bitcmp1_b32 s2, 3")
    a("s_cbranch_scc1 L_roleB")

def role_a(a, st):
    S_CH=51; S_HALF=52; S_CHN=53; S_CH0=54; S_FT=55; S_T0=56; S_T1=57; S_DT=58; S_DSKV=59; S_UB=90
    SRD_U=64
    a.label("L_roleA")
    a(f"s_and_b32 s{S_CH}, s{S_WAVE}, 3")
    a(f"s_lshr_b32 s{S_HALF}, s{S_WAVE}, 2")
    a(f"s_lshl_b32 s{S_CH0}, s{S_XCD}, 6")
    a(f"s_lshl_b32 s{S_T0}, s{S_IDX}, 2")
    a(f"s_add_u32 s{S_CH0}, s{S_CH0}, s{S_T0}")
    a(f"s_add_u32 s{S_CHN}, s{S_CH0}, s{S_CH}")
    a(f"s_mul_i32 s{S_FT}, s{S_CH}, {FT_STRIDE}")
    a(f"s_mul_i32 s{S_UB}, s{S_CH}, {U_CH}")
    a(f"s_add_u32 s{S_UB}, s{S_UB}, {U_BASE}")
    a(f"s_lshl_b32 s{S_T0}, s{S_CHN}, 8")
    a(f"v_lshlrev_b32 v26, 2, v1")
    a(f"v_add_u32 v26, s{S_T0}, v26")
    a("s_waitcnt lgkmcnt(0)")
    a("s_cmp_lg_u32 s2, 0")
    a("s_cbranch_scc1 L_a_nozero")
    a(f"s_add_u32 s60, s{S_WS}, {WS_KV}")
    a(f"s_addc_u32 s61, s{S_WS+1}, 0")
    a(f"s_mov_b32 s62, {ZERO_BYTES}")
    a("s_mov_b32 s63, 0x20000")
    a("v_lshlrev_b32 v27, 4, v0")
    for i in range(4): a(f"v_mov_b32 v{28+i}, 0")
    for i in range(6):
        a(f"buffer_store_dwordx4 v[28:31], v27, s[60:63], 0 offen sc1")
        if i < 5: a(f"v_add_u32 v27, 8192, v27")
    a.label("L_a_nozero")
    a(f"global_load_dword v20, v26, {s(S_ARE,2)}")
    a(f"global_load_dword v21, v26, {s(S_AIM,2)}")
    a(f"s_lshl_b32 s{S_T0}, s{S_CHN}, 1")
    a(f"s_and_b32 s{S_T0}, s{S_T0}, 0xfffffffc")
    a(f"s_load_dword s{S_DT}, {s(S_LDT,2)}, s{S_T0}")
    a(f"s_load_dword s{S_DSKV}, {s(S_DSK,2)}, s{S_T0}")
    a(f"s_cmp_eq_u32 s{S_HALF}, 0")
    a("s_cbranch_scc0 L_a_gather")
    a(f"global_load_dword v22, v26, {s(S_BRE,2)}")
    a(f"global_load_dword v23, v26, {s(S_BIM,2)}")
    a(f"global_load_dword v24, v26, {s(S_CRE,2)}")
    a(f"global_load_dword v25, v26, {s(S_CIM,2)}")
    a("s_branch L_a_p1")
    a.label("L_a_gather")
    a(f"s_mov_b32 s{SRD_U}, s{S_U}")
    a(f"s_mov_b32 s{SRD_U+1}, s{S_U+1}")
    a(f"s_mov_b32 s{SRD_U+2}, {2048*1024}")
    a(f"s_mov_b32 s{SRD_U+3}, 0x20000")
    a(f"s_lshl_b32 s{S_T0}, s{S_IDX}, 4")
    a(f"v_add_u32 v27, s{S_T0}, v0")
    a(f"v_and_b32 v27, 255, v27")
    a(f"v_lshlrev_b32 v28, 13, v27")
    a(f"s_lshl_b32 s{S_T0}, s{S_CH0}, 1")
    a(f"v_add_u32 v28, s{S_T0}, v28")
    a(f"v_add_u32 v29, 4096, v28")
    a(f"v_subrev_u32 v30, 1024, v28")
    a(f"v_cmp_eq_u32 vcc, 0, v27")
    a(f"v_mov_b32 v31, 0x7ffffff0")
    a(f"v_cndmask_b32 v30, v30, v31, vcc")
    a(f"buffer_load_dwordx2 v[2:3], v30, {s(SRD_U,4)}, 0 offen")
    for r in range(8):
        base = 28 if r < 4 else 29
        a(f"buffer_load_dwordx2 v[{4+2*r}:{5+2*r}], v{base}, {s(SRD_U,4)}, 0 offen offset:{(r%4)*1024}")
    a.label("L_a_p1")
    st.stamp(a, "a_start")
    a("s_waitcnt lgkmcnt(0)")
    a(f"s_bitcmp1_b32 s{S_CHN}, 0")
    a(f"s_cselect_b32 s{S_T0}, 16, 0")
    a(f"s_lshr_b32 s{S_DT}, s{S_DT}, s{S_T0}")
    a(f"s_lshl_b32 s{S_DT}, s{S_DT}, 16")
    a(f"s_lshr_b32 s{S_DSKV}, s{S_DSKV}, s{S_T0}")
    a(f"s_lshl_b32 s{S_DSKV}, s{S_DSKV}, 16")
    DT=68
    a(f"v_mov_b32 v{DT}, {LOG2E}")
    a(f"v_mul_f32 v{DT}, s{S_DT}, v{DT}")
    a(f"v_exp_f32 v{DT}, v{DT}")
    a(f"v_cvt_pk_bf16_f32 v{DT}, v{DT}, v{DT}")
    a(f"v_lshlrev_b32 v{DT}, 16, v{DT}")
    WA=69
    a(f"v_lshlrev_b32 v{WA}, 3, v1")
    a(f"v_add_u32 v{WA}, s{S_FT}, v{WA}")
    a(f"s_cmp_eq_u32 s{S_HALF}, 0")
    a("s_cbranch_scc0 L_a_p1B")
    a("s_waitcnt vmcnt(0)")
    AR=[26,27]; AI=[28,29]
    def unpack(dst0, dst1, src):
        a(f"v_lshlrev_b32 v{dst0}, 16, v{src}")
        a(f"v_and_b32 v{dst1}, 0xffff0000, v{src}")
    def arai():
        unpack(AR[0], AR[1], 20); unpack(AI[0], AI[1], 21)
        a(f"s_mov_b32 s{S_T0}, {LOG2E}")
        a(f"s_mov_b32 s{S_T1}, {INV2PI}")
        for m in range(2):
            a(f"v_mul_f32 v{AR[m]}, v{AR[m]}, v{DT}")
            a(f"v_mul_f32 v{AI[m]}, v{AI[m]}, v{DT}")
        for m in range(2):
            a(f"v_mul_f32 v{AR[m]}, s{S_T0}, v{AR[m]}")
            a(f"v_mul_f32 v{AI[m]}, s{S_T1}, v{AI[m]}")
    arai()
    E1=[30,32]; E256=[34,36]; G0=[38,40]; G2=[42,44]; G4=[46,48]; G6=[50,52]; G8=[54,56]; CUR=[58,60]; TMP=[62,64]; O=[66,70]
    for m in range(2):
        cexp(a, E1[m], AR[m], AI[m], None, TMP[m], TMP[m]+1)
    a(f"s_mov_b32 s{S_T0}, 0x43800000")
    for m in range(2):
        cexp(a, E256[m], AR[m], AI[m], f"s{S_T0}", TMP[m], TMP[m]+1)
    unpack(CUR[0], CUR[1], 22)
    a.items = a.items[:-2]
    a(f"v_lshlrev_b32 v{CUR[0]}, 16, v22"); a(f"v_and_b32 v{CUR[1]}, 0xffff0000, v22")
    a(f"v_lshlrev_b32 v{CUR[0]+1}, 16, v23"); a(f"v_and_b32 v{CUR[1]+1}, 0xffff0000, v23")
    a(f"v_lshlrev_b32 v{G2[0]}, 16, v24"); a(f"v_and_b32 v{G2[1]}, 0xffff0000, v24")
    a(f"v_lshlrev_b32 v{G2[0]+1}, 16, v25"); a(f"v_and_b32 v{G2[1]+1}, 0xffff0000, v25")
    for m in range(2):
        a(f"v_mul_f32 v{CUR[m]}, v{CUR[m]}, v{DT}")
        a(f"v_mul_f32 v{CUR[m]+1}, v{CUR[m]+1}, v{DT}")
    cmul2(a, G0, G2, CUR, TMP)
    tog = [0]
    def wrow(src, rho):
        o = O[tog[0]]; tog[0] ^= 1
        for m in range(2):
            a(f"v_cvt_pk_bf16_f32 v{o+m}, v{src[m]}, -v{src[m]+1}")
        for r in (rho if isinstance(rho, (list,tuple)) else [rho]):
            a(f"ds_write_b64 v{WA}, {v(o,2)} offset:{r*ROWB}")
    wrow(G0, 0)
    cmul2(a, CUR, G0, E1, TMP); wrow(CUR, 1)
    cmul2(a, G2, CUR, E1, TMP); wrow(G2, 2)
    cmul2(a, CUR, G2, E1, TMP); wrow(CUR, 3)
    cmul2(a, G4, CUR, E1, TMP); wrow(G4, 4)
    cmul2(a, CUR, G4, E1, TMP); wrow(CUR, 5)
    cmul2(a, G6, CUR, E1, TMP); wrow(G6, 6)
    cmul2(a, CUR, G6, E1, TMP); wrow(CUR, 7)
    cmul2(a, G8, CUR, E1, TMP)
    cmul2(a, G0, G0, E256, TMP); wrow(G0, 8)
    cmul2(a, G2, G2, E256, TMP); wrow(G2, 9)
    cmul2(a, G4, G4, E256, TMP); wrow(G4, [10, 11])
    cmul2(a, G6, G6, E256, TMP); wrow(G6, 12)
    cmul2(a, G8, G8, E256, TMP); wrow(G8, 13)
    for base in (14, 17):
        cmul2(a, G0, G0, E256, TMP); wrow(G0, base)
        cmul2(a, G4, G4, E256, TMP); wrow(G4, base+1)
        cmul2(a, G8, G8, E256, TMP); wrow(G8, base+2)
    for base in (20, 22, 24, 26):
        cmul2(a, G0, G0, E256, TMP); wrow(G0, base)
        cmul2(a, G8, G8, E256, TMP); wrow(G8, base+1)
    a("s_branch L_a_p1done")
    a.label("L_a_p1B")
    a("s_waitcnt vmcnt(9)")
    arai()
    E8=[30,32]; F=[34,36]
    a(f"s_mov_b32 s{S_T0}, 0x41000000")
    for m in range(2):
        cexp(a, E8[m], AR[m], AI[m], f"s{S_T0}", TMP[m], TMP[m]+1)
    for m in range(2):
        a(f"v_mov_b32 v{F[m]}, 1.0"); a(f"v_mov_b32 v{F[m]+1}, 0")
    a(f"v_add_u32 v{WA}, {28*ROWB}, v{WA}")
    a(f"s_mov_b32 s{S_T0}, 8")
    a.label("L_a_p1Bloop")
    for k in range(4):
        o = O[k & 1]
        for m in range(2):
            a(f"v_cvt_pk_bf16_f32 v{o+m}, v{F[m]}, v{F[m]+1}")
        cmul2(a, F, F, E8, TMP)
        a(f"ds_write_b64 v{WA}, {v(o,2)} offset:{k*ROWB}")
    a(f"v_add_u32 v{WA}, {4*ROWB}, v{WA}")
    a(f"s_sub_u32 s{S_T0}, s{S_T0}, 1")
    a(f"s_cmp_lg_u32 s{S_T0}, 0")
    a("s_cbranch_scc1 L_a_p1Bloop")
    a.label("L_a_p1done")
    a("s_waitcnt lgkmcnt(0)")
    a("s_barrier")
    st.stamp(a, "a_p1done")
    a("s_cmp_lg_u32 s2, 0")
    a("s_cbranch_scc1 L_a_noflag")
    a(f"s_cmp_lg_u32 s{S_WAVE}, 0")
    a("s_cbranch_scc1 L_a_noflag")
    a("v_mov_b32 v26, 0")
    a("v_mov_b32 v27, 1")
    a("s_mov_b64 exec, 1")
    a(f"global_store_dword v26, v27, {s(S_DBG,2)} sc1")
    a("s_mov_b64 exec, -1")
    a.label("L_a_noflag")
    a(f"s_cmp_eq_u32 s{S_HALF}, 0")
    a("s_cbranch_scc0 L_a_utab")
    RA=26; RB=27; C=28; H=29
    a(f"v_and_b32 v{C}, 31, v1")
    a(f"v_lshrrev_b32 v{H}, 5, v1")
    a(f"v_subrev_u32 v30, 8, v{C}")
    a(f"v_max_i32 v30, 0, v30")
    a(f"v_lshrrev_b32 v30, 2, v30")
    a(f"v_min_u32 v30, 4, v30")
    a(f"v_sub_u32 v30, v{C}, v30")
    a(f"v_mul_u32_u24 v{RA}, {ROWB}, v30")
    a(f"v_mul_u32_u24 v{RB}, {ROWB}, v{C}")
    a(f"v_lshlrev_b32 v31, 4, v{H}")
    a(f"v_add_u32 v31, s{S_FT}, v31")
    a(f"v_add_u32 v{RA}, v{RA}, v31")
    a(f"v_add_u32 v{RB}, v{RB}, v31")
    D=100
    FA=36; FB=68+4
    FB=116
    def rd(sidx):
        a(f"ds_read_b128 {v(FA+4*(sidx%8),4)}, v{RA} offset:{32*sidx}")
        a(f"ds_read_b128 {v(FB+4*(sidx%8),4)}, v{RB} offset:{28*ROWB+32*sidx}")
    for sidx in range(6): rd(sidx)
    for sidx in range(16):
        issued = min(16, sidx + 6)
        a(f"s_waitcnt lgkmcnt({2*(issued - sidx - 1)})")
        c = "0" if sidx == 0 else v(D,16)
        a(f"v_mfma_f32_32x32x16_bf16 {v(D,16)}, {v(FA+4*(sidx%8),4)}, {v(FB+4*(sidx%8),4)}, {c}")
        if sidx + 6 < 16: rd(sidx + 6)
    B1=30; B2=31; B3=32; B1c=33; B2c=34; B3c=35; Z=36
    a(f"v_sub_u32 v{B1}, 31, v{C}")
    a(f"v_lshlrev_b32 v{B1}, 4, v{B1}")
    a(f"v_add_u32 v{B1}, s{S_FT}, v{B1}")
    a(f"v_sub_u32 v37, 1, v{H}")
    a(f"v_lshl_add_u32 v{B2}, v37, 9, v{B1}")
    a(f"v_lshl_add_u32 v{B3}, v37, 10, v{B1}")
    a(f"v_lshl_add_u32 v{B1}, v37, 3, v{B1}")
    a(f"v_add_u32 v{B1c}, {KC1-4+3072}, v{B1}")
    a(f"v_add_u32 v{B2c}, {KC1-4+2048}, v{B2}")
    a(f"v_add_u32 v{B3c}, {KC1-4}, v{B3}")
    a(f"v_lshlrev_b32 v38, 2, v1")
    a(f"v_add_u32 v38, s{S_FT}, v38")
    a(f"v_mov_b32 v{Z}, 0")
    a(f"v_and_b32 v39, 1, v{C}")
    a(f"v_cmp_eq_u32 vcc, 1, v39")
    a(f"ds_write_b32 v38, v{Z} offset:4096")
    a(f"ds_write_b32 v38, v{Z} offset:{KC1-4+4096}")
    d = lambda i: f"v{D+i}"
    P=40
    a(f"v_cvt_pk_bf16_f32 v{P}, {d(3)}, {d(2)}")
    a(f"v_cvt_pk_bf16_f32 v{P+1}, {d(1)}, {d(0)}")
    a(f"ds_write_b64 v{B1}, {v(P,2)} offset:3584")
    a(f"ds_write2_b32 v{B1c}, v{P}, v{P+1} offset0:128 offset1:129")
    a(f"v_cvt_pk_bf16_f32 v{P+2}, {d(6)}, {d(5)}")
    a(f"v_cvt_pk_bf16_f32 v{P+3}, {d(4)}, {d(4)}")
    a(f"ds_write_b64 v{B1}, {v(P+2,2)} offset:3072")
    a(f"ds_write2_b32 v{B1c}, v{P+2}, v{P+3} offset0:0 offset1:1")
    a(f"v_cvt_pk_bf16_f32 v{P+4}, {d(10)}, {d(10)}")
    a(f"v_cvt_pk_bf16_f32 v{P+5}, {d(9)}, {d(9)}")
    a(f"v_cvt_pk_bf16_f32 v{P+6}, {d(9)}, {d(8)}")
    a(f"v_cvt_pk_bf16_f32 v{P+7}, {d(8)}, {d(8)}")
    a(f"ds_write_b128 v{B2}, {v(P+4,4)} offset:2048")
    a(f"ds_write2_b32 v{B2c}, v{P+4}, v{P+5} offset0:0 offset1:1")
    a(f"ds_write2_b32 v{B2c}, v{P+6}, v{P+7} offset0:2 offset1:3")
    for io in range(2):
        k0 = 12 + 2*io; k8 = k0 + 1; q = P + 8 + 4*io
        a(f"v_cndmask_b32 v{q+1}, {d(k0)}, {d(k8)}, vcc")
        a(f"v_cvt_pk_bf16_f32 v{q}, {d(k8)}, {d(k8)}")
        a(f"v_cvt_pk_bf16_f32 v{q+1}, {d(k8)}, v{q+1}")
        a(f"v_cvt_pk_bf16_f32 v{q+2}, {d(k0)}, {d(k0)}")
        a(f"v_mov_b32 v{q+3}, v{q+2}")
        a(f"ds_write_b128 v{B3}, {v(q,4)} offset:{512-512*io}")
        o0 = 128 - 128*io
        a(f"ds_write2_b32 v{B3c}, v{q}, v{q+1} offset0:{o0} offset1:{o0+1}")
        a(f"ds_write2_b32 v{B3c}, v{q+2}, v{q+3} offset0:{o0+2} offset1:{o0+3}")
    a("s_branch L_a_p3done")
    a.label("L_a_utab")
    a("s_waitcnt vmcnt(0)")
    a(f"s_lshl_b32 s{S_T0}, s{S_IDX}, 4")
    a(f"v_add_u32 v27, s{S_T0}, v0")
    a(f"v_and_b32 v27, 255, v27")
    a(f"v_lshlrev_b32 v28, 4, v27")
    a(f"v_add_u32 v28, {U_BASE+512}, v28")
    a(f"s_mov_b32 s{S_T0}, 0x05040100")
    a(f"s_mov_b32 s{S_T1}, 0x07060302")
    row = lambda r, dw: f"v{2+2*(r+1)+dw}"
    T=32
    n = 0
    for cc in range(4):
        dw = cc >> 1; sel = S_T0 if (cc & 1) == 0 else S_T1
        for cp in range(2):
            t = T + 4*(n % 4); n += 1
            for i in range(4):
                lo = 2*i - 1 if cp == 0 else 2*i
                a(f"v_perm_b32 v{t+i}, {row(lo+1,dw)}, {row(lo,dw)}, s{sel}")
            a(f"ds_write_b128 v28, {v(t,4)} offset:{cc*U_CH + cp*U1_OFF}")
    a(f"v_and_b32 v29, 255, v0")
    a(f"v_lshrrev_b32 v30, 5, v29")
    a(f"v_mul_u32_u24 v30, {U1_OFF}, v30")
    a(f"v_and_b32 v29, 31, v29")
    a(f"v_lshl_add_u32 v30, v29, 4, v30")
    a(f"v_add_u32 v30, {U_BASE}, v30")
    for i in range(4): a(f"v_mov_b32 v{48+i}, 0")
    a(f"ds_write_b128 v30, v[48:51]")
    a.label("L_a_p3done")
    a("s_waitcnt lgkmcnt(0)")
    a("s_barrier")
    st.stamp(a, "a_p3done")
    UB=20; KB=21; COL=22; G=23; CP=24; AL=25
    a(f"v_and_b32 v{COL}, 15, v1")
    a(f"v_lshrrev_b32 v{G}, 4, v1")
    a(f"v_and_b32 v{CP}, 1, v{COL}")
    a(f"v_lshrrev_b32 v{AL}, 1, v{COL}")
    a(f"v_mul_u32_u24 v{UB}, {U1_OFF}, v{CP}")
    a(f"v_lshl_add_u32 v{UB}, v{AL}, 6, v{UB}")
    a(f"v_lshl_add_u32 v{UB}, v{G}, 4, v{UB}")
    a(f"s_lshl_b32 s{S_T0}, s{S_HALF}, 8")
    a(f"s_sub_u32 s{S_T1}, s{S_UB}, s{S_T0}")
    a(f"s_add_u32 s{S_T1}, s{S_T1}, 512")
    a(f"v_add_u32 v{UB}, s{S_T1}, v{UB}")
    a(f"v_mov_b32 v26, v{UB}")
    a(f"v_sub_u32 v{KB}, 1023, v{COL}")
    a(f"v_lshl_add_u32 v{KB}, v{G}, 2, v{KB}")
    a(f"v_lshlrev_b32 v{KB}, 2, v{KB}")
    a(f"v_sub_u32 v27, 1, v{CP}")
    a(f"v_mul_u32_u24 v27, {KC1-4}, v27")
    a(f"v_add_u32 v{KB}, v{KB}, v27")
    a(f"s_sub_u32 s{S_T1}, s{S_FT}, s{S_T0}")
    a(f"s_sub_u32 s{S_T1}, s{S_T1}, 3584")
    a(f"v_add_u32 v{KB}, s{S_T1}, v{KB}")
    ACC=128
    SETB=[160, 64]; SETA=[192, 96]
    def reads(setidx, lst):
        pass
    def rd_list(setidx):
        L = []
        for t in range(8):
            L.append(f"ds_read_b128 {v(SETB[setidx]+4*t,4)}, v{UB} offset:{512*t}")
        for q in range(8):
            L.append(f"ds_read_b64 {v(SETA[setidx]+4*q,2)}, v{KB} offset:{512*(7-q)}")
            L.append(f"ds_read_b64 {v(SETA[setidx]+4*q+2,2)}, v{KB} offset:{512*(7-q)+8}")
        order = [8, 9] + list(range(8)) + list(range(10, 24))
        return [L[i] for i in order]
    for x in rd_list(0): a(x)
    for it in range(4):
        cur = it & 1
        nxt = []
        if it < 3:
            a(f"v_subrev_u32 v{UB}, 64, v{UB}")
            a(f"v_subrev_u32 v{KB}, 64, v{KB}")
            nxt = rd_list(cur ^ 1)
        a("s_waitcnt lgkmcnt(0)")
        k = 0
        mf = [(q, t) for q in range(8) for t in range(8 - q)]
        for idx, (q, t) in enumerate(mf):
            acc = v(ACC + 4*(t+q), 4)
            c = "0" if (it == 0 and q == 0) else acc
            a(f"v_mfma_f32_16x16x32_bf16 {acc}, {v(SETA[cur]+4*q,4)}, {v(SETB[cur]+4*t,4)}, {c}")
            if nxt and idx >= 2 and k < len(nxt):
                a(nxt[k]); k += 1
        while k < len(nxt):
            a(nxt[k]); k += 1
    st.stamp(a, "a_convdone")
    XA=27
    a(f"v_lshlrev_b32 v{XA}, 4, v1")
    a(f"v_add_u32 v{XA}, s{S_FT}, v{XA}")
    R=64
    RX=96
    a(f"s_cmp_eq_u32 s{S_HALF}, 0")
    a("s_cbranch_scc0 L_a_x1")
    for t in range(4):
        a(f"ds_write_b128 v{XA}, {v(ACC+16+4*t,4)} offset:{XCH + 1024*t}")
    a("s_branch L_a_x2")
    a.label("L_a_x1")
    for t in range(4):
        a(f"ds_write_b128 v{XA}, {v(ACC+4*t,4)} offset:{XCH + 4096 + 1024*t}")
    a.label("L_a_x2")
    UE=28
    a(f"v_lshlrev_b32 v{UE}, 6, v{AL}")
    a(f"v_lshl_add_u32 v{UE}, v{G}, 4, v{UE}")
    a(f"s_lshl_b32 s{S_T0}, s{S_HALF}, 11")
    a(f"s_add_u32 s{S_T1}, s{S_UB}, s{S_T0}")
    a(f"s_add_u32 s{S_T1}, s{S_T1}, {U1_OFF+512}")
    a(f"v_add_u32 v29, s{S_T1}, v{UE}")
    UU=112
    for t in range(4):
        a(f"ds_read_b128 {v(UU+4*t,4)}, v29 offset:{512*t}")
    a(f"v_lshl_add_u32 v{UE}, v{CP}, 3, v{UE}")
    a(f"s_lshl_b32 s{S_T1}, s{S_CHN}, 12")
    a(f"s_add_u32 s{S_T1}, s{S_T1}, s{S_T0}")
    a(f"v_add_u32 v{UE}, s{S_T1}, v{UE}")
    a(f"v_cmp_eq_u32 vcc, 1, v{CP}")
    a(f"v_mov_b32 v30, 0x01000c0c"); a(f"v_mov_b32 v31, 0x03020c0c")
    a(f"v_cndmask_b32 v30, v30, v31, vcc")
    a(f"v_mov_b32 v31, 0x05040100"); a(f"v_mov_b32 v32, 0x01000504")
    a(f"v_cndmask_b32 v31, v31, v32, vcc")
    a(f"v_mov_b32 v32, 0x07060302"); a(f"v_mov_b32 v33, 0x03020706")
    a(f"v_cndmask_b32 v32, v32, v33, vcc")
    a("s_waitcnt lgkmcnt(0)")
    a("s_barrier")
    a(f"s_cmp_eq_u32 s{S_HALF}, 0")
    a("s_cbranch_scc0 L_a_x3")
    for t in range(4):
        a(f"ds_read_b128 {v(RX+4*t,4)}, v{XA} offset:{XCH + 4096 + 1024*t}")
    a("s_waitcnt lgkmcnt(0)")
    for i in range(16):
        a(f"v_add_f32 v{R+i}, v{ACC+i}, v{RX+i}")
    a("s_branch L_a_x4")
    a.label("L_a_x3")
    for t in range(4):
        a(f"ds_read_b128 {v(RX+4*t,4)}, v{XA} offset:{XCH + 1024*t}")
    a("s_waitcnt lgkmcnt(0)")
    for i in range(16):
        a(f"v_add_f32 v{R+i}, v{ACC+16+i}, v{RX+i}")
    a.label("L_a_x4")
    for t in range(4):
        for i in range(4):
            a(f"v_perm_b32 v{UU+4*t+i}, v{UU+4*t+i}, v{UU+4*t+i}, v30")
        for i in range(4):
            a(f"v_fma_f32 v{R+4*t+i}, v{UU+4*t+i}, s{S_DSKV}, v{R+4*t+i}")
        P_, Q_, SN, KP, RV = 34, 35, 36, 37, 38
        a(f"v_cvt_pk_bf16_f32 v{P_}, v{R+4*t}, v{R+4*t+1}")
        a(f"v_cvt_pk_bf16_f32 v{Q_}, v{R+4*t+2}, v{R+4*t+3}")
        a(f"v_cndmask_b32 v{SN}, v{Q_}, v{P_}, vcc")
        a(f"v_cndmask_b32 v{KP}, v{P_}, v{Q_}, vcc")
        a(f"v_mov_b32_dpp v{RV}, v{SN} quad_perm:[1,0,3,2] row_mask:0xf bank_mask:0xf")
        o = 40 + 2*t
        a(f"v_perm_b32 v{o}, v{RV}, v{KP}, v31")
        a(f"v_perm_b32 v{o+1}, v{RV}, v{KP}, v32")
        a(f"global_store_dwordx2 v{UE}, {v(o,2)}, {s(S_WS,2)} offset:{512*t}")
    st.stamp(a, "a_end")
    a("s_branch L_k1_fin")

def diag_store(a, st, label_end):
    if not st.on: return
    a(f"s_lshl_b32 s94, s2, 3")
    a(f"s_add_u32 s94, s94, s{S_WAVE}")
    a(f"s_lshl_b32 s94, s94, 6")
    a(f"s_add_u32 s94, s94, {8<<20}")
    a("v_mov_b32 v250, s94")
    for i in range(12):
        a(f"v_mov_b32 v251, s{68+i}" if i else "v_mov_b32 v251, s68")
        a("s_mov_b64 exec, 1")
        a(f"global_store_dword v250, v251, {s(S_WS,2)} offset:{4*i}")
        a("s_mov_b64 exec, -1")

def descriptor(name, vgpr, sgpr=102):
    return f""".p2align 6
.amdhsa_kernel {name}
  .amdhsa_next_free_vgpr {vgpr}
  .amdhsa_next_free_sgpr {sgpr}
  .amdhsa_accum_offset {vgpr}
  .amdhsa_group_segment_fixed_size 0
  .amdhsa_kernarg_size 128
  .amdhsa_user_sgpr_count 2
  .amdhsa_user_sgpr_kernarg_segment_ptr 1
  .amdhsa_system_sgpr_workgroup_id_x 1
.end_amdhsa_kernel
"""

HEADER_LAYOUT = open("cdna_kernels/" + NAME + ".s.ref").read().split("; Override launch geometry")[0]

def build(diag=False, only=None):
    pass
    import gen_b
    k1 = f"{NAME}_kernel"
    k2 = f"{NAME}_p2_kernel"
    st = Stamps(diag)
    a = Asm()
    k1_prologue(a, st)
    role_a(a, st)
    nA = st.n; st.n = 0
    a.label("L_roleB")
    if only == "A":
        a("s_branch L_k1_end")
    else:
        gen_b.role_b(a, st)
    a.label("L_k1_fin")
    diag_store(a, st, None)
    a.label("L_k1_end")
    a("s_endpgm")
    t1 = a.finalize()
    out = HEADER_LAYOUT
    launches = [f"; @launch kernel={k1} grid=(256,1,1) block=(512,1,1) lds=163840"]
    if only is None:
        launches.append(f"; @launch kernel={k2} grid=(256,1,1) block=(256,1,1) lds={gen_b.K2_LDS}")
    out += "\n".join(launches) + "\n"
    out += '.amdgcn_target "amdgcn-amd-amdhsa--gfx950"\n.text\n'
    out += f".globl {k1}\n.p2align 8\n.type {k1},@function\n{k1}:\n" + t1
    if only is None:
        st2 = Stamps(diag)
        b = Asm()
        gen_b.kernel2(b, st2)
        t2 = b.finalize()
        out += f".globl {k2}\n.p2align 8\n.type {k2},@function\n{k2}:\n" + t2
    out += '.section .rodata,"a"\n' + descriptor(k1, 256)
    if only is None:
        out += descriptor(k2, gen_b.K2_VGPR)
    return out

if __name__ == "__main__":
    diag = "diag" in sys.argv
    only = "A" if "onlyA" in sys.argv else ("AB" if "onlyAB" in sys.argv else None)
    outp = [x for x in sys.argv[1:] if x.endswith(".s")]
    txt = build(diag, only)
    open(outp[0] if outp else "k.s", "w").write(txt)
```

```python
import sys, math
from asmlib import Asm

NAME = "gated_mix__ssm_conv_s4__linear_attn_block__prompt"
WS_AT = 0
WS_PQ = 2 << 20
WS_KV = 4 << 20
KV_BYTES = 32 * 1088
WS_G = WS_KV + KV_BYTES
ZERO_BYTES = KV_BYTES + 8192
LOG2E = 0x3fb8aa3b
INV2PI = 0x3e22f983

FT_STRIDE = 60 * 528
ROWB = 528
U_BASE = 4 * FT_STRIDE
U_CH = 9280
U1_OFF = 4640
KC1 = 4224
XCH = 8704

def v(i, n=1):
    return f"v{i}" if n == 1 else f"v[{i}:{i+n-1}]"
def s(i, n=1):
    return f"s{i}" if n == 1 else f"s[{i}:{i+n-1}]"

class Stamps:
    def __init__(self, on): self.on = on; self.n = 0
    def stamp(self, a, name):
        if not self.on: return
        a(f"s_memtime s[96:97]")
        a(f"s_waitcnt lgkmcnt(0)")
        a(f"s_mov_b32 s{70+self.n}, s96")
        self.n += 1

def cmul(a, dst, x, y, tmp):
    a(f"v_pk_mul_f32 {v(tmp,2)}, {v(x,2)}, {v(y,2)} op_sel:[0,0] op_sel_hi:[0,1]")
    a(f"v_pk_fma_f32 {v(dst,2)}, {v(x,2)}, {v(y,2)}, {v(tmp,2)} op_sel:[1,1,0] op_sel_hi:[1,0,1] neg_lo:[1,0,0]")

def cmul2(a, dsts, xs, ys, tmps):
    for d, x, y, t in zip(dsts, xs, ys, tmps):
        a(f"v_pk_mul_f32 {v(t,2)}, {v(x,2)}, {v(y,2)} op_sel:[0,0] op_sel_hi:[0,1]")
    for d, x, y, t in zip(dsts, xs, ys, tmps):
        a(f"v_pk_fma_f32 {v(d,2)}, {v(x,2)}, {v(y,2)}, {v(t,2)} op_sel:[1,1,0] op_sel_hi:[1,0,1] neg_lo:[1,0,0]")

def cexp(a, dst, ar, ai, scale, t0, t1):
    if scale is None:
        a(f"v_exp_f32 {v(t0)}, {v(ar)}")
        a(f"v_fract_f32 {v(t1)}, {v(ai)}")
    else:
        a(f"v_mul_f32 {v(t0)}, {scale}, {v(ar)}")
        a(f"v_mul_f32 {v(t1)}, {scale}, {v(ai)}")
        a(f"v_exp_f32 {v(t0)}, {v(t0)}")
        a(f"v_fract_f32 {v(t1)}, {v(t1)}")
    a(f"v_cos_f32 {v(dst)}, {v(t1)}")
    a(f"v_sin_f32 {v(dst+1)}, {v(t1)}")
    a(f"v_mul_f32 {v(dst)}, {v(dst)}, {v(t0)}")
    a(f"v_mul_f32 {v(dst+1)}, {v(dst+1)}, {v(t0)}")

S_U=16; S_ARE=18; S_AIM=20; S_BRE=22; S_BIM=24; S_CRE=26; S_CIM=28; S_LDT=30
S_DSK=32; S_WQKV=36; S_WO=38; S_GW=40; S_OUT=42; S_DBG=44; S_WS=46
S_WAVE=48; S_XCD=49; S_IDX=50

def k1_prologue(a, st):
    a("s_cmp_ge_u32 s2, 256")
    a("s_cbranch_scc1 L_k1_end")
    a("s_load_dwordx16 s[16:31], s[0:1], 0")
    a("s_load_dwordx4 s[32:35], s[0:1], 64")
    a("s_load_dwordx4 s[36:39], s[0:1], 80")
    a("s_load_dwordx4 s[40:43], s[0:1], 96")
    a("s_load_dwordx4 s[44:47], s[0:1], 112")
    if st.on:
        a("s_memtime s[68:69]")
    a("v_lshrrev_b32 v1, 6, v0")
    a(f"v_readfirstlane_b32 s{S_WAVE}, v1")
    a("v_and_b32 v1, 63, v0")
    a(f"s_and_b32 s{S_XCD}, s2, 7")
    a(f"s_lshr_b32 s{S_IDX}, s2, 4")
    a("s_bitcmp1_b32 s2, 3")
    a("s_cbranch_scc1 L_roleB")

def role_a(a, st):
    S_CH=51; S_HALF=52; S_CHN=53; S_CH0=54; S_FT=55; S_T0=56; S_T1=57; S_DT=58; S_DSKV=59; S_UB=90
    SRD_U=64
    a.label("L_roleA")
    a(f"s_and_b32 s{S_CH}, s{S_WAVE}, 3")
    a(f"s_lshr_b32 s{S_HALF}, s{S_WAVE}, 2")
    a(f"s_lshl_b32 s{S_CH0}, s{S_XCD}, 6")
    a(f"s_lshl_b32 s{S_T0}, s{S_IDX}, 2")
    a(f"s_add_u32 s{S_CH0}, s{S_CH0}, s{S_T0}")
    a(f"s_add_u32 s{S_CHN}, s{S_CH0}, s{S_CH}")
    a(f"s_mul_i32 s{S_FT}, s{S_CH}, {FT_STRIDE}")
    a(f"s_mul_i32 s{S_UB}, s{S_CH}, {U_CH}")
    a(f"s_add_u32 s{S_UB}, s{S_UB}, {U_BASE}")
    a(f"s_lshl_b32 s{S_T0}, s{S_CHN}, 8")
    a(f"v_lshlrev_b32 v26, 2, v1")
    a(f"v_add_u32 v26, s{S_T0}, v26")
    a("s_waitcnt lgkmcnt(0)")
    a("s_cmp_lg_u32 s2, 0")
    a("s_cbranch_scc1 L_a_nozero")
    a(f"s_add_u32 s60, s{S_WS}, {WS_KV}")
    a(f"s_addc_u32 s61, s{S_WS+1}, 0")
    a(f"s_mov_b32 s62, {ZERO_BYTES}")
    a("s_mov_b32 s63, 0x20000")
    a("v_lshlrev_b32 v27, 4, v0")
    for i in range(4): a(f"v_mov_b32 v{28+i}, 0")
    for i in range(6):
        a(f"buffer_store_dwordx4 v[28:31], v27, s[60:63], 0 offen sc1")
        if i < 5: a(f"v_add_u32 v27, 8192, v27")
    a.label("L_a_nozero")
    a(f"global_load_dword v20, v26, {s(S_ARE,2)}")
    a(f"global_load_dword v21, v26, {s(S_AIM,2)}")
    a(f"s_lshl_b32 s{S_T0}, s{S_CHN}, 1")
    a(f"s_and_b32 s{S_T0}, s{S_T0}, 0xfffffffc")
    a(f"s_load_dword s{S_DT}, {s(S_LDT,2)}, s{S_T0}")
    a(f"s_load_dword s{S_DSKV}, {s(S_DSK,2)}, s{S_T0}")
    a(f"s_cmp_eq_u32 s{S_HALF}, 0")
    a("s_cbranch_scc0 L_a_gather")
    a(f"global_load_dword v22, v26, {s(S_BRE,2)}")
    a(f"global_load_dword v23, v26, {s(S_BIM,2)}")
    a(f"global_load_dword v24, v26, {s(S_CRE,2)}")
    a(f"global_load_dword v25, v26, {s(S_CIM,2)}")
    a("s_branch L_a_p1")
    a.label("L_a_gather")
    a(f"s_mov_b32 s{SRD_U}, s{S_U}")
    a(f"s_mov_b32 s{SRD_U+1}, s{S_U+1}")
    a(f"s_mov_b32 s{SRD_U+2}, {2048*1024}")
    a(f"s_mov_b32 s{SRD_U+3}, 0x20000")
    a(f"s_lshl_b32 s{S_T0}, s{S_IDX}, 4")
    a(f"v_add_u32 v27, s{S_T0}, v0")
    a(f"v_and_b32 v27, 255, v27")
    a(f"v_lshlrev_b32 v28, 13, v27")
    a(f"s_lshl_b32 s{S_T0}, s{S_CH0}, 1")
    a(f"v_add_u32 v28, s{S_T0}, v28")
    a(f"v_add_u32 v29, 4096, v28")
    a(f"v_subrev_u32 v30, 1024, v28")
    a(f"v_cmp_eq_u32 vcc, 0, v27")
    a(f"v_mov_b32 v31, 0x7ffffff0")
    a(f"v_cndmask_b32 v30, v30, v31, vcc")
    a(f"buffer_load_dwordx2 v[2:3], v30, {s(SRD_U,4)}, 0 offen")
    for r in range(8):
        base = 28 if r < 4 else 29
        a(f"buffer_load_dwordx2 v[{4+2*r}:{5+2*r}], v{base}, {s(SRD_U,4)}, 0 offen offset:{(r%4)*1024}")
    a.label("L_a_p1")
    st.stamp(a, "a_start")
    a("s_waitcnt lgkmcnt(0)")
    a(f"s_bitcmp1_b32 s{S_CHN}, 0")
    a(f"s_cselect_b32 s{S_T0}, 16, 0")
    a(f"s_lshr_b32 s{S_DT}, s{S_DT}, s{S_T0}")
    a(f"s_lshl_b32 s{S_DT}, s{S_DT}, 16")
    a(f"s_lshr_b32 s{S_DSKV}, s{S_DSKV}, s{S_T0}")
    a(f"s_lshl_b32 s{S_DSKV}, s{S_DSKV}, 16")
    DT=68
    a(f"v_mov_b32 v{DT}, {LOG2E}")
    a(f"v_mul_f32 v{DT}, s{S_DT}, v{DT}")
    a(f"v_exp_f32 v{DT}, v{DT}")
    a(f"v_cvt_pk_bf16_f32 v{DT}, v{DT}, v{DT}")
    a(f"v_lshlrev_b32 v{DT}, 16, v{DT}")
    WA=69
    a(f"v_lshlrev_b32 v{WA}, 3, v1")
    a(f"v_add_u32 v{WA}, s{S_FT}, v{WA}")
    a(f"s_cmp_eq_u32 s{S_HALF}, 0")
    a("s_cbranch_scc0 L_a_p1B")
    a("s_waitcnt vmcnt(0)")
    st.stamp(a, "a_params")
    AR=[26,27]; AI=[28,29]
    def unpack(dst0, dst1, src):
        a(f"v_lshlrev_b32 v{dst0}, 16, v{src}")
        a(f"v_and_b32 v{dst1}, 0xffff0000, v{src}")
    def arai():
        unpack(AR[0], AR[1], 20); unpack(AI[0], AI[1], 21)
        a(f"s_mov_b32 s{S_T0}, {LOG2E}")
        a(f"s_mov_b32 s{S_T1}, {INV2PI}")
        for m in range(2):
            a(f"v_mul_f32 v{AR[m]}, v{AR[m]}, v{DT}")
            a(f"v_mul_f32 v{AI[m]}, v{AI[m]}, v{DT}")
        for m in range(2):
            a(f"v_mul_f32 v{AR[m]}, s{S_T0}, v{AR[m]}")
            a(f"v_mul_f32 v{AI[m]}, s{S_T1}, v{AI[m]}")
    arai()
    E1=[30,32]; E256=[34,36]; G0=[38,40]; G2=[42,44]; G4=[46,48]; G6=[50,52]; G8=[54,56]; CUR=[58,60]; TMP=[62,64]; O=[66,70]
    for m in range(2):
        cexp(a, E1[m], AR[m], AI[m], None, TMP[m], TMP[m]+1)
    a(f"s_mov_b32 s{S_T0}, 0x43800000")
    for m in range(2):
        cexp(a, E256[m], AR[m], AI[m], f"s{S_T0}", TMP[m], TMP[m]+1)
    unpack(CUR[0], CUR[1], 22)
    a.items = a.items[:-2]
    a(f"v_lshlrev_b32 v{CUR[0]}, 16, v22"); a(f"v_and_b32 v{CUR[1]}, 0xffff0000, v22")
    a(f"v_lshlrev_b32 v{CUR[0]+1}, 16, v23"); a(f"v_and_b32 v{CUR[1]+1}, 0xffff0000, v23")
    a(f"v_lshlrev_b32 v{G2[0]}, 16, v24"); a(f"v_and_b32 v{G2[1]}, 0xffff0000, v24")
    a(f"v_lshlrev_b32 v{G2[0]+1}, 16, v25"); a(f"v_and_b32 v{G2[1]+1}, 0xffff0000, v25")
    for m in range(2):
        a(f"v_mul_f32 v{CUR[m]}, v{CUR[m]}, v{DT}")
        a(f"v_mul_f32 v{CUR[m]+1}, v{CUR[m]+1}, v{DT}")
    cmul2(a, G0, G2, CUR, TMP)
    st.stamp(a, "a_setup")
    tog = [0]
    def wrow(src, rho):
        o = O[tog[0]]; tog[0] ^= 1
        for m in range(2):
            a(f"v_cvt_pk_bf16_f32 v{o+m}, v{src[m]}, -v{src[m]+1}")
        for r in (rho if isinstance(rho, (list,tuple)) else [rho]):
            a(f"ds_write_b64 v{WA}, {v(o,2)} offset:{r*ROWB}")
    wrow(G0, 0)
    cmul2(a, CUR, G0, E1, TMP); wrow(CUR, 1)
    cmul2(a, G2, CUR, E1, TMP); wrow(G2, 2)
    cmul2(a, CUR, G2, E1, TMP); wrow(CUR, 3)
    cmul2(a, G4, CUR, E1, TMP); wrow(G4, 4)
    cmul2(a, CUR, G4, E1, TMP); wrow(CUR, 5)
    cmul2(a, G6, CUR, E1, TMP); wrow(G6, 6)
    cmul2(a, CUR, G6, E1, TMP); wrow(CUR, 7)
    cmul2(a, G8, CUR, E1, TMP)
    cmul2(a, G0, G0, E256, TMP); wrow(G0, 8)
    cmul2(a, G2, G2, E256, TMP); wrow(G2, 9)
    cmul2(a, G4, G4, E256, TMP); wrow(G4, [10, 11])
    cmul2(a, G6, G6, E256, TMP); wrow(G6, 12)
    cmul2(a, G8, G8, E256, TMP); wrow(G8, 13)
    for base in (14, 17):
        cmul2(a, G0, G0, E256, TMP); wrow(G0, base)
        cmul2(a, G4, G4, E256, TMP); wrow(G4, base+1)
        cmul2(a, G8, G8, E256, TMP); wrow(G8, base+2)
    for base in (20, 22, 24, 26):
        cmul2(a, G0, G0, E256, TMP); wrow(G0, base)
        cmul2(a, G8, G8, E256, TMP); wrow(G8, base+1)
    a("s_branch L_a_p1done")
    a.label("L_a_p1B")
    st.n -= 2
    a("s_waitcnt vmcnt(9)")
    st.stamp(a, "a_params")
    arai()
    E8=[30,32]; F=[34,36]
    a(f"s_mov_b32 s{S_T0}, 0x41000000")
    for m in range(2):
        cexp(a, E8[m], AR[m], AI[m], f"s{S_T0}", TMP[m], TMP[m]+1)
    for m in range(2):
        a(f"v_mov_b32 v{F[m]}, 1.0"); a(f"v_mov_b32 v{F[m]+1}, 0")
    a(f"v_add_u32 v{WA}, {28*ROWB}, v{WA}")
    st.stamp(a, "a_setup")
    a(f"s_mov_b32 s{S_T0}, 8")
    a.label("L_a_p1Bloop")
    for k in range(4):
        o = O[k & 1]
        for m in range(2):
            a(f"v_cvt_pk_bf16_f32 v{o+m}, v{F[m]}, v{F[m]+1}")
        cmul2(a, F, F, E8, TMP)
        a(f"ds_write_b64 v{WA}, {v(o,2)} offset:{k*ROWB}")
    a(f"v_add_u32 v{WA}, {4*ROWB}, v{WA}")
    a(f"s_sub_u32 s{S_T0}, s{S_T0}, 1")
    a(f"s_cmp_lg_u32 s{S_T0}, 0")
    a("s_cbranch_scc1 L_a_p1Bloop")
    a.label("L_a_p1done")
    st.stamp(a, "a_p1end")
    a("s_waitcnt lgkmcnt(0)")
    a("s_barrier")
    st.stamp(a, "a_p1done")
    a("s_cmp_lg_u32 s2, 0")
    a("s_cbranch_scc1 L_a_noflag")
    a(f"s_cmp_lg_u32 s{S_WAVE}, 0")
    a("s_cbranch_scc1 L_a_noflag")
    a("v_mov_b32 v26, 0")
    a("v_mov_b32 v27, 1")
    a("s_mov_b64 exec, 1")
    a(f"global_store_dword v26, v27, {s(S_DBG,2)} sc1")
    a("s_mov_b64 exec, -1")
    a.label("L_a_noflag")
    a(f"s_cmp_eq_u32 s{S_HALF}, 0")
    a("s_cbranch_scc0 L_a_utab")
    RA=26; RB=27; C=28; H=29
    a(f"v_and_b32 v{C}, 31, v1")
    a(f"v_lshrrev_b32 v{H}, 5, v1")
    a(f"v_subrev_u32 v30, 8, v{C}")
    a(f"v_max_i32 v30, 0, v30")
    a(f"v_lshrrev_b32 v30, 2, v30")
    a(f"v_min_u32 v30, 4, v30")
    a(f"v_sub_u32 v30, v{C}, v30")
    a(f"v_mul_u32_u24 v{RA}, {ROWB}, v30")
    a(f"v_mul_u32_u24 v{RB}, {ROWB}, v{C}")
    a(f"v_lshlrev_b32 v31, 4, v{H}")
    a(f"v_add_u32 v31, s{S_FT}, v31")
    a(f"v_add_u32 v{RA}, v{RA}, v31")
    a(f"v_add_u32 v{RB}, v{RB}, v31")
    D=100
    FA=36; FB=68+4
    FB=116
    def rd(sidx):
        a(f"ds_read_b128 {v(FA+4*(sidx%8),4)}, v{RA} offset:{32*sidx}")
        a(f"ds_read_b128 {v(FB+4*(sidx%8),4)}, v{RB} offset:{28*ROWB+32*sidx}")
    for sidx in range(6): rd(sidx)
    for sidx in range(16):
        issued = min(16, sidx + 6)
        a(f"s_waitcnt lgkmcnt({2*(issued - sidx - 1)})")
        c = "0" if sidx == 0 else v(D,16)
        a(f"v_mfma_f32_32x32x16_bf16 {v(D,16)}, {v(FA+4*(sidx%8),4)}, {v(FB+4*(sidx%8),4)}, {c}")
        if sidx + 6 < 16: rd(sidx + 6)
    st.stamp(a, "a_p2")
    B1=30; B2=31; B3=32; B1c=33; B2c=34; B3c=35; Z=36
    a(f"v_sub_u32 v{B1}, 31, v{C}")
    a(f"v_lshlrev_b32 v{B1}, 4, v{B1}")
    a(f"v_add_u32 v{B1}, s{S_FT}, v{B1}")
    a(f"v_sub_u32 v37, 1, v{H}")
    a(f"v_lshl_add_u32 v{B2}, v37, 9, v{B1}")
    a(f"v_lshl_add_u32 v{B3}, v37, 10, v{B1}")
    a(f"v_lshl_add_u32 v{B1}, v37, 3, v{B1}")
    a(f"v_add_u32 v{B1c}, {KC1-4+3072}, v{B1}")
    a(f"v_add_u32 v{B2c}, {KC1-4+2048}, v{B2}")
    a(f"v_add_u32 v{B3c}, {KC1-4}, v{B3}")
    a(f"v_lshlrev_b32 v38, 2, v1")
    a(f"v_add_u32 v38, s{S_FT}, v38")
    a(f"v_mov_b32 v{Z}, 0")
    a(f"v_and_b32 v39, 1, v{C}")
    a(f"v_cmp_eq_u32 vcc, 1, v39")
    a(f"ds_write_b32 v38, v{Z} offset:4096")
    a(f"ds_write_b32 v38, v{Z} offset:{KC1-4+4096}")
    d = lambda i: f"v{D+i}"
    P=40
    a(f"v_cvt_pk_bf16_f32 v{P}, {d(3)}, {d(2)}")
    a(f"v_cvt_pk_bf16_f32 v{P+1}, {d(1)}, {d(0)}")
    a(f"ds_write_b64 v{B1}, {v(P,2)} offset:3584")
    a(f"ds_write2_b32 v{B1c}, v{P}, v{P+1} offset0:128 offset1:129")
    a(f"v_cvt_pk_bf16_f32 v{P+2}, {d(6)}, {d(5)}")
    a(f"v_cvt_pk_bf16_f32 v{P+3}, {d(4)}, {d(4)}")
    a(f"ds_write_b64 v{B1}, {v(P+2,2)} offset:3072")
    a(f"ds_write2_b32 v{B1c}, v{P+2}, v{P+3} offset0:0 offset1:1")
    a(f"v_cvt_pk_bf16_f32 v{P+4}, {d(10)}, {d(10)}")
    a(f"v_cvt_pk_bf16_f32 v{P+5}, {d(9)}, {d(9)}")
    a(f"v_cvt_pk_bf16_f32 v{P+6}, {d(9)}, {d(8)}")
    a(f"v_cvt_pk_bf16_f32 v{P+7}, {d(8)}, {d(8)}")
    a(f"ds_write_b128 v{B2}, {v(P+4,4)} offset:2048")
    a(f"ds_write2_b32 v{B2c}, v{P+4}, v{P+5} offset0:0 offset1:1")
    a(f"ds_write2_b32 v{B2c}, v{P+6}, v{P+7} offset0:2 offset1:3")
    for io in range(2):
        k0 = 12 + 2*io; k8 = k0 + 1; q = P + 8 + 4*io
        a(f"v_cndmask_b32 v{q+1}, {d(k0)}, {d(k8)}, vcc")
        a(f"v_cvt_pk_bf16_f32 v{q}, {d(k8)}, {d(k8)}")
        a(f"v_cvt_pk_bf16_f32 v{q+1}, {d(k8)}, v{q+1}")
        a(f"v_cvt_pk_bf16_f32 v{q+2}, {d(k0)}, {d(k0)}")
        a(f"v_mov_b32 v{q+3}, v{q+2}")
        a(f"ds_write_b128 v{B3}, {v(q,4)} offset:{512-512*io}")
        o0 = 128 - 128*io
        a(f"ds_write2_b32 v{B3c}, v{q}, v{q+1} offset0:{o0} offset1:{o0+1}")
        a(f"ds_write2_b32 v{B3c}, v{q+2}, v{q+3} offset0:{o0+2} offset1:{o0+3}")
    a("s_branch L_a_p3done")
    a.label("L_a_utab")
    st.n -= 1
    a("s_waitcnt vmcnt(0)")
    st.stamp(a, "a_gather")
    a(f"s_lshl_b32 s{S_T0}, s{S_IDX}, 4")
    a(f"v_add_u32 v27, s{S_T0}, v0")
    a(f"v_and_b32 v27, 255, v27")
    a(f"v_lshlrev_b32 v28, 4, v27")
    a(f"v_add_u32 v28, {U_BASE+512}, v28")
    a(f"s_mov_b32 s{S_T0}, 0x05040100")
    a(f"s_mov_b32 s{S_T1}, 0x07060302")
    row = lambda r, dw: f"v{2+2*(r+1)+dw}"
    T=32
    n = 0
    for cc in range(4):
        dw = cc >> 1; sel = S_T0 if (cc & 1) == 0 else S_T1
        for cp in range(2):
            t = T + 4*(n % 4); n += 1
            for i in range(4):
                lo = 2*i - 1 if cp == 0 else 2*i
                a(f"v_perm_b32 v{t+i}, {row(lo+1,dw)}, {row(lo,dw)}, s{sel}")
            a(f"ds_write_b128 v28, {v(t,4)} offset:{cc*U_CH + cp*U1_OFF}")
    a(f"v_and_b32 v29, 255, v0")
    a(f"v_lshrrev_b32 v30, 5, v29")
    a(f"v_mul_u32_u24 v30, {U1_OFF}, v30")
    a(f"v_and_b32 v29, 31, v29")
    a(f"v_lshl_add_u32 v30, v29, 4, v30")
    a(f"v_add_u32 v30, {U_BASE}, v30")
    for i in range(4): a(f"v_mov_b32 v{48+i}, 0")
    a(f"ds_write_b128 v30, v[48:51]")
    a.label("L_a_p3done")
    st.stamp(a, "a_p3end")
    a("s_waitcnt lgkmcnt(0)")
    a("s_barrier")
    st.stamp(a, "a_p3done")
    UB=20; KB=21; COL=22; G=23; CP=24; AL=25
    a(f"v_and_b32 v{COL}, 15, v1")
    a(f"v_lshrrev_b32 v{G}, 4, v1")
    a(f"v_and_b32 v{CP}, 1, v{COL}")
    a(f"v_lshrrev_b32 v{AL}, 1, v{COL}")
    a(f"v_mul_u32_u24 v{UB}, {U1_OFF}, v{CP}")
    a(f"v_lshl_add_u32 v{UB}, v{AL}, 6, v{UB}")
    a(f"v_lshl_add_u32 v{UB}, v{G}, 4, v{UB}")
    a(f"s_lshl_b32 s{S_T0}, s{S_HALF}, 8")
    a(f"s_sub_u32 s{S_T1}, s{S_UB}, s{S_T0}")
    a(f"s_add_u32 s{S_T1}, s{S_T1}, 512")
    a(f"v_add_u32 v{UB}, s{S_T1}, v{UB}")
    a(f"v_mov_b32 v26, v{UB}")
    a(f"v_sub_u32 v{KB}, 1023, v{COL}")
    a(f"v_lshl_add_u32 v{KB}, v{G}, 2, v{KB}")
    a(f"v_lshlrev_b32 v{KB}, 2, v{KB}")
    a(f"v_sub_u32 v27, 1, v{CP}")
    a(f"v_mul_u32_u24 v27, {KC1-4}, v27")
    a(f"v_add_u32 v{KB}, v{KB}, v27")
    a(f"s_sub_u32 s{S_T1}, s{S_FT}, s{S_T0}")
    a(f"s_sub_u32 s{S_T1}, s{S_T1}, 3584")
    a(f"v_add_u32 v{KB}, s{S_T1}, v{KB}")
    ACC=128
    SETB=[160, 64]; SETA=[192, 96]
    def reads(setidx, lst):
        pass
    def rd_list(setidx):
        L = []
        for t in range(8):
            L.append(f"ds_read_b128 {v(SETB[setidx]+4*t,4)}, v{UB} offset:{512*t}")
        for q in range(8):
            L.append(f"ds_read_b64 {v(SETA[setidx]+4*q,2)}, v{KB} offset:{512*(7-q)}")
            L.append(f"ds_read_b64 {v(SETA[setidx]+4*q+2,2)}, v{KB} offset:{512*(7-q)+8}")
        order = [8, 9] + list(range(8)) + list(range(10, 24))
        return [L[i] for i in order]
    for x in rd_list(0): a(x)
    for it in range(4):
        cur = it & 1
        nxt = []
        if it < 3:
            a(f"v_subrev_u32 v{UB}, 64, v{UB}")
            a(f"v_subrev_u32 v{KB}, 64, v{KB}")
            nxt = rd_list(cur ^ 1)
        a("s_waitcnt lgkmcnt(0)")
        k = 0
        mf = [(q, t) for q in range(8) for t in range(8 - q)]
        for idx, (q, t) in enumerate(mf):
            acc = v(ACC + 4*(t+q), 4)
            c = "0" if (it == 0 and q == 0) else acc
            a(f"v_mfma_f32_16x16x32_bf16 {acc}, {v(SETA[cur]+4*q,4)}, {v(SETB[cur]+4*t,4)}, {c}")
            if nxt and idx >= 2 and k < len(nxt):
                a(nxt[k]); k += 1
        while k < len(nxt):
            a(nxt[k]); k += 1
    st.stamp(a, "a_convdone")
    XA=27
    a(f"v_lshlrev_b32 v{XA}, 4, v1")
    a(f"v_add_u32 v{XA}, s{S_FT}, v{XA}")
    R=64
    RX=96
    a(f"s_cmp_eq_u32 s{S_HALF}, 0")
    a("s_cbranch_scc0 L_a_x1")
    for t in range(4):
        a(f"ds_write_b128 v{XA}, {v(ACC+16+4*t,4)} offset:{XCH + 1024*t}")
    a("s_branch L_a_x2")
    a.label("L_a_x1")
    for t in range(4):
        a(f"ds_write_b128 v{XA}, {v(ACC+4*t,4)} offset:{XCH + 4096 + 1024*t}")
    a.label("L_a_x2")
    UE=28
    a(f"v_lshlrev_b32 v{UE}, 6, v{AL}")
    a(f"v_lshl_add_u32 v{UE}, v{G}, 4, v{UE}")
    a(f"s_lshl_b32 s{S_T0}, s{S_HALF}, 11")
    a(f"s_add_u32 s{S_T1}, s{S_UB}, s{S_T0}")
    a(f"s_add_u32 s{S_T1}, s{S_T1}, {U1_OFF+512}")
    a(f"v_add_u32 v29, s{S_T1}, v{UE}")
    UU=112
    for t in range(4):
        a(f"ds_read_b128 {v(UU+4*t,4)}, v29 offset:{512*t}")
    a(f"v_lshl_add_u32 v{UE}, v{CP}, 3, v{UE}")
    a(f"s_lshl_b32 s{S_T1}, s{S_CHN}, 12")
    a(f"s_add_u32 s{S_T1}, s{S_T1}, s{S_T0}")
    a(f"v_add_u32 v{UE}, s{S_T1}, v{UE}")
    a(f"v_cmp_eq_u32 vcc, 1, v{CP}")
    a(f"v_mov_b32 v30, 0x01000c0c"); a(f"v_mov_b32 v31, 0x03020c0c")
    a(f"v_cndmask_b32 v30, v30, v31, vcc")
    a(f"v_mov_b32 v31, 0x05040100"); a(f"v_mov_b32 v32, 0x01000504")
    a(f"v_cndmask_b32 v31, v31, v32, vcc")
    a(f"v_mov_b32 v32, 0x07060302"); a(f"v_mov_b32 v33, 0x03020706")
    a(f"v_cndmask_b32 v32, v32, v33, vcc")
    a("s_waitcnt lgkmcnt(0)")
    a("s_barrier")
    st.stamp(a, "a_xbar")
    a(f"s_cmp_eq_u32 s{S_HALF}, 0")
    a("s_cbranch_scc0 L_a_x3")
    for t in range(4):
        a(f"ds_read_b128 {v(RX+4*t,4)}, v{XA} offset:{XCH + 4096 + 1024*t}")
    a("s_waitcnt lgkmcnt(0)")
    for i in range(16):
        a(f"v_add_f32 v{R+i}, v{ACC+i}, v{RX+i}")
    a("s_branch L_a_x4")
    a.label("L_a_x3")
    for t in range(4):
        a(f"ds_read_b128 {v(RX+4*t,4)}, v{XA} offset:{XCH + 1024*t}")
    a("s_waitcnt lgkmcnt(0)")
    for i in range(16):
        a(f"v_add_f32 v{R+i}, v{ACC+16+i}, v{RX+i}")
    a.label("L_a_x4")
    for t in range(4):
        for i in range(4):
            a(f"v_perm_b32 v{UU+4*t+i}, v{UU+4*t+i}, v{UU+4*t+i}, v30")
        for i in range(4):
            a(f"v_fma_f32 v{R+4*t+i}, v{UU+4*t+i}, s{S_DSKV}, v{R+4*t+i}")
        P_, Q_, SN, KP, RV = 34, 35, 36, 37, 38
        a(f"v_cvt_pk_bf16_f32 v{P_}, v{R+4*t}, v{R+4*t+1}")
        a(f"v_cvt_pk_bf16_f32 v{Q_}, v{R+4*t+2}, v{R+4*t+3}")
        a(f"v_cndmask_b32 v{SN}, v{Q_}, v{P_}, vcc")
        a(f"v_cndmask_b32 v{KP}, v{P_}, v{Q_}, vcc")
        a(f"v_mov_b32_dpp v{RV}, v{SN} quad_perm:[1,0,3,2] row_mask:0xf bank_mask:0xf")
        o = 40 + 2*t
        a(f"v_perm_b32 v{o}, v{RV}, v{KP}, v31")
        a(f"v_perm_b32 v{o+1}, v{RV}, v{KP}, v32")
        a(f"global_store_dwordx2 v{UE}, {v(o,2)}, {s(S_WS,2)} offset:{512*t}")
    st.stamp(a, "a_end")
    a("s_branch L_k1_fin")

def diag_store(a, st, label_end):
    if not st.on: return
    a(f"s_lshl_b32 s94, s2, 3")
    a(f"s_add_u32 s94, s94, s{S_WAVE}")
    a(f"s_lshl_b32 s94, s94, 6")
    a(f"s_add_u32 s94, s94, {8<<20}")
    a("v_mov_b32 v250, s94")
    for i in range(14):
        a(f"v_mov_b32 v251, s{68+i}" if i else "v_mov_b32 v251, s68")
        a("s_mov_b64 exec, 1")
        a(f"global_store_dword v250, v251, {s(S_WS,2)} offset:{4*i}")
        a("s_mov_b64 exec, -1")

def descriptor(name, vgpr, sgpr=102):
    return f""".p2align 6
.amdhsa_kernel {name}
  .amdhsa_next_free_vgpr {vgpr}
  .amdhsa_next_free_sgpr {sgpr}
  .amdhsa_accum_offset {vgpr}
  .amdhsa_group_segment_fixed_size 0
  .amdhsa_kernarg_size 128
  .amdhsa_user_sgpr_count 2
  .amdhsa_user_sgpr_kernarg_segment_ptr 1
  .amdhsa_system_sgpr_workgroup_id_x 1
.end_amdhsa_kernel
"""

HEADER_LAYOUT = open("cdna_kernels/" + NAME + ".s.ref").read().split("; Override launch geometry")[0]

def build(diag=False, only=None):
    pass
    import gen_b
    k1 = f"{NAME}_kernel"
    k2 = f"{NAME}_p2_kernel"
    st = Stamps(diag)
    a = Asm()
    k1_prologue(a, st)
    role_a(a, st)
    nA = st.n; st.n = 0
    a.label("L_roleB")
    if only == "A":
        a("s_branch L_k1_end")
    else:
        gen_b.role_b(a, st)
    a.label("L_k1_fin")
    diag_store(a, st, None)
    a.label("L_k1_end")
    a("s_endpgm")
    t1 = a.finalize()
    out = HEADER_LAYOUT
    launches = [f"; @launch kernel={k1} grid=(256,1,1) block=(512,1,1) lds=163840"]
    if only is None:
        launches.append(f"; @launch kernel={k2} grid=(256,1,1) block=(256,1,1) lds={gen_b.K2_LDS}")
    out += "\n".join(launches) + "\n"
    out += '.amdgcn_target "amdgcn-amd-amdhsa--gfx950"\n.text\n'
    out += f".globl {k1}\n.p2align 8\n.type {k1},@function\n{k1}:\n" + t1
    if only is None:
        st2 = Stamps(diag)
        b = Asm()
        gen_b.kernel2(b, st2)
        t2 = b.finalize()
        out += f".globl {k2}\n.p2align 8\n.type {k2},@function\n{k2}:\n" + t2
    out += '.section .rodata,"a"\n' + descriptor(k1, 256)
    if only is None:
        out += descriptor(k2, gen_b.K2_VGPR)
    return out

if __name__ == "__main__":
    diag = "diag" in sys.argv
    only = "A" if "onlyA" in sys.argv else ("AB" if "onlyAB" in sys.argv else None)
    outp = [x for x in sys.argv[1:] if x.endswith(".s")]
    txt = build(diag, only)
    open(outp[0] if outp else "k.s", "w").write(txt)
```

```python
from gen import *
import gen as G

K2_LDS = 163840
K2_VGPR = 256
KV16_BYTES = 32*1024
Z_OFF = KV16_BYTES
G_OFF = KV16_BYTES + 2048

def interleave(main, fill, per, start=0):
    out = []; k = 0
    for i, m in enumerate(main):
        out.append(m)
        if i >= start:
            n = per[i - start] if isinstance(per, (list, tuple)) and i - start < len(per) else (per if not isinstance(per, (list, tuple)) else 0)
            for _ in range(n):
                if k < len(fill): out.append(fill[k]); k += 1
    out += fill[k:]
    return out

def phi_list(src, n, dst, tmpbase, s_l2e, s_eps):
    L = []
    np_ = n // 2
    T = lambda p: tmpbase + 2*(p % 4)
    for g0 in range(0, np_, 4):
        ps = list(range(g0, min(np_, g0+4)))
        for p in ps:
            L.append(f"v_pk_mul_f32 {v(T(p),2)}, {v(src+2*p,2)}, {s(s_l2e,2)}")
        for p in ps:
            x = src + 2*p
            L.append(f"v_exp_f32_e64 v{T(p)}, v{T(p)} clamp")
            L.append(f"v_max_f32 v{x}, 0, v{x}")
            L.append(f"v_exp_f32_e64 v{T(p)+1}, v{T(p)+1} clamp")
            L.append(f"v_max_f32 v{x+1}, 0, v{x+1}")
        for p in ps:
            L.append(f"v_pk_add_f32 {v(src+2*p,2)}, {v(src+2*p,2)}, {s(s_eps,2)}")
        for p in ps:
            L.append(f"v_pk_add_f32 {v(src+2*p,2)}, {v(src+2*p,2)}, {v(T(p),2)}")
        for p in ps:
            x = src + 2*p
            L.append(f"v_cvt_pk_bf16_f32 v{dst+p}, v{x}, v{x+1}")
    return L

def role_b(a, st):
    S_RB=51; S_HG=52; S_RG=53; S_CG=54; S_T0=55; S_T1=64; S_T2=65
    SX=56; SW=60
    S_L2E=82; S_EPS=84; S_KVB=86; S_M=88; S_F=91; S_GI=95
    XA=[2,3,4,5]; WA=6; X0=8; X1=9; W=10; GP=11
    ACCK=16; ACCV=32; FR=[48,80]; ACCQ=112; XF=128; GW=112; GT=120
    a(f"s_and_b32 s{S_T0}, s{S_XCD}, 3")
    a(f"s_lshl_b32 s{S_RB}, s{S_T0}, 2")
    a(f"s_and_b32 s{S_T0}, s{S_IDX}, 3")
    a(f"s_add_u32 s{S_RB}, s{S_RB}, s{S_T0}")
    a(f"s_lshr_b32 s{S_T0}, s{S_XCD}, 2")
    a(f"s_lshl_b32 s{S_HG}, s{S_T0}, 2")
    a(f"s_lshr_b32 s{S_T0}, s{S_IDX}, 2")
    a(f"s_add_u32 s{S_HG}, s{S_HG}, s{S_T0}")
    a(f"s_and_b32 s{S_RG}, s{S_WAVE}, 3")
    a(f"s_lshr_b32 s{S_CG}, s{S_WAVE}, 2")
    fm = G.FMODE
    if fm == "zero":
        a(f"s_mov_b32 s{S_F}, 0")
    elif fm == "hg":
        a(f"s_mov_b32 s{S_F}, s{S_HG}")
    elif fm == "rb":
        a(f"s_and_b32 s{S_F}, s{S_IDX}, 3")
        a(f"s_lshl_b32 s{S_F}, s{S_F}, 1")
        a(f"s_and_b32 s{S_T0}, s{S_XCD}, 1")
        a(f"s_add_u32 s{S_F}, s{S_F}, s{S_T0}")
    elif fm == "latin":
        a(f"s_and_b32 s{S_F}, s{S_IDX}, 3")
        a(f"s_lshr_b32 s{S_T0}, s{S_IDX}, 2")
        a(f"s_add_u32 s{S_F}, s{S_F}, s{S_T0}")
        a(f"s_lshl_b32 s{S_F}, s{S_F}, 1")
        a(f"s_lshr_b32 s{S_T0}, s{S_XCD}, 2")
        a(f"s_add_u32 s{S_F}, s{S_F}, s{S_T0}")
        a(f"s_and_b32 s{S_F}, s{S_F}, 7")
    a(f"s_sub_u32 s{S_GI}, s{S_HG}, s{S_F}")
    a(f"s_and_b32 s{S_GI}, s{S_GI}, 7")
    a(f"v_lshrrev_b32 v12, 3, v1")
    a(f"v_and_b32 v13, 7, v1")
    a(f"v_lshrrev_b32 v14, 1, v12")
    a(f"v_xor_b32 v14, v14, v13")
    a(f"s_lshl_b32 s{S_T0}, s{S_RB}, 7")
    a(f"s_lshl_b32 s{S_T1}, s{S_WAVE}, 4")
    a(f"s_add_u32 s{S_T0}, s{S_T0}, s{S_T1}")
    a(f"v_add_u32 v15, s{S_T0}, v12")
    a(f"v_lshlrev_b32 v15, 10, v15")
    a(f"v_lshl_add_u32 v{X0}, v14, 4, v15")
    a(f"v_xor_b32 v14, 4, v14")
    a(f"v_lshl_add_u32 v{X1}, v14, 4, v15")
    a(f"v_add_u32 v{X1}, 8192, v{X1}")
    a(f"v_bfe_u32 v14, v1, 4, 1")
    a(f"v_lshlrev_b32 v14, 2, v14")
    a(f"v_xor_b32 v14, v14, v13")
    a(f"s_lshl_b32 s{S_T0}, s{S_WAVE}, 3")
    a(f"v_add_u32 v15, s{S_T0}, v12")
    a(f"v_mul_u32_u24 v15, 3072, v15")
    a(f"v_lshl_add_u32 v{W}, v14, 4, v15")
    a(f"s_lshl_b32 s{S_T0}, s{S_HG}, 7")
    a(f"v_add_u32 v{W}, s{S_T0}, v{W}")
    a(f"v_and_b32 v15, 3, v0")
    a(f"v_lshlrev_b32 v15, 5, v15")
    a(f"s_lshl_b32 s{S_T0}, s{S_HG}, 7")
    a(f"v_add_u32 v15, s{S_T0}, v15")
    a(f"s_lshl_b32 s{S_M}, s{S_WAVE}, 10")
    a(f"s_lshl_b32 s{S_M+1}, s{S_WAVE}, 11")
    a("s_waitcnt lgkmcnt(0)")
    a(f"s_mov_b32 s{SX}, s{S_U}"); a(f"s_mov_b32 s{SX+1}, s{S_U+1}"); a(f"s_mov_b32 s{SX+2}, {2048*1024}"); a(f"s_mov_b32 s{SX+3}, 0x20000")
    a(f"s_mov_b32 s{SW}, s{S_WQKV}"); a(f"s_mov_b32 s{SW+1}, s{S_WQKV+1}"); a(f"s_mov_b32 s{SW+2}, {512*3072}"); a(f"s_mov_b32 s{SW+3}, 0x20000")
    def chunk_off(i):
        return [f"s_add_u32 s{S_T0}, s{S_F}, {i}", f"s_and_b32 s{S_T0}, s{S_T0}, 7",
                f"s_lshl_b32 s66, s{S_T0}, 7", f"s_mul_i32 s67, s{S_T0}, 196608"]
    def dma(m0s, m0imm, voff, srd, soff):
        return [f"s_add_u32 m0, s{m0s}, {m0imm}", f"buffer_load_dwordx4 v{voff}, {s(srd,4)}, s{soff} offen lds"]
    def chunk_groups(n):
        slot = (n & 3) * 32768
        if n < 8:
            return [chunk_off(n) + dma(S_M+1, slot, X0, SX, 66),
                    dma(S_M+1, slot + 1024, X1, SX, 66),
                    [f"s_add_u32 s{S_T1}, s67, 1024"] + dma(S_M, slot + 16384, W, SW, S_T1),
                    [f"s_add_u32 s{S_T1}, s67, 2048"] + dma(S_M, slot + 24576, W, SW, S_T1)]
        else:
            return [chunk_off(4*(n-8)+k) + dma(S_M, slot + 8192*k, W, SW, 67) for k in range(4)]
    def emit(L):
        for x in L: a(x)
    a(f"global_load_dwordx4 {v(GW,4)}, v15, {s(S_GW,2)}")
    a(f"global_load_dwordx4 {v(GW+4,4)}, v15, {s(S_GW,2)} offset:16")
    for g in chunk_groups(0): emit(g)
    a("s_barrier")
    for g in chunk_groups(1): emit(g)
    if G.DEEP:
        a("s_barrier")
        for g in chunk_groups(2): emit(g)
    st.stamp(a, "b_issued")
    a(f"v_and_b32 v12, 31, v1")
    a(f"s_lshl_b32 s{S_T0}, s{S_RG}, 5")
    a(f"v_add_u32 v12, s{S_T0}, v12")
    a(f"v_lshrrev_b32 v13, 5, v1")
    a(f"v_bfe_u32 v14, v12, 1, 3")
    a(f"v_xor_b32 v14, v14, v13")
    a(f"v_lshlrev_b32 v14, 4, v14")
    a(f"v_lshl_add_u32 v{XA[0]}, v12, 7, v14")
    for ks in range(1,4):
        a(f"v_xor_b32 v{XA[ks]}, {32*ks}, v{XA[0]}")
    a(f"v_and_b32 v12, 15, v1")
    a(f"v_lshrrev_b32 v14, 2, v12")
    a(f"v_lshl_add_u32 v15, v13, 3, v14")
    a(f"v_lshlrev_b32 v15, 7, v15")
    a(f"v_bfe_u32 v7, v1, 4, 1")
    a(f"v_lshlrev_b32 v7, 1, v7")
    a(f"s_lshl_b32 s{S_T0}, s{S_CG}, 2")
    a(f"v_add_u32 v7, s{S_T0}, v7")
    a(f"v_bfe_u32 v13, v12, 1, 1")
    a(f"v_add_u32 v7, v7, v13")
    a(f"v_bfe_u32 v13, v14, 1, 1")
    a(f"v_lshlrev_b32 v13, 2, v13")
    a(f"v_xor_b32 v7, v7, v13")
    a(f"v_lshl_add_u32 v15, v7, 4, v15")
    a(f"v_and_b32 v13, 1, v12")
    a(f"v_lshl_add_u32 v{WA}, v13, 3, v15")
    a(f"s_mov_b32 s{S_L2E}, {LOG2E}"); a(f"s_mov_b32 s{S_L2E+1}, {LOG2E}")
    a(f"s_mov_b32 s{S_EPS}, 0x358637bd"); a(f"s_mov_b32 s{S_EPS+1}, 0x358637bd")
    a(f"s_add_u32 s{S_KVB}, s{S_WS}, {WS_KV}"); a(f"s_addc_u32 s{S_KVB+1}, s{S_WS+1}, 0")
    a(f"v_lshrrev_b32 v12, 2, v0")
    a(f"v_and_b32 v13, 3, v0")
    a(f"v_lshlrev_b32 v13, 1, v13")
    a(f"v_bfe_u32 v14, v12, 1, 3")
    a(f"v_xor_b32 v13, v13, v14")
    a(f"v_lshlrev_b32 v13, 4, v13")
    a(f"v_lshl_add_u32 v12, v12, 7, v13")
    a(f"v_xor_b32 v13, 16, v12")
    def frag_reads(i):
        slot = (i & 1) * 32768; fr = FR[i & 1]; L = []
        for ks in range(4):
            L.append(f"ds_read_b128 {v(XF + 16*i + 4*ks, 4)}, v{XA[ks]} offset:{slot}")
            for T, toff in ((0, 16384), (1, 24576)):
                for rdx in range(2):
                    L.append(f"ds_read_b64_tr_b16 {v(fr + 8*ks + 4*T + 2*rdx, 2)}, v{WA} offset:{slot + toff + 2048*ks + 512*rdx}")
        return L
    def toggle():
        return [f"v_xor_b32 v{r}, 0x10000, v{r}" for r in XA + [WA]]
    def q_reads(n0, n1):
        L = []
        for n in range(n0, n1):
            off = (n // 16) * 32768 + ((n % 16) // 4) * 8192 + (n % 4) * 2048
            for rdx in range(2):
                L.append(f"ds_read_b64_tr_b16 {v(48 + 4*(n % 8) + 2*rdx, 2)}, v{WA} offset:{off + 512*rdx}")
        return L
    a(f"s_waitcnt vmcnt({8 if G.DEEP else 4})")
    a("s_barrier")
    st.stamp(a, "b_first")
    def gate_reads(c):
        lab = f"L_b_gr{c}"
        a(f"s_cmp_eq_u32 s{S_GI}, {c}")
        a(f"s_cbranch_scc0 {lab}")
        off = (c & 3) * 32768
        if off >= 65536:
            a(f"v_add_u32 v12, 65536, v12"); a(f"v_add_u32 v13, 65536, v13"); off -= 65536
        a(f"ds_read_b128 {v(GT,4)}, v12 offset:{off}")
        a(f"ds_read_b128 {v(GT+4,4)}, v13 offset:{off}")
        a.label(lab)
    def gate_dot(c):
        lab = f"L_b_gd{c}"
        a(f"s_cmp_eq_u32 s{S_GI}, {c}")
        a(f"s_cbranch_scc0 {lab}")
        a(f"v_mov_b32 v{GP}, 0")
        for k2 in range(8): a(f"v_dot2_f32_bf16 v{GP}, v{GT+k2}, v{GW+k2}, v{GP}")
        a.label(lab)
    emit(frag_reads(0))
    gate_reads(0)
    if G.DEEP:
        for g in chunk_groups(3): emit(g)
        sched = {0: [4], 1: [5], 2: [6], 3: [7], 4: [8], 5: [9]}
        vmw = [8, 8, 8, 8, 8, 8, 8, 5]
    else:
        sched = {0: [2, 3], 1: [4], 2: [5, 6], 3: [7], 4: [8], 5: [9]}
        vmw = [0, 4, 4, 8, 8, 8, 8, 5]
    for i in range(8):
        fr = FR[i & 1]
        mm = []
        for ks in range(4):
            x = v(XF + 16*i + 4*ks, 4)
            cK = "0" if (i == 0 and ks == 0) else v(ACCK,16)
            cV = "0" if (i == 0 and ks == 0) else v(ACCV,16)
            mm.append(f"v_mfma_f32_32x32x16_bf16 {v(ACCK,16)}, {x}, {v(fr+8*ks,4)}, {cK}")
            mm.append(f"v_mfma_f32_32x32x16_bf16 {v(ACCV,16)}, {x}, {v(fr+8*ks+4,4)}, {cV}")
        npre = (G.NPRE if G.DEEP else 8) if i == 0 else G.NPRE
        a("s_waitcnt lgkmcnt(0)")
        emit(mm[:npre])
        gate_dot(i)
        pre = []
        if (i + 1) in (2, 4, 6, 8): pre += toggle()
        emit(pre)
        a(f"s_waitcnt vmcnt({vmw[i]})")
        a("s_barrier")
        if G.ITERSTAMP: st.stamp(a, f"it{i}")
        if i + 1 <= 7: gate_reads(i + 1)
        rd = frag_reads(i+1) if i + 1 <= 7 else q_reads(0, 6)
        groups = []
        for n in sched.get(i, []): groups += chunk_groups(n)
        rest = mm[npre:]
        seq = []
        if rest:
            nm = len(rest)
            k = 0; gi = 0
            for m in range(nm):
                seq.append(rest[m])
                take = (len(rd) - k + (nm - m) - 1) // (nm - m) if m < nm - 1 else len(rd) - k
                take = min(take, 3) if m < nm - 1 else take
                seq += rd[k:k+take]; k += take
                if m % 2 == 1 or m == nm - 1:
                    left = len(groups) - gi
                    slots_left = max(1, (nm - m + 1) // 2)
                    ng = left if m == nm - 1 else (left + slots_left - 1) // slots_left
                    for _ in range(ng):
                        seq += groups[gi]; gi += 1
        else:
            seq += rd
            for g_ in groups: seq += g_
        if i == 6:
            seq += ["v_mov_b32 v14, 0", f"global_load_dword v15, v14, {s(S_DBG,2)} sc1"]
        emit(seq)
    st.stamp(a, "b_pass1")
    if G.ITERSTAMP: st.on = False
    PK=80; VV=88; ONE=96; TMP=100
    PF = 6
    KVL = 65536
    D1=ACCK; D2=ACCV
    def qm(n):
        c = "0" if n == 0 else v(ACCQ,16)
        return f"v_mfma_f32_32x32x16_bf16 {v(ACCQ,16)}, {v(48+4*(n%8),4)}, {v(XF+4*n,4)}, {c}"
    fill = [f"v_add_f32_dpp v{GP}, v{GP}, v{GP} quad_perm:[1,0,3,2] row_mask:0xf bank_mask:0xf"]
    fill += [f"v_mov_b32 v{ONE+k}, 0x3f803f80" for k in range(4)]
    fill += phi_list(ACCK, 16, PK, TMP, S_L2E, S_EPS)
    fill += [f"v_add_f32_dpp v{GP}, v{GP}, v{GP} quad_perm:[2,3,0,1] row_mask:0xf bank_mask:0xf"]
    fill += [f"v_cvt_pk_bf16_f32 v{VV+p}, v{ACCV+2*p}, v{ACCV+2*p+1}" for p in range(8)]
    kvm = []
    for sg in range(2):
        c = "0" if sg == 0 else v(D1,16)
        kvm.append(f"v_mfma_f32_32x32x16_bf16 {v(D1,16)}, {v(PK+4*sg,4)}, {v(VV+4*sg,4)}, {c}")
    for sg in range(2):
        c = "0" if sg == 0 else v(D2,16)
        kvm.append(f"v_mfma_f32_32x32x16_bf16 {v(D2,16)}, {v(PK+4*sg,4)}, {v(ONE,4)}, {c}")
    fill += kvm
    fill += [
      f"v_and_b32 v12, 15, v1", f"v_bfe_u32 v13, v1, 4, 1", f"v_lshrrev_b32 v7, 5, v1",
      f"v_mul_u32_u24 v12, 68, v12", f"v_mul_u32_u24 v8, 1156, v13", f"v_add_u32 v12, v12, v8",
      f"v_lshl_add_u32 v12, v7, 5, v12",
      f"s_mul_i32 s{S_T0}, s{S_RG}, 4624", f"s_mul_i32 s{S_T1}, s{S_CG}, 2312", f"s_add_u32 s{S_T0}, s{S_T0}, s{S_T1}",
      f"s_add_u32 s{S_T0}, s{S_T0}, {KVL}", f"v_add_u32 v12, s{S_T0}, v12",
      f"v_cmp_eq_u32_e64 s[98:99], 1, v13",
      f"s_lshr_b32 s64, s{S_WAVE}, 1", f"s_and_b32 s65, s{S_WAVE}, 1",
      f"v_lshrrev_b32 v2, 4, v1", f"v_and_b32 v3, 15, v1", f"s_lshl_b32 s{S_T0}, s65, 3", f"v_add_u32 v2, s{S_T0}, v2",
      f"v_mul_u32_u24 v8, 68, v2", f"v_lshl_add_u32 v8, v3, 2, v8", f"s_mul_i32 s{S_T0}, s64, 1156",
      f"s_add_u32 s{S_T0}, s{S_T0}, {KVL}", f"v_add_u32 v8, s{S_T0}, v8",
      f"s_lshl_b32 s{S_T0}, s{S_HG}, 2", f"s_add_u32 s{S_T0}, s{S_T0}, s64", f"s_lshl_b32 s{S_T1}, s{S_T0}, 10",
      f"v_lshlrev_b32 v9, 6, v2", f"v_lshl_add_u32 v9, v3, 2, v9", f"v_add_u32 v9, s{S_T1}, v9",
      f"s_lshl_b32 s{S_T1}, s{S_T0}, 6", f"s_add_u32 s{S_T1}, s{S_T1}, {Z_OFF}", f"v_lshlrev_b32 v10, 2, v3", f"v_add_u32 v10, s{S_T1}, v10",
      f"v_lshrrev_b32 v7, 2, v0", f"s_lshl_b32 s{S_T0}, s{S_RB}, 7", f"v_add_u32 v7, s{S_T0}, v7", f"v_lshlrev_b32 v7, 2, v7",
      f"v_add_u32 v7, {G_OFF}, v7"]
    fill += [f"v_cndmask_b32_e64 v{100+j}, v{D1+j}, v{D1+8+j}, s[98:99]" for j in range(8)]
    fill += [f"v_cndmask_b32_e64 v{80+j}, v{D2+j}, v{D2+8+j}, s[98:99]" for j in range(8)]
    nper = (len(fill) + 30) // 31
    k = 0
    for n in range(32):
        issued = min(32, n + PF)
        if n == 10:
            a("s_waitcnt vmcnt(1)")
            a("s_barrier")
        a(f"s_waitcnt lgkmcnt({2*(issued - n - 1)})")
        a(qm(n))
        if n + PF < 32: emit(q_reads(n + PF, n + PF + 1))
        if n >= 1:
            emit(fill[k:k+nper]); k += nper
    emit(fill[k:])
    st.stamp(a, "b_pass2")
    for j in range(0, 8, 2):
        a(f"ds_write2_b32 v12, v{100+j}, v{101+j} offset0:{j} offset1:{j+1}")
    a(f"v_add_u32 v12, {16*68}, v12")
    a("s_mov_b32 s66, 0x00010001"); a("s_mov_b32 s67, 0x00010001")
    a("s_mov_b64 exec, s[66:67]")
    for j in range(0, 8, 2):
        a(f"ds_write2_b32 v12, v{80+j}, v{81+j} offset0:{j} offset1:{j+1}")
    a("s_mov_b64 exec, -1")
    emit([f"s_lshl_b32 s{S_T0}, s{S_RB}, 2", f"s_add_u32 s{S_T0}, s{S_T0}, s{S_RG}", f"s_lshl_b32 s{S_T0}, s{S_T0}, 5",
          f"s_lshl_b32 s{S_T1}, s{S_HG}, 2", f"s_add_u32 s{S_T0}, s{S_T0}, s{S_T1}", f"s_lshl_b32 s{S_T1}, s{S_CG}, 1",
          f"s_add_u32 s{S_T0}, s{S_T0}, s{S_T1}", f"s_lshl_b32 s{S_T0}, s{S_T0}, 10", f"s_add_u32 s{S_T0}, s{S_T0}, {WS_PQ}",
          f"v_lshlrev_b32 v12, 4, v1", f"v_add_u32 v12, s{S_T0}, v12"])
    emit(phi_list(ACCQ, 8, 40, 32, S_L2E, S_EPS))
    a(f"global_store_dwordx4 v12, v[40:43], {s(S_WS,2)} sc1")
    a("s_waitcnt vmcnt(1) lgkmcnt(0)")
    a("s_barrier")
    st.stamp(a, "b_kvbar")
    for n in range(3):
        for rg in range(4):
            a(f"ds_read_b32 v{80+4*n+rg}, v8 offset:{rg*4624 + n*4*68}")
    emit(phi_list(ACCQ+8, 8, 44, 32, S_L2E, S_EPS))
    a(f"global_store_dwordx4 v12, v[44:47], {s(S_WS,2)} offset:1024 sc1")
    a.label("L_b_poll")
    a("v_readfirstlane_b32 s66, v15")
    a("s_cmp_eq_u32 s66, 1")
    a("s_cbranch_scc1 L_b_flagok")
    a("s_sleep 2")
    a(f"global_load_dword v15, v14, {s(S_DBG,2)} sc1")
    a("s_waitcnt vmcnt(0)")
    a("s_branch L_b_poll")
    a.label("L_b_flagok")
    a("s_waitcnt lgkmcnt(0)")
    for n in range(3):
        a(f"v_add_f32 v{80+4*n}, v{80+4*n}, v{81+4*n}")
        a(f"v_add_f32 v{82+4*n}, v{82+4*n}, v{83+4*n}")
    for n in range(3):
        a(f"v_add_f32 v{80+4*n}, v{80+4*n}, v{82+4*n}")
    a(f"global_atomic_add_f32 v9, v80, {s(S_KVB,2)} sc1")
    a(f"global_atomic_add_f32 v9, v84, {s(S_KVB,2)} offset:256 sc1")
    a("s_mov_b32 s66, 0x11111111"); a("s_mov_b32 s67, 0x11111111"); a("s_mov_b64 exec, s[66:67]")
    a(f"global_atomic_add_f32 v7, v{GP}, {s(S_KVB,2)} sc1")
    a("s_mov_b64 exec, -1")
    a(f"s_cmp_eq_u32 s65, 1")
    a("s_cbranch_scc0 L_b_noz")
    a("s_mov_b64 exec, 0xffff")
    a(f"global_atomic_add_f32 v10, v88, {s(S_KVB,2)} sc1")
    a("s_mov_b64 exec, -1")
    a.label("L_b_noz")
    st.stamp(a, "b_end")
    if G.ITERSTAMP: st.on = True


CNT_OFF = 34816 + 8192
NSHARD = 16

def phase2_fused(a, st):
    S_W=S_WAVE; S_SB=51; S_CB=52; S_T0=53; S_T1=54; S_CW=55; S_KH=56; SRD=60; S_M0=57; S_SO=58; SKV=64; S_CN=86
    def emit(L):
        for x in L: a(x)
    ws = s(S_WS,2)
    a(f"s_add_u32 s{S_CN}, s{S_WS}, {WS_KV + CNT_OFF}")
    a(f"s_addc_u32 s{S_CN+1}, s{S_WS+1}, 0")
    a(f"s_cmp_lg_u32 s{S_W}, 0")
    a("s_cbranch_scc1 L_p2_noarr")
    a(f"s_and_b32 s{S_T0}, s2, {NSHARD-1}")
    a(f"s_lshl_b32 s{S_T0}, s{S_T0}, 8")
    a(f"v_mov_b32 v2, s{S_T0}")
    a("v_mov_b32 v3, 1")
    a("s_mov_b64 exec, 1")
    a(f"global_atomic_add v2, v3, {s(S_CN,2)} sc1")
    a("s_mov_b64 exec, -1")
    a.label("L_p2_noarr")
    st.stamp(a, "p2_arr")
    a(f"s_and_b32 s{S_T0}, s2, 7")
    a(f"s_lshr_b32 s{S_T1}, s2, 3")
    a(f"s_and_b32 s{S_CB}, s{S_T1}, 3")
    a(f"s_lshr_b32 s{S_T1}, s{S_T1}, 2")
    a(f"s_lshl_b32 s{S_SB}, s{S_T0}, 3")
    a(f"s_add_u32 s{S_SB}, s{S_SB}, s{S_T1}")
    a(f"s_and_b32 s{S_CW}, s{S_W}, 3")
    a(f"s_lshr_b32 s{S_KH}, s{S_W}, 2")
    M=2; HH=3
    a(f"v_and_b32 v1, 63, v0")
    a(f"v_and_b32 v{M}, 31, v1")
    a(f"v_lshrrev_b32 v{HH}, 5, v1")
    a(f"v_lshlrev_b32 v4, 4, v1")
    a(f"v_lshrrev_b32 v10, 4, v1")
    a(f"v_and_b32 v11, 15, v1")
    a(f"v_lshlrev_b32 v12, 2, v10")
    a(f"v_xor_b32 v11, v11, v12")
    a(f"v_lshlrev_b32 v11, 4, v11")
    a(f"v_lshl_add_u32 v10, v10, 10, v11")
    a(f"s_lshl_b32 s{S_T0}, s{S_CB}, 8")
    a(f"v_add_u32 v10, s{S_T0}, v10")
    a(f"s_mov_b32 s{SRD}, s{S_WO}"); a(f"s_mov_b32 s{SRD+1}, s{S_WO+1}"); a(f"s_mov_b32 s{SRD+2}, {512*1024}"); a(f"s_mov_b32 s{SRD+3}, 0x20000")
    a(f"s_lshl_b32 s{S_M0}, s{S_W}, 10")
    a(f"s_lshl_b32 s{S_SO}, s{S_W}, 12")
    for n in range(16):
        a(f"s_add_u32 m0, s{S_M0}, {n*8192}")
        a(f"buffer_load_dwordx4 v10, {s(SRD,4)}, s{S_SO} offen lds")
        if n < 15: a(f"s_add_u32 s{S_SO}, s{S_SO}, 32768")
    a(f"s_lshl_b32 s{S_T0}, s{S_SB}, 5")
    a(f"s_lshl_b32 s{S_T1}, s{S_W}, 2")
    a(f"s_add_u32 s{S_T0}, s{S_T0}, s{S_T1}")
    a(f"s_lshl_b32 s{S_T0}, s{S_T0}, 10")
    a(f"s_add_u32 s{S_T0}, s{S_T0}, {WS_PQ}")
    a(f"v_add_u32 v5, s{S_T0}, v4")
    a(f"s_lshl_b32 s{S_T0}, s{S_SB}, 7")
    a(f"s_add_u32 s{S_T0}, s{S_T0}, {WS_KV + G_OFF}")
    a(f"v_lshlrev_b32 v8, 2, v{M}")
    a(f"v_add_u32 v8, s{S_T0}, v8")
    a(f"s_lshl_b32 s{S_T0}, s{S_CB}, 7")
    a(f"s_lshl_b32 s{S_T1}, s{S_CW}, 5")
    a(f"s_add_u32 s{S_T0}, s{S_T0}, s{S_T1}")
    a(f"v_add_u32 v9, s{S_T0}, v{M}")
    a(f"v_lshlrev_b32 v9, 12, v9")
    a(f"v_lshl_add_u32 v9, v{HH}, 4, v9")
    a(f"s_lshl_b32 s{S_T0}, s{S_SB}, 6")
    a(f"v_add_u32 v9, s{S_T0}, v9")
    a(f"v_and_b32 v11, 15, v1")
    a(f"v_lshrrev_b32 v12, 2, v11")
    a(f"v_lshl_add_u32 v14, v{HH}, 2, v12")
    a(f"v_lshlrev_b32 v14, 8, v14")
    a(f"v_bfe_u32 v15, v1, 4, 1")
    a(f"v_lshlrev_b32 v15, 1, v15")
    a(f"s_lshl_b32 s{S_T0}, s{S_CW}, 2")
    a(f"v_add_u32 v15, s{S_T0}, v15")
    a(f"v_bfe_u32 v24, v11, 1, 1")
    a(f"v_add_u32 v15, v15, v24")
    a(f"v_lshlrev_b32 v24, 2, v12")
    a(f"v_xor_b32 v15, v15, v24")
    a(f"v_lshl_add_u32 v14, v15, 4, v14")
    a(f"v_and_b32 v24, 1, v11")
    WR=14
    a(f"v_lshl_add_u32 v{WR}, v24, 3, v14")
    a(f"s_lshl_b32 s{S_T0}, s{S_KH}, 16")
    a(f"v_add_u32 v{WR}, s{S_T0}, v{WR}")
    OF=65536; ZS=32768; XCHG=98304
    OFA=12; OWN=11
    a(f"s_lshl_b32 s{S_T0}, s{S_KH}, 14")
    a(f"s_add_u32 s{S_T0}, s{S_T0}, {OF}")
    a(f"v_add_u32 v{OFA}, s{S_T0}, v4")
    a(f"s_lshl_b32 s{S_T0}, s{S_W}, 12")
    a(f"s_add_u32 s{S_T1}, s{S_T0}, {OF}")
    a(f"v_add_u32 v{OWN}, s{S_T1}, v4")
    KVA=[16,17,18,19]
    a(f"v_lshlrev_b32 v24, 6, v{M}")
    a(f"v_lshl_add_u32 v24, v{HH}, 5, v24")
    a(f"v_add_u32 v24, s{S_T0}, v24")
    a(f"s_lshl_b32 s{S_T1}, s{S_W}, 8")
    a(f"s_add_u32 s{S_T1}, s{S_T1}, {ZS}")
    a(f"v_lshlrev_b32 v25, 5, v{HH}")
    a(f"v_add_u32 v25, s{S_T1}, v25")
    a(f"v_cmp_gt_u32_e64 s[98:99], 16, v{M}")
    a(f"v_cndmask_b32_e64 v{KVA[0]}, v25, v24, s[98:99]")
    a(f"v_mov_b32 v26, 64"); a(f"v_mov_b32 v27, 1024")
    a(f"v_cndmask_b32_e64 v26, v26, v27, s[98:99]")
    for n in range(1, 4):
        a(f"v_add_u32 v{KVA[n]}, v{KVA[n-1]}, v26")
    a(f"v_and_b32 v128, 7, v{M}")
    a(f"v_and_b32 v129, 1, v128")
    a(f"v_lshlrev_b32 v129, 4, v129")
    a(f"v_mov_b32 v130, 0x3f80")
    a(f"v_lshlrev_b32 v130, v129, v130")
    a(f"v_lshrrev_b32 v128, 1, v128")
    a(f"v_bfe_u32 v129, v{M}, 3, 1")
    a(f"v_cmp_eq_u32_e64 s[98:99], v129, v{HH}")
    a(f"v_cndmask_b32_e64 v130, 0, v130, s[98:99]")
    a(f"v_lshrrev_b32 v129, 4, v{M}")
    a(f"v_lshl_add_u32 v128, v129, 2, v128")
    for k in range(8):
        a(f"v_cmp_eq_u32_e64 s[98:99], {k}, v128")
        a(f"v_cndmask_b32_e64 v{24+k}, 0, v130, s[98:99]")
    a(f"s_add_u32 s{SKV}, s{S_WS}, {WS_KV}"); a(f"s_addc_u32 s{SKV+1}, s{S_WS+1}, 0"); a(f"s_mov_b32 s{SKV+2}, {KV16_BYTES + 2048}"); a(f"s_mov_b32 s{SKV+3}, 0x20000")
    a(f"s_lshl_b32 s{S_T0}, s{S_SB}, 5")
    a(f"v_add_u32 v6, s{S_T0}, v{M}")
    a(f"v_lshlrev_b32 v6, 10, v6")
    a(f"v_lshl_add_u32 v6, v{HH}, 4, v6")
    a(f"s_lshl_b32 s{S_T0}, s{S_CB}, 8")
    a(f"s_lshl_b32 s{S_T1}, s{S_CW}, 6")
    a(f"s_add_u32 s{S_T0}, s{S_T0}, s{S_T1}")
    a(f"s_lshl_b32 s{S_T1}, s{S_KH}, 5")
    a(f"s_add_u32 s{S_T0}, s{S_T0}, s{S_T1}")
    a(f"v_add_u32 v6, s{S_T0}, v6")
    FW=192
    a("s_waitcnt vmcnt(0)")
    a("s_barrier")
    st.stamp(a, "p2_wo")
    for hl in range(16):
        a(f"ds_read_b64_tr_b16 {v(FW+4*hl,2)}, v{WR} offset:{hl*4096}")
        a(f"ds_read_b64_tr_b16 {v(FW+4*hl+2,2)}, v{WR} offset:{hl*4096+2048}")
    a(f"s_cmp_lg_u32 s{S_W}, 0")
    a("s_cbranch_scc1 L_p2_wait")
    a(f"v_and_b32 v7, {NSHARD-1}, v1")
    a(f"v_lshlrev_b32 v7, 8, v7")
    a("s_mov_b32 s92, 0")
    a.label("L_p2_poll")
    a(f"global_load_dword v13, v7, {s(S_CN,2)} sc1")
    a("s_waitcnt vmcnt(0)")
    a(f"v_add_u32_dpp v13, v13, v13 row_shr:1 row_mask:0xf bank_mask:0xf bound_ctrl:0")
    a(f"v_add_u32_dpp v13, v13, v13 row_shr:2 row_mask:0xf bank_mask:0xf bound_ctrl:0")
    a(f"v_add_u32_dpp v13, v13, v13 row_shr:4 row_mask:0xf bank_mask:0xf bound_ctrl:0")
    a(f"v_add_u32_dpp v13, v13, v13 row_shr:8 row_mask:0xf bank_mask:0xf bound_ctrl:0")
    a(f"v_readlane_b32 s93, v13, 15")
    a("s_add_u32 s92, s92, 1")
    a("s_cmp_eq_u32 s93, 256")
    a("s_cbranch_scc1 L_p2_wait")
    a("s_cmp_lt_u32 s92, 0x100000")
    a("s_cbranch_scc1 L_p2_poll")
    a.label("L_p2_wait")
    a("s_waitcnt lgkmcnt(0)")
    a("s_barrier")
    st.stamp(a, "p2_go")
    PQ=32; KVF=64; G_=13; AT=48
    a(f"s_lshl_b32 s{S_M0}, s{S_W}, 12")
    for n in range(4):
        a(f"s_add_u32 m0, s{S_M0}, {1024*n}")
        a(f"s_add_u32 s{S_T0}, s{S_M0}, {1024*n}")
        a(f"buffer_load_dwordx4 v4, {s(SKV,4)}, s{S_T0} offen sc1 lds")
    a(f"s_lshl_b32 s{S_T1}, s{S_W}, 8")
    a(f"s_add_u32 m0, s{S_T1}, {ZS}")
    a(f"s_add_u32 s{S_T0}, s{S_T1}, {Z_OFF}")
    a("s_mov_b64 exec, 0xffff")
    a(f"buffer_load_dwordx4 v4, {s(SKV,4)}, s{S_T0} offen sc1 lds")
    a("s_mov_b64 exec, -1")
    for n in range(4):
        a(f"global_load_dwordx4 {v(PQ+4*n,4)}, v5, {ws} offset:{n*1024} sc1")
    a(f"global_load_dword v{G_}, v8, {ws} sc1")
    a(f"s_cmp_eq_u32 s{S_KH}, 0")
    a("s_mov_b32 s93, 0xffff0000")
    a("s_cselect_b32 s92, 0x0000ffff, s93")
    a("s_mov_b32 s93, s92")
    a("s_mov_b64 exec, s[92:93]")
    a(f"global_load_dwordx4 {v(AT,4)}, v9, {ws} sc1")
    a(f"global_load_dwordx4 {v(AT+4,4)}, v9, {ws} offset:32 sc1")
    a("s_mov_b64 exec, -1")
    a("s_waitcnt vmcnt(7)")
    for n in range(4):
        a(f"ds_read_b128 {v(KVF+8*n,4)}, v{KVA[n]}")
        a(f"ds_read_b128 {v(KVF+8*n+4,4)}, v{KVA[n]} offset:16")
    a("s_waitcnt vmcnt(3) lgkmcnt(0)")
    st.stamp(a, "p2_in")
    D=128; AF=160; OO=168
    a("s_mov_b32 s92, 0x358637bd")
    def kvcvt(n):
        for k in range(4):
            a(f"v_cvt_pk_bf16_f32 v{AF+4*(n%2)+k}, v{KVF+8*n+2*k}, v{KVF+8*n+2*k+1}")
    def omfma(n):
        a(f"v_mfma_f32_32x32x16_bf16 {v(D+16*(n%2),16)}, {v(AF+4*(n%2),4)}, {v(PQ+4*n,4)}, 0")
    def onorm(n):
        d = D + 16*(n%2); o = OO + 4*(n%2)
        a(f"v_add_f32 v{d+8}, s92, v{d+8}")
        a(f"v_rcp_f32 v{d+8}, v{d+8}")
        for k in range(0, 8, 2):
            a(f"v_pk_mul_f32 {v(d+k,2)}, {v(d+k,2)}, {v(d+8,2)} op_sel_hi:[1,0]")
        for k in range(4):
            a(f"v_cvt_pk_bf16_f32 v{o+k}, v{d+2*k}, v{d+2*k+1}")
        a(f"ds_write_b128 v{OWN}, {v(o,4)} offset:{1024*n}")
    kvcvt(0); omfma(0); kvcvt(1); omfma(1)
    onorm(0); kvcvt(2); omfma(2); onorm(1); kvcvt(3); omfma(3); onorm(2); onorm(3)
    ACCA=176; ACCB=96
    a(f"s_waitcnt lgkmcnt(0)")
    a("s_barrier")
    st.stamp(a, "p2_of")
    FO=128
    for hl in range(8):
        a(f"ds_read_b128 {v(FO+4*hl,4)}, v{OFA} offset:{1024*hl}")
    for hl in range(16):
        left = min(16, hl + 8) - hl - 1
        a(f"s_waitcnt lgkmcnt({left})")
        c = "0" if hl == 0 else v(ACCB,16)
        a(f"v_mfma_f32_32x32x16_bf16 {v(ACCB,16)}, {v(FW+4*hl,4)}, {v(FO+4*(hl%8),4)}, {c}")
        if hl + 8 < 16: a(f"ds_read_b128 {v(FO+4*(hl%8),4)}, v{OFA} offset:{1024*(hl+8)}")
        if hl == 11:
            a(f"s_waitcnt vmcnt(0)")
            a(f"v_mul_f32 v{G_}, 0xbfb8aa3b, v{G_}")
            a(f"v_exp_f32 v{G_}, v{G_}")
        if hl == 12:
            a(f"v_add_f32 v{G_}, 1.0, v{G_}")
            a(f"v_rcp_f32 v{G_}, v{G_}")
    a(f"v_mfma_f32_32x32x16_bf16 {v(ACCA,16)}, {v(AT,4)}, v[24:27], 0")
    a(f"v_mfma_f32_32x32x16_bf16 {v(ACCA,16)}, {v(AT+4,4)}, v[28:31], {v(ACCA,16)}")
    st.stamp(a, "p2_gemm")
    XA_=20
    a(f"s_lshl_b32 s{S_T0}, s{S_CW}, 12")
    a(f"s_add_u32 s{S_T0}, s{S_T0}, {XCHG}")
    a(f"v_add_u32 v{XA_}, s{S_T0}, v4")
    a(f"s_cmp_eq_u32 s{S_KH}, 0")
    a("s_cbranch_scc0 L_p2_x1")
    a(f"ds_write_b128 v{XA_}, {v(ACCB+8,4)} offset:0")
    a(f"ds_write_b128 v{XA_}, {v(ACCB+12,4)} offset:1024")
    a("s_waitcnt lgkmcnt(0)")
    a("s_barrier")
    a(f"ds_read_b128 v[32:35], v{XA_} offset:2048")
    a(f"ds_read_b128 v[36:39], v{XA_} offset:3072")
    a("s_waitcnt lgkmcnt(0)")
    for k in range(8):
        a(f"v_add_f32 v{40+k}, v{ACCB+k}, v{32+k}")
        a(f"v_sub_f32 v{48+k}, v{ACCA+k}, v{40+k}")
    a("s_branch L_p2_x2")
    a.label("L_p2_x1")
    a(f"ds_write_b128 v{XA_}, {v(ACCB,4)} offset:2048")
    a(f"ds_write_b128 v{XA_}, {v(ACCB+4,4)} offset:3072")
    a("s_waitcnt lgkmcnt(0)")
    a("s_barrier")
    a(f"ds_read_b128 v[32:35], v{XA_} offset:0")
    a(f"ds_read_b128 v[36:39], v{XA_} offset:1024")
    a("s_waitcnt lgkmcnt(0)")
    for k in range(8):
        a(f"v_add_f32 v{40+k}, v{ACCB+8+k}, v{32+k}")
        a(f"v_sub_f32 v{48+k}, v{ACCA+8+k}, v{40+k}")
    a.label("L_p2_x2")
    for k in range(8):
        a(f"v_fma_f32 v{48+k}, v{48+k}, v{G_}, v{40+k}")
    P=56
    for k in range(4):
        a(f"v_cvt_pk_bf16_f32 v{P+k}, v{48+2*k}, v{48+2*k+1}")
    a(f"v_permlane32_swap_b32 v{P}, v{P+2}")
    a(f"v_permlane32_swap_b32 v{P+1}, v{P+3}")
    a(f"global_store_dwordx4 v6, {v(P,4)}, {s(S_OUT,2)}")
    st.stamp(a, "p2_end")
```

```python
import sys, math
from asmlib import Asm

NAME = "gated_mix__ssm_conv_s4__linear_attn_block__prompt"
WS_AT = 0
WS_PQ = 2 << 20
WS_KV = 4 << 20
ZERO_BYTES = 32*1024 + 2048 + 8192 + 16*256
NPRE = int(([x[5:] for x in sys.argv if x.startswith('npre=')] + ['0'])[0])
DEEP = 'shallow' not in sys.argv
ITERSTAMP = 'iter' in sys.argv
FMODE = ([x[2:] for x in sys.argv if x.startswith('f=')] + ['rb'])[0]
PNT = '' if 'nont' in sys.argv else ' nt'
LOG2E = 0x3fb8aa3b
INV2PI = 0x3e22f983

FT_STRIDE = 60 * 528
ROWB = 528
U_BASE = 4 * FT_STRIDE
U_CH = 9280
U1_OFF = 4640
KC1 = 4224
XCH = 8704

def v(i, n=1):
    return f"v{i}" if n == 1 else f"v[{i}:{i+n-1}]"
def s(i, n=1):
    return f"s{i}" if n == 1 else f"s[{i}:{i+n-1}]"

class Stamps:
    def __init__(self, on): self.on = on; self.n = 0
    def stamp(self, a, name):
        if not self.on: return
        a(f"s_memtime s[96:97]")
        a(f"s_waitcnt lgkmcnt(0)")
        a(f"s_mov_b32 s{70+self.n}, s96")
        self.n += 1

def cmul(a, dst, x, y, tmp):
    a(f"v_pk_mul_f32 {v(tmp,2)}, {v(x,2)}, {v(y,2)} op_sel:[0,0] op_sel_hi:[0,1]")
    a(f"v_pk_fma_f32 {v(dst,2)}, {v(x,2)}, {v(y,2)}, {v(tmp,2)} op_sel:[1,1,0] op_sel_hi:[1,0,1] neg_lo:[1,0,0]")

def cmul2(a, dsts, xs, ys, tmps):
    for d, x, y, t in zip(dsts, xs, ys, tmps):
        a(f"v_pk_mul_f32 {v(t,2)}, {v(x,2)}, {v(y,2)} op_sel:[0,0] op_sel_hi:[0,1]")
    for d, x, y, t in zip(dsts, xs, ys, tmps):
        a(f"v_pk_fma_f32 {v(d,2)}, {v(x,2)}, {v(y,2)}, {v(t,2)} op_sel:[1,1,0] op_sel_hi:[1,0,1] neg_lo:[1,0,0]")

def cexp(a, dst, ar, ai, scale, t0, t1):
    if scale is None:
        a(f"v_exp_f32 {v(t0)}, {v(ar)}")
        a(f"v_fract_f32 {v(t1)}, {v(ai)}")
    else:
        a(f"v_mul_f32 {v(t0)}, {scale}, {v(ar)}")
        a(f"v_mul_f32 {v(t1)}, {scale}, {v(ai)}")
        a(f"v_exp_f32 {v(t0)}, {v(t0)}")
        a(f"v_fract_f32 {v(t1)}, {v(t1)}")
    a(f"v_cos_f32 {v(dst)}, {v(t1)}")
    a(f"v_sin_f32 {v(dst+1)}, {v(t1)}")
    a(f"v_mul_f32 {v(dst)}, {v(dst)}, {v(t0)}")
    a(f"v_mul_f32 {v(dst+1)}, {v(dst+1)}, {v(t0)}")

S_U=16; S_ARE=18; S_AIM=20; S_BRE=22; S_BIM=24; S_CRE=26; S_CIM=28; S_LDT=30
S_DSK=32; S_WQKV=36; S_WO=38; S_GW=40; S_OUT=42; S_DBG=44; S_WS=46
S_WAVE=48; S_XCD=49; S_IDX=50

def k1_prologue(a, st):
    a("s_cmp_ge_u32 s2, 256")
    a("s_cbranch_scc1 L_k1_end")
    a("s_load_dwordx16 s[16:31], s[0:1], 0")
    a("s_load_dwordx4 s[32:35], s[0:1], 64")
    a("s_load_dwordx4 s[36:39], s[0:1], 80")
    a("s_load_dwordx4 s[40:43], s[0:1], 96")
    a("s_load_dwordx4 s[44:47], s[0:1], 112")
    if st.on:
        a("s_memtime s[68:69]")
    a("v_lshrrev_b32 v1, 6, v0")
    a(f"v_readfirstlane_b32 s{S_WAVE}, v1")
    a("v_and_b32 v1, 63, v0")
    a(f"s_and_b32 s{S_XCD}, s2, 7")
    a(f"s_lshr_b32 s{S_IDX}, s2, 4")
    a("s_bitcmp1_b32 s2, 3")
    a("s_cbranch_scc1 L_roleB")

def role_a(a, st):
    S_CH=51; S_HALF=52; S_CHN=53; S_CH0=54; S_FT=55; S_T0=56; S_T1=57; S_DT=58; S_DSKV=59; S_UB=90
    SRD_U=64
    GA0=72; GA1=73; GM=74
    def grow(r): return f"buffer_load_dwordx2 v[{4+2*r}:{5+2*r}], v{GA0 if r < 4 else GA1}, {s(SRD_U,4)}, 0 offen offset:{(r%4)*1024}"
    a.label("L_roleA")
    a(f"s_and_b32 s{S_CH}, s{S_WAVE}, 3")
    a(f"s_lshr_b32 s{S_HALF}, s{S_WAVE}, 2")
    a(f"s_lshl_b32 s{S_CH0}, s{S_XCD}, 6")
    a(f"s_lshl_b32 s{S_T0}, s{S_IDX}, 2")
    a(f"s_add_u32 s{S_CH0}, s{S_CH0}, s{S_T0}")
    a(f"s_add_u32 s{S_CHN}, s{S_CH0}, s{S_CH}")
    a(f"s_mul_i32 s{S_FT}, s{S_CH}, {FT_STRIDE}")
    a(f"s_mul_i32 s{S_UB}, s{S_CH}, {U_CH}")
    a(f"s_add_u32 s{S_UB}, s{S_UB}, {U_BASE}")
    a(f"s_lshl_b32 s{S_T0}, s{S_CHN}, 8")
    a(f"v_lshlrev_b32 v26, 2, v1")
    a(f"v_add_u32 v26, s{S_T0}, v26")
    a("s_waitcnt lgkmcnt(0)")
    a("s_cmp_lg_u32 s2, 0")
    a("s_cbranch_scc1 L_a_nozero")
    a(f"s_add_u32 s60, s{S_WS}, {WS_KV}")
    a(f"s_addc_u32 s61, s{S_WS+1}, 0")
    a(f"s_mov_b32 s62, {ZERO_BYTES}")
    a("s_mov_b32 s63, 0x20000")
    a("v_lshlrev_b32 v27, 4, v0")
    for i in range(4): a(f"v_mov_b32 v{28+i}, 0")
    for i in range(6):
        a(f"buffer_store_dwordx4 v[28:31], v27, s[60:63], 0 offen sc1")
        if i < 5: a(f"v_add_u32 v27, 8192, v27")
    a.label("L_a_nozero")
    a(f"global_load_dword v20, v26, {s(S_ARE,2)}{PNT}")
    a(f"global_load_dword v21, v26, {s(S_AIM,2)}{PNT}")
    a(f"s_lshl_b32 s{S_T0}, s{S_CHN}, 1")
    a(f"s_and_b32 s{S_T0}, s{S_T0}, 0xfffffffc")
    a(f"s_load_dword s{S_DT}, {s(S_LDT,2)}, s{S_T0}")
    a(f"s_load_dword s{S_DSKV}, {s(S_DSK,2)}, s{S_T0}")
    a(f"s_cmp_eq_u32 s{S_HALF}, 0")
    a("s_cbranch_scc0 L_a_gather")
    a(f"global_load_dword v22, v26, {s(S_BRE,2)}{PNT}")
    a(f"global_load_dword v23, v26, {s(S_BIM,2)}{PNT}")
    a(f"global_load_dword v24, v26, {s(S_CRE,2)}{PNT}")
    a(f"global_load_dword v25, v26, {s(S_CIM,2)}{PNT}")
    a("s_branch L_a_p1")
    a.label("L_a_gather")
    a(f"s_mov_b32 s{SRD_U}, s{S_U}")
    a(f"s_mov_b32 s{SRD_U+1}, s{S_U+1}")
    a(f"s_mov_b32 s{SRD_U+2}, {2048*1024}")
    a(f"s_mov_b32 s{SRD_U+3}, 0x20000")
    a(f"v_and_b32 v27, 255, v0")
    a(f"v_lshrrev_b32 v28, 3, v27")
    a(f"s_lshl_b32 s{S_T0}, s{S_IDX}, 7")
    a(f"v_add_u32 v28, s{S_T0}, v28")
    a(f"v_lshlrev_b32 v28, 10, v28")
    a(f"v_and_b32 v29, 7, v27")
    a(f"v_lshl_add_u32 v28, v29, 4, v28")
    a(f"s_lshl_b32 s{S_T0}, s{S_XCD}, 7")
    a(f"v_add_u32 v28, s{S_T0}, v28")
    for j in range(4):
        a(f"s_mov_b32 s{S_T1}, {j*32768}")
        a(f"buffer_load_dwordx4 v[224:227], v28, {s(SRD_U,4)}, s{S_T1} offen")
    a(f"v_lshlrev_b32 v{GA0}, 13, v27")
    a(f"s_lshl_b32 s{S_T0}, s{S_CH0}, 1")
    a(f"v_add_u32 v{GA0}, s{S_T0}, v{GA0}")
    a(f"v_add_u32 v{GA1}, 4096, v{GA0}")
    a(f"v_subrev_u32 v{GM}, 1024, v{GA0}")
    a(f"v_cmp_eq_u32_e64 s[98:99], 0, v27")
    a(f"v_mov_b32 v31, 0x7ffffff0")
    a(f"v_cndmask_b32_e64 v{GM}, v{GM}, v31, s[98:99]")
    a.label("L_a_p1")
    st.stamp(a, "a_start")
    a("s_waitcnt lgkmcnt(0)")
    a(f"s_bitcmp1_b32 s{S_CHN}, 0")
    a(f"s_cselect_b32 s{S_T0}, 16, 0")
    a(f"s_lshr_b32 s{S_DT}, s{S_DT}, s{S_T0}")
    a(f"s_lshl_b32 s{S_DT}, s{S_DT}, 16")
    a(f"s_lshr_b32 s{S_DSKV}, s{S_DSKV}, s{S_T0}")
    a(f"s_lshl_b32 s{S_DSKV}, s{S_DSKV}, 16")
    DT=68
    a(f"v_mov_b32 v{DT}, {LOG2E}")
    a(f"v_mul_f32 v{DT}, s{S_DT}, v{DT}")
    a(f"v_exp_f32 v{DT}, v{DT}")
    a(f"v_cvt_pk_bf16_f32 v{DT}, v{DT}, v{DT}")
    a(f"v_lshlrev_b32 v{DT}, 16, v{DT}")
    WA=69
    a(f"v_lshlrev_b32 v{WA}, 3, v1")
    a(f"v_add_u32 v{WA}, s{S_FT}, v{WA}")
    a(f"s_cmp_eq_u32 s{S_HALF}, 0")
    a("s_cbranch_scc0 L_a_p1B")
    a("s_waitcnt vmcnt(0)")
    st.stamp(a, "a_params")
    AR=[26,27]; AI=[28,29]
    def unpack(dst0, dst1, src):
        a(f"v_lshlrev_b32 v{dst0}, 16, v{src}")
        a(f"v_and_b32 v{dst1}, 0xffff0000, v{src}")
    def arai():
        unpack(AR[0], AR[1], 20); unpack(AI[0], AI[1], 21)
        a(f"s_mov_b32 s{S_T0}, {LOG2E}")
        a(f"s_mov_b32 s{S_T1}, {INV2PI}")
        for m in range(2):
            a(f"v_mul_f32 v{AR[m]}, v{AR[m]}, v{DT}")
            a(f"v_mul_f32 v{AI[m]}, v{AI[m]}, v{DT}")
        for m in range(2):
            a(f"v_mul_f32 v{AR[m]}, s{S_T0}, v{AR[m]}")
            a(f"v_mul_f32 v{AI[m]}, s{S_T1}, v{AI[m]}")
    arai()
    E1=[30,32]; E256=[34,36]; G0=[38,40]; G2=[42,44]; G4=[46,48]; G6=[50,52]; G8=[54,56]; CUR=[58,60]; TMP=[62,64]; O=[66,70]
    for m in range(2):
        cexp(a, E1[m], AR[m], AI[m], None, TMP[m], TMP[m]+1)
    a(f"s_mov_b32 s{S_T0}, 0x43800000")
    for m in range(2):
        cexp(a, E256[m], AR[m], AI[m], f"s{S_T0}", TMP[m], TMP[m]+1)
    unpack(CUR[0], CUR[1], 22)
    a.items = a.items[:-2]
    a(f"v_lshlrev_b32 v{CUR[0]}, 16, v22"); a(f"v_and_b32 v{CUR[1]}, 0xffff0000, v22")
    a(f"v_lshlrev_b32 v{CUR[0]+1}, 16, v23"); a(f"v_and_b32 v{CUR[1]+1}, 0xffff0000, v23")
    a(f"v_lshlrev_b32 v{G2[0]}, 16, v24"); a(f"v_and_b32 v{G2[1]}, 0xffff0000, v24")
    a(f"v_lshlrev_b32 v{G2[0]+1}, 16, v25"); a(f"v_and_b32 v{G2[1]+1}, 0xffff0000, v25")
    for m in range(2):
        a(f"v_mul_f32 v{CUR[m]}, v{CUR[m]}, v{DT}")
        a(f"v_mul_f32 v{CUR[m]+1}, v{CUR[m]+1}, v{DT}")
    cmul2(a, G0, G2, CUR, TMP)
    st.stamp(a, "a_setup")
    tog = [0]
    def wrow(src, rho):
        o = O[tog[0]]; tog[0] ^= 1
        for m in range(2):
            a(f"v_cvt_pk_bf16_f32 v{o+m}, v{src[m]}, -v{src[m]+1}")
        for r in (rho if isinstance(rho, (list,tuple)) else [rho]):
            a(f"ds_write_b64 v{WA}, {v(o,2)} offset:{r*ROWB}")
    wrow(G0, 0)
    cmul2(a, CUR, G0, E1, TMP); wrow(CUR, 1)
    cmul2(a, G2, CUR, E1, TMP); wrow(G2, 2)
    cmul2(a, CUR, G2, E1, TMP); wrow(CUR, 3)
    cmul2(a, G4, CUR, E1, TMP); wrow(G4, 4)
    cmul2(a, CUR, G4, E1, TMP); wrow(CUR, 5)
    cmul2(a, G6, CUR, E1, TMP); wrow(G6, 6)
    cmul2(a, CUR, G6, E1, TMP); wrow(CUR, 7)
    cmul2(a, G8, CUR, E1, TMP)
    cmul2(a, G0, G0, E256, TMP); wrow(G0, 8)
    cmul2(a, G2, G2, E256, TMP); wrow(G2, 9)
    cmul2(a, G4, G4, E256, TMP); wrow(G4, [10, 11])
    cmul2(a, G6, G6, E256, TMP); wrow(G6, 12)
    cmul2(a, G8, G8, E256, TMP); wrow(G8, 13)
    for base in (14, 17):
        cmul2(a, G0, G0, E256, TMP); wrow(G0, base)
        cmul2(a, G4, G4, E256, TMP); wrow(G4, base+1)
        cmul2(a, G8, G8, E256, TMP); wrow(G8, base+2)
    for base in (20, 22, 24, 26):
        cmul2(a, G0, G0, E256, TMP); wrow(G0, base)
        cmul2(a, G8, G8, E256, TMP); wrow(G8, base+1)
    a("s_branch L_a_p1done")
    a.label("L_a_p1B")
    st.n -= 2
    a("s_waitcnt vmcnt(4)")
    st.stamp(a, "a_params")
    a("s_mov_b64 exec, 1")
    a(f"buffer_load_dwordx2 v[2:3], v{GM}, {s(SRD_U,4)}, 0 offen")
    a("s_mov_b64 exec, -1")
    for r in range(4): a(grow(r))
    arai()
    E8=[30,32]; F=[34,36]
    a(f"s_mov_b32 s{S_T0}, 0x41000000")
    for m in range(2):
        cexp(a, E8[m], AR[m], AI[m], f"s{S_T0}", TMP[m], TMP[m]+1)
    for m in range(2):
        a(f"v_mov_b32 v{F[m]}, 1.0"); a(f"v_mov_b32 v{F[m]+1}, 0")
    a(f"v_add_u32 v{WA}, {28*ROWB}, v{WA}")
    st.stamp(a, "a_setup")
    def brows(n):
        for k in range(n):
            o = O[k & 1]
            for m in range(2):
                a(f"v_cvt_pk_bf16_f32 v{o+m}, v{F[m]}, v{F[m]+1}")
            cmul2(a, F, F, E8, TMP)
            a(f"ds_write_b64 v{WA}, {v(o,2)} offset:{(k%4)*ROWB}")
            if k % 4 == 3: a(f"v_add_u32 v{WA}, {4*ROWB}, v{WA}")
    a(f"s_mov_b32 s{S_T0}, 3")
    a.label("L_a_p1Bloop1")
    brows(4)
    a(f"s_sub_u32 s{S_T0}, s{S_T0}, 1")
    a(f"s_cmp_lg_u32 s{S_T0}, 0")
    a("s_cbranch_scc1 L_a_p1Bloop1")
    a(f"s_mov_b32 s{S_T0}, 3")
    a.label("L_a_p1Bloop2")
    brows(4)
    a(f"s_sub_u32 s{S_T0}, s{S_T0}, 1")
    a(f"s_cmp_lg_u32 s{S_T0}, 0")
    a("s_cbranch_scc1 L_a_p1Bloop2")
    brows(8)
    a.label("L_a_p1done")
    st.stamp(a, "a_p1end")
    a("s_waitcnt lgkmcnt(0)")
    a("s_barrier")
    st.stamp(a, "a_p1done")
    a("s_cmp_lg_u32 s2, 0")
    a("s_cbranch_scc1 L_a_noflag")
    a(f"s_cmp_lg_u32 s{S_WAVE}, 0")
    a("s_cbranch_scc1 L_a_noflag")
    a("v_mov_b32 v26, 0")
    a("v_mov_b32 v27, 1")
    a("s_mov_b64 exec, 1")
    a(f"global_store_dword v26, v27, {s(S_DBG,2)} sc1")
    a("s_mov_b64 exec, -1")
    a.label("L_a_noflag")
    a(f"s_cmp_eq_u32 s{S_HALF}, 0")
    a("s_cbranch_scc0 L_a_utab")
    RA=26; RB=27; C=28; H=29
    a(f"v_and_b32 v{C}, 31, v1")
    a(f"v_lshrrev_b32 v{H}, 5, v1")
    a(f"v_subrev_u32 v30, 8, v{C}")
    a(f"v_max_i32 v30, 0, v30")
    a(f"v_lshrrev_b32 v30, 2, v30")
    a(f"v_min_u32 v30, 4, v30")
    a(f"v_sub_u32 v30, v{C}, v30")
    a(f"v_mul_u32_u24 v{RA}, {ROWB}, v30")
    a(f"v_mul_u32_u24 v{RB}, {ROWB}, v{C}")
    a(f"v_lshlrev_b32 v31, 4, v{H}")
    a(f"v_add_u32 v31, s{S_FT}, v31")
    a(f"v_add_u32 v{RA}, v{RA}, v31")
    a(f"v_add_u32 v{RB}, v{RB}, v31")
    D=100
    FA=36; FB=68+4
    FB=116
    def rd(sidx):
        a(f"ds_read_b128 {v(FA+4*(sidx%8),4)}, v{RA} offset:{32*sidx}")
        a(f"ds_read_b128 {v(FB+4*(sidx%8),4)}, v{RB} offset:{28*ROWB+32*sidx}")
    for sidx in range(6): rd(sidx)
    for sidx in range(16):
        issued = min(16, sidx + 6)
        a(f"s_waitcnt lgkmcnt({2*(issued - sidx - 1)})")
        c = "0" if sidx == 0 else v(D,16)
        a(f"v_mfma_f32_32x32x16_bf16 {v(D,16)}, {v(FA+4*(sidx%8),4)}, {v(FB+4*(sidx%8),4)}, {c}")
        if sidx + 6 < 16: rd(sidx + 6)
    st.stamp(a, "a_p2")
    B2=30; B3=31; Z=36; FX=32
    a(f"v_sub_u32 v{B2}, 31, v{C}")
    a(f"v_lshlrev_b32 v{B2}, 4, v{B2}")
    a(f"v_add_u32 v{B2}, s{S_FT}, v{B2}")
    a(f"v_sub_u32 v37, 1, v{H}")
    a(f"v_lshl_add_u32 v{B3}, v37, 10, v{B2}")
    a(f"v_lshl_add_u32 v{B2}, v37, 9, v{B2}")
    a(f"v_lshlrev_b32 v38, 2, v1")
    a(f"v_add_u32 v38, s{S_FT}, v38")
    a(f"v_mov_b32 v{Z}, 0")
    a(f"v_and_b32 v39, 1, v{C}")
    a(f"v_cmp_eq_u32_e64 s[98:99], 1, v39")
    a(f"ds_write_b32 v38, v{Z} offset:4096")
    a(f"ds_write_b32 v38, v{Z} offset:{KC1-4+4096}")
    d = lambda i: f"v{D+i}"
    P=40
    a(f"v_cvt_pk_bf16_f32 v{P+2}, {d(3)}, {d(2)}")
    a(f"v_cvt_pk_bf16_f32 v{P+3}, {d(1)}, {d(0)}")
    a(f"v_cvt_pk_bf16_f32 v{P}, {d(6)}, {d(5)}")
    a(f"v_cvt_pk_bf16_f32 v{P+1}, {d(4)}, {d(4)}")
    a(f"v_cvt_pk_bf16_f32 v{P+4}, {d(10)}, {d(10)}")
    a(f"v_cvt_pk_bf16_f32 v{P+5}, {d(9)}, {d(9)}")
    a(f"v_cvt_pk_bf16_f32 v{P+6}, {d(9)}, {d(8)}")
    a(f"v_cvt_pk_bf16_f32 v{P+7}, {d(8)}, {d(8)}")
    a(f"v_permlane32_swap_b32 v{P+2}, v{P}")
    a(f"v_permlane32_swap_b32 v{P+3}, v{P+1}")
    for io in range(2):
        k0 = 12 + 2*io; k8 = k0 + 1; q = P + 8 + 4*io
        a(f"v_cndmask_b32_e64 v{q+1}, {d(k0)}, {d(k8)}, s[98:99]")
        a(f"v_cvt_pk_bf16_f32 v{q}, {d(k8)}, {d(k8)}")
        a(f"v_cvt_pk_bf16_f32 v{q+1}, {d(k8)}, v{q+1}")
        a(f"v_cvt_pk_bf16_f32 v{q+2}, {d(k0)}, {d(k0)}")
        a(f"v_mov_b32 v{q+3}, v{q+2}")
    chunks = [(P, B2, 3072), (P+4, B2, 2048), (P+8, B3, 512), (P+12, B3, 0)]
    for (q, br, off) in chunks:
        a(f"ds_write_b128 v{br}, {v(q,4)} offset:{off}")
    for n, (q, br, off) in enumerate(chunks):
        c1 = 56 + 4*n
        a(f"v_mov_b32 v{c1}, v{q+1}")
        a(f"v_mov_b32 v{c1+1}, v{q+2}")
        a(f"v_mov_b32 v{c1+2}, v{q+3}")
        a(f"v_mov_b32_dpp v{c1+3}, v{q} wave_shr:1 row_mask:0xf bank_mask:0xf")
        a(f"ds_write_b128 v{br}, {v(c1,4)} offset:{off + KC1}")
    a("s_mov_b32 s92, 0x80000000"); a("s_mov_b32 s93, 0x80000000")
    a("s_mov_b64 exec, s[92:93]")
    for (q, br, off) in chunks:
        a(f"ds_write_b32 v{br}, v{q} offset:{off + KC1 - 4}")
    a("s_mov_b64 exec, 1")
    a(f"ds_write_b32 v{B2}, v{Z} offset:{3072 + KC1 + 12}")
    a("s_mov_b64 exec, -1")
    a("s_branch L_a_p3done")
    a.label("L_a_utab")
    st.n -= 1
    for r in range(4, 8): a(grow(r))
    a("s_waitcnt vmcnt(0)")
    st.stamp(a, "a_gather")
    a(f"v_and_b32 v27, 255, v0")
    a(f"v_lshlrev_b32 v28, 4, v27")
    a(f"v_add_u32 v28, {U_BASE+512}, v28")
    a(f"v_mov_b32_dpp v2, v18 wave_shr:1 row_mask:0xf bank_mask:0xf")
    a(f"v_mov_b32_dpp v3, v19 wave_shr:1 row_mask:0xf bank_mask:0xf")
    a(f"s_mov_b32 s{S_T0}, 0x05040100")
    a(f"s_mov_b32 s{S_T1}, 0x07060302")
    row = lambda r, dw: f"v{2+2*(r+1)+dw}"
    T=32
    n = 0
    for cc in range(4):
        dw = cc >> 1; sel = S_T0 if (cc & 1) == 0 else S_T1
        for cp in range(2):
            t = T + 4*(n % 4); n += 1
            for i in range(4):
                lo = 2*i - 1 if cp == 0 else 2*i
                a(f"v_perm_b32 v{t+i}, {row(lo+1,dw)}, {row(lo,dw)}, s{sel}")
            a(f"ds_write_b128 v28, {v(t,4)} offset:{cc*U_CH + cp*U1_OFF}")
    a(f"v_and_b32 v29, 255, v0")
    a(f"v_lshrrev_b32 v30, 5, v29")
    a(f"v_mul_u32_u24 v30, {U1_OFF}, v30")
    a(f"v_and_b32 v29, 31, v29")
    a(f"v_lshl_add_u32 v30, v29, 4, v30")
    a(f"v_add_u32 v30, {U_BASE}, v30")
    for i in range(4): a(f"v_mov_b32 v{48+i}, 0")
    a(f"ds_write_b128 v30, v[48:51]")
    a.label("L_a_p3done")
    st.stamp(a, "a_p3end")
    a("s_waitcnt lgkmcnt(0)")
    a("s_barrier")
    st.stamp(a, "a_p3done")
    UB=20; KB=21; COL=22; G=23; CP=24; AL=25
    a(f"v_and_b32 v{COL}, 15, v1")
    a(f"v_lshrrev_b32 v{G}, 4, v1")
    a(f"v_and_b32 v{CP}, 1, v{COL}")
    a(f"v_lshrrev_b32 v{AL}, 1, v{COL}")
    a(f"v_mul_u32_u24 v{UB}, {U1_OFF}, v{CP}")
    a(f"v_lshl_add_u32 v{UB}, v{AL}, 6, v{UB}")
    a(f"v_lshl_add_u32 v{UB}, v{G}, 4, v{UB}")
    a(f"s_lshl_b32 s{S_T0}, s{S_HALF}, 8")
    a(f"s_sub_u32 s{S_T1}, s{S_UB}, s{S_T0}")
    a(f"s_add_u32 s{S_T1}, s{S_T1}, 512")
    a(f"v_add_u32 v{UB}, s{S_T1}, v{UB}")
    a(f"v_mov_b32 v26, v{UB}")
    a(f"v_sub_u32 v{KB}, 1023, v{COL}")
    a(f"v_lshl_add_u32 v{KB}, v{G}, 2, v{KB}")
    a(f"v_lshlrev_b32 v{KB}, 2, v{KB}")
    a(f"v_sub_u32 v27, 1, v{CP}")
    a(f"v_mul_u32_u24 v27, {KC1-4}, v27")
    a(f"v_add_u32 v{KB}, v{KB}, v27")
    a(f"s_sub_u32 s{S_T1}, s{S_FT}, s{S_T0}")
    a(f"s_sub_u32 s{S_T1}, s{S_T1}, 3584")
    a(f"v_add_u32 v{KB}, s{S_T1}, v{KB}")
    ACC=128
    SETB=[160, 64]; SETA=[192, 96]
    def reads(setidx, lst):
        pass
    def rd_list(setidx):
        L = []
        for t in range(8):
            L.append(f"ds_read_b128 {v(SETB[setidx]+4*t,4)}, v{UB} offset:{512*t}")
        for q in range(8):
            L.append(f"ds_read_b64 {v(SETA[setidx]+4*q,2)}, v{KB} offset:{512*(7-q)}")
            L.append(f"ds_read_b64 {v(SETA[setidx]+4*q+2,2)}, v{KB} offset:{512*(7-q)+8}")
        order = [8, 9] + list(range(8)) + list(range(10, 24))
        return [L[i] for i in order]
    a(f"v_lshlrev_b32 v27, 4, v0")
    a(f"s_lshl_b32 s{S_T0}, s{S_IDX}, 15")
    a(f"v_add_u32 v27, s{S_T0}, v27")
    for x in rd_list(0): a(x)
    for j in range(4):
        a(f"global_load_dwordx4 v[224:227], v27, {s(S_WO,2)}")
        if j < 3: a(f"v_add_u32 v27, 8192, v27")
    a("v_mov_b32 v228, 0")
    a(f"global_load_dword v229, v228, {s(S_DBG,2)} sc1")
    for it in range(4):
        cur = it & 1
        nxt = []
        if it < 3:
            a(f"v_subrev_u32 v{UB}, 64, v{UB}")
            a(f"v_subrev_u32 v{KB}, 64, v{KB}")
            nxt = rd_list(cur ^ 1)
        a("s_waitcnt lgkmcnt(0)")
        k = 0
        mf = [(q, t) for q in range(8) for t in range(8 - q)]
        for idx, (q, t) in enumerate(mf):
            acc = v(ACC + 4*(t+q), 4)
            c = "0" if (it == 0 and q == 0) else acc
            a(f"v_mfma_f32_16x16x32_bf16 {acc}, {v(SETA[cur]+4*q,4)}, {v(SETB[cur]+4*t,4)}, {c}")
            if nxt and idx >= 2 and k < len(nxt):
                a(nxt[k]); k += 1
        while k < len(nxt):
            a(nxt[k]); k += 1
    st.stamp(a, "a_convdone")
    XA=27
    a(f"v_lshlrev_b32 v{XA}, 4, v1")
    a(f"v_add_u32 v{XA}, s{S_FT}, v{XA}")
    R=64
    RX=96
    a(f"s_cmp_eq_u32 s{S_HALF}, 0")
    a("s_cbranch_scc0 L_a_x1")
    for t in range(4):
        a(f"ds_write_b128 v{XA}, {v(ACC+16+4*t,4)} offset:{XCH + 1024*t}")
    a("s_branch L_a_x2")
    a.label("L_a_x1")
    for t in range(4):
        a(f"ds_write_b128 v{XA}, {v(ACC+4*t,4)} offset:{XCH + 4096 + 1024*t}")
    a.label("L_a_x2")
    UE=28
    a(f"v_lshlrev_b32 v{UE}, 6, v{AL}")
    a(f"v_lshl_add_u32 v{UE}, v{G}, 4, v{UE}")
    a(f"s_lshl_b32 s{S_T0}, s{S_HALF}, 11")
    a(f"s_add_u32 s{S_T1}, s{S_UB}, s{S_T0}")
    a(f"s_add_u32 s{S_T1}, s{S_T1}, {U1_OFF+512}")
    a(f"v_add_u32 v29, s{S_T1}, v{UE}")
    UU=112
    for t in range(4):
        a(f"ds_read_b128 {v(UU+4*t,4)}, v29 offset:{512*t}")
    a(f"v_lshl_add_u32 v{UE}, v{CP}, 3, v{UE}")
    a(f"s_lshl_b32 s{S_T1}, s{S_CHN}, 12")
    a(f"s_add_u32 s{S_T1}, s{S_T1}, s{S_T0}")
    a(f"v_add_u32 v{UE}, s{S_T1}, v{UE}")
    a(f"v_cmp_eq_u32_e64 s[98:99], 1, v{CP}")
    a(f"v_mov_b32 v30, 0x01000c0c"); a(f"v_mov_b32 v31, 0x03020c0c")
    a(f"v_cndmask_b32_e64 v30, v30, v31, s[98:99]")
    a(f"v_mov_b32 v31, 0x05040100"); a(f"v_mov_b32 v32, 0x01000504")
    a(f"v_cndmask_b32_e64 v31, v31, v32, s[98:99]")
    a(f"v_mov_b32 v32, 0x07060302"); a(f"v_mov_b32 v33, 0x03020706")
    a(f"v_cndmask_b32_e64 v32, v32, v33, s[98:99]")
    a("s_waitcnt lgkmcnt(0)")
    a("s_barrier")
    st.stamp(a, "a_xbar")
    a(f"s_cmp_eq_u32 s{S_HALF}, 0")
    a("s_cbranch_scc0 L_a_x3")
    for t in range(4):
        a(f"ds_read_b128 {v(RX+4*t,4)}, v{XA} offset:{XCH + 4096 + 1024*t}")
    a("s_waitcnt lgkmcnt(0)")
    for i in range(16):
        a(f"v_add_f32 v{R+i}, v{ACC+i}, v{RX+i}")
    a("s_branch L_a_x4")
    a.label("L_a_x3")
    for t in range(4):
        a(f"ds_read_b128 {v(RX+4*t,4)}, v{XA} offset:{XCH + 1024*t}")
    a("s_waitcnt lgkmcnt(0)")
    for i in range(16):
        a(f"v_add_f32 v{R+i}, v{ACC+16+i}, v{RX+i}")
    a.label("L_a_x4")
    for t in range(4):
        for i in range(4):
            a(f"v_perm_b32 v{UU+4*t+i}, v{UU+4*t+i}, v{UU+4*t+i}, v30")
        for i in range(4):
            a(f"v_fma_f32 v{R+4*t+i}, v{UU+4*t+i}, s{S_DSKV}, v{R+4*t+i}")
        P_, Q_, SN, KP, RV = 34, 35, 36, 37, 38
        a(f"v_cvt_pk_bf16_f32 v{P_}, v{R+4*t}, v{R+4*t+1}")
        a(f"v_cvt_pk_bf16_f32 v{Q_}, v{R+4*t+2}, v{R+4*t+3}")
        a(f"v_cndmask_b32_e64 v{SN}, v{Q_}, v{P_}, s[98:99]")
        a(f"v_cndmask_b32_e64 v{KP}, v{P_}, v{Q_}, s[98:99]")
        a(f"v_mov_b32_dpp v{RV}, v{SN} quad_perm:[1,0,3,2] row_mask:0xf bank_mask:0xf")
        o = 40 + 2*t
        a(f"v_perm_b32 v{o}, v{RV}, v{KP}, v31")
        a(f"v_perm_b32 v{o+1}, v{RV}, v{KP}, v32")
        a(f"global_store_dwordx2 v{UE}, {v(o,2)}, {s(S_WS,2)} offset:{512*t} sc1")
    st.stamp(a, "a_end")
    a("s_waitcnt vmcnt(0)")
    a.label("L_a_poll")
    a("v_readfirstlane_b32 s66, v229")
    a("s_cmp_eq_u32 s66, 1")
    a("s_cbranch_scc1 L_k1_fin")
    a(f"global_load_dword v229, v228, {s(S_DBG,2)} sc1")
    a("s_waitcnt vmcnt(0)")
    a("s_branch L_a_poll")

def diag_store(a, st, label_end):
    if not st.on: return
    a(f"s_lshl_b32 s94, s2, 3")
    a(f"s_add_u32 s94, s94, s{S_WAVE}")
    a(f"s_lshl_b32 s94, s94, 6")
    a(f"s_add_u32 s94, s94, {8<<20}")
    a("v_mov_b32 v250, s94")
    for i in range(14):
        a(f"v_mov_b32 v251, s{68+i}" if i else "v_mov_b32 v251, s68")
        a("s_mov_b64 exec, 1")
        a(f"global_store_dword v250, v251, {s(S_WS,2)} offset:{4*i}")
        a("s_mov_b64 exec, -1")

def descriptor(name, vgpr, sgpr=102):
    return f""".p2align 6
.amdhsa_kernel {name}
  .amdhsa_next_free_vgpr {vgpr}
  .amdhsa_next_free_sgpr {sgpr}
  .amdhsa_accum_offset {vgpr}
  .amdhsa_group_segment_fixed_size 0
  .amdhsa_kernarg_size 128
  .amdhsa_user_sgpr_count 2
  .amdhsa_user_sgpr_kernarg_segment_ptr 1
  .amdhsa_system_sgpr_workgroup_id_x 1
.end_amdhsa_kernel
"""

HEADER_LAYOUT = open("cdna_kernels/" + NAME + ".s.ref").read().split("; Override launch geometry")[0]

def build(diag=False):
    import gen_b
    k1 = f"{NAME}_kernel"
    st = Stamps(diag)
    a = Asm()
    k1_prologue(a, st)
    role_a(a, st)
    nA = st.n; st.n = 0
    a.label("L_roleB")
    gen_b.role_b(a, st)
    a("s_waitcnt vmcnt(0)")
    a.label("L_k1_fin")
    a("s_barrier")
    if diag:
        diag_store(a, st, None)
        a("s_waitcnt vmcnt(0)")
        a(f"s_memtime s[68:69]"); a("s_waitcnt lgkmcnt(0)")
        st.n = 0
    gen_b.phase2_fused(a, st)
    if diag:
        a(f"s_lshl_b32 s94, s2, 3")
        a(f"s_add_u32 s94, s94, s{S_WAVE}")
        a(f"s_lshl_b32 s94, s94, 6")
        a(f"s_add_u32 s94, s94, {9<<20}")
        a("v_mov_b32 v250, s94")
        for i in range(12):
            a(f"v_mov_b32 v251, s{68+i}")
            a("s_mov_b64 exec, 1")
            a(f"global_store_dword v250, v251, {s(S_WS,2)} offset:{4*i}")
            a("s_mov_b64 exec, -1")
    a.label("L_k1_end")
    a("s_endpgm")
    t1 = a.finalize()
    out = HEADER_LAYOUT
    out += f"; @launch grid=(256,1,1) block=(512,1,1) lds=163840\n"
    out += '.amdgcn_target "amdgcn-amd-amdhsa--gfx950"\n.text\n'
    out += f".globl {k1}\n.p2align 8\n.type {k1},@function\n{k1}:\n" + t1
    out += '.section .rodata,"a"\n' + descriptor(k1, 256)
    return out

if __name__ == "__main__":
    diag = "diag" in sys.argv
    outp = [x for x in sys.argv[1:] if x.endswith(".s")]
    txt = build(diag)
    open(outp[0] if outp else "k.s", "w").write(txt)
```

```python
from gen import *
import gen as G

K2_LDS = 163840
K2_VGPR = 256
KV16_BYTES = 32*1024
Z_OFF = KV16_BYTES
G_OFF = KV16_BYTES + 2048

def interleave(main, fill, per, start=0):
    out = []; k = 0
    for i, m in enumerate(main):
        out.append(m)
        if i >= start:
            n = per[i - start] if isinstance(per, (list, tuple)) and i - start < len(per) else (per if not isinstance(per, (list, tuple)) else 0)
            for _ in range(n):
                if k < len(fill): out.append(fill[k]); k += 1
    out += fill[k:]
    return out

def phi_list(src, n, dst, tmpbase, s_l2e, s_eps):
    L = []
    np_ = n // 2
    T = lambda p: tmpbase + 2*(p % 4)
    for g0 in range(0, np_, 4):
        ps = list(range(g0, min(np_, g0+4)))
        for p in ps:
            L.append(f"v_pk_mul_f32 {v(T(p),2)}, {v(src+2*p,2)}, {s(s_l2e,2)}")
        for p in ps:
            x = src + 2*p
            L.append(f"v_exp_f32_e64 v{T(p)}, v{T(p)} clamp")
            L.append(f"v_max_f32 v{x}, 0, v{x}")
            L.append(f"v_exp_f32_e64 v{T(p)+1}, v{T(p)+1} clamp")
            L.append(f"v_max_f32 v{x+1}, 0, v{x+1}")
        for p in ps:
            L.append(f"v_pk_add_f32 {v(src+2*p,2)}, {v(src+2*p,2)}, {s(s_eps,2)}")
        for p in ps:
            L.append(f"v_pk_add_f32 {v(src+2*p,2)}, {v(src+2*p,2)}, {v(T(p),2)}")
        for p in ps:
            x = src + 2*p
            L.append(f"v_cvt_pk_bf16_f32 v{dst+p}, v{x}, v{x+1}")
    return L

def role_b(a, st):
    S_RB=51; S_HG=52; S_RG=53; S_CG=54; S_T0=55; S_T1=64; S_T2=65
    SX=56; SW=60
    S_L2E=82; S_EPS=84; S_KVB=86; S_M=88; S_F=91; S_GI=95
    XA=[2,3,4,5]; WA=6; X0=8; X1=9; W=10; GP=11
    ACCK=16; ACCV=32; FR=[48,80]; ACCQ=112; XF=128; GW=112; GT=120
    a(f"s_and_b32 s{S_T0}, s{S_XCD}, 3")
    a(f"s_lshl_b32 s{S_RB}, s{S_T0}, 2")
    a(f"s_and_b32 s{S_T0}, s{S_IDX}, 3")
    a(f"s_add_u32 s{S_RB}, s{S_RB}, s{S_T0}")
    a(f"s_lshr_b32 s{S_T0}, s{S_XCD}, 2")
    a(f"s_lshl_b32 s{S_HG}, s{S_T0}, 2")
    a(f"s_lshr_b32 s{S_T0}, s{S_IDX}, 2")
    a(f"s_add_u32 s{S_HG}, s{S_HG}, s{S_T0}")
    a(f"s_and_b32 s{S_RG}, s{S_WAVE}, 3")
    a(f"s_lshr_b32 s{S_CG}, s{S_WAVE}, 2")
    fm = G.FMODE
    if fm == "zero":
        a(f"s_mov_b32 s{S_F}, 0")
    elif fm == "hg":
        a(f"s_mov_b32 s{S_F}, s{S_HG}")
    elif fm == "rb":
        a(f"s_and_b32 s{S_F}, s{S_IDX}, 3")
        a(f"s_lshl_b32 s{S_F}, s{S_F}, 1")
        a(f"s_and_b32 s{S_T0}, s{S_XCD}, 1")
        a(f"s_add_u32 s{S_F}, s{S_F}, s{S_T0}")
    elif fm == "latin":
        a(f"s_and_b32 s{S_F}, s{S_IDX}, 3")
        a(f"s_lshr_b32 s{S_T0}, s{S_IDX}, 2")
        a(f"s_add_u32 s{S_F}, s{S_F}, s{S_T0}")
        a(f"s_lshl_b32 s{S_F}, s{S_F}, 1")
        a(f"s_lshr_b32 s{S_T0}, s{S_XCD}, 2")
        a(f"s_add_u32 s{S_F}, s{S_F}, s{S_T0}")
        a(f"s_and_b32 s{S_F}, s{S_F}, 7")
    a(f"s_sub_u32 s{S_GI}, s{S_HG}, s{S_F}")
    a(f"s_and_b32 s{S_GI}, s{S_GI}, 7")
    a(f"v_lshrrev_b32 v12, 3, v1")
    a(f"v_and_b32 v13, 7, v1")
    a(f"v_lshrrev_b32 v14, 1, v12")
    a(f"v_xor_b32 v14, v14, v13")
    a(f"s_lshl_b32 s{S_T0}, s{S_RB}, 7")
    a(f"s_lshl_b32 s{S_T1}, s{S_WAVE}, 4")
    a(f"s_add_u32 s{S_T0}, s{S_T0}, s{S_T1}")
    a(f"v_add_u32 v15, s{S_T0}, v12")
    a(f"v_lshlrev_b32 v15, 10, v15")
    a(f"v_lshl_add_u32 v{X0}, v14, 4, v15")
    a(f"v_xor_b32 v14, 4, v14")
    a(f"v_lshl_add_u32 v{X1}, v14, 4, v15")
    a(f"v_add_u32 v{X1}, 8192, v{X1}")
    a(f"v_bfe_u32 v14, v1, 4, 1")
    a(f"v_lshlrev_b32 v14, 2, v14")
    a(f"v_xor_b32 v14, v14, v13")
    a(f"s_lshl_b32 s{S_T0}, s{S_WAVE}, 3")
    a(f"v_add_u32 v15, s{S_T0}, v12")
    a(f"v_mul_u32_u24 v15, 3072, v15")
    a(f"v_lshl_add_u32 v{W}, v14, 4, v15")
    a(f"s_lshl_b32 s{S_T0}, s{S_HG}, 7")
    a(f"v_add_u32 v{W}, s{S_T0}, v{W}")
    a(f"v_and_b32 v15, 3, v0")
    a(f"v_lshlrev_b32 v15, 5, v15")
    a(f"s_lshl_b32 s{S_T0}, s{S_HG}, 7")
    a(f"v_add_u32 v15, s{S_T0}, v15")
    a(f"s_lshl_b32 s{S_M}, s{S_WAVE}, 10")
    a(f"s_lshl_b32 s{S_M+1}, s{S_WAVE}, 11")
    a("s_waitcnt lgkmcnt(0)")
    a(f"s_mov_b32 s{SX}, s{S_U}"); a(f"s_mov_b32 s{SX+1}, s{S_U+1}"); a(f"s_mov_b32 s{SX+2}, {2048*1024}"); a(f"s_mov_b32 s{SX+3}, 0x20000")
    a(f"s_mov_b32 s{SW}, s{S_WQKV}"); a(f"s_mov_b32 s{SW+1}, s{S_WQKV+1}"); a(f"s_mov_b32 s{SW+2}, {512*3072}"); a(f"s_mov_b32 s{SW+3}, 0x20000")
    def chunk_off(i):
        return [f"s_add_u32 s{S_T0}, s{S_F}, {i}", f"s_and_b32 s{S_T0}, s{S_T0}, 7",
                f"s_lshl_b32 s66, s{S_T0}, 7", f"s_mul_i32 s67, s{S_T0}, 196608"]
    def dma(m0s, m0imm, voff, srd, soff):
        return [f"s_add_u32 m0, s{m0s}, {m0imm}", f"buffer_load_dwordx4 v{voff}, {s(srd,4)}, s{soff} offen lds"]
    def chunk_groups(n):
        slot = (n & 3) * 32768
        if n < 8:
            return [chunk_off(n) + dma(S_M+1, slot, X0, SX, 66),
                    dma(S_M+1, slot + 1024, X1, SX, 66),
                    [f"s_add_u32 s{S_T1}, s67, 1024"] + dma(S_M, slot + 16384, W, SW, S_T1),
                    [f"s_add_u32 s{S_T1}, s67, 2048"] + dma(S_M, slot + 24576, W, SW, S_T1)]
        else:
            return [chunk_off(4*(n-8)+k) + dma(S_M, slot + 8192*k, W, SW, 67) for k in range(4)]
    def emit(L):
        for x in L: a(x)
    a(f"global_load_dwordx4 {v(GW,4)}, v15, {s(S_GW,2)}")
    a(f"global_load_dwordx4 {v(GW+4,4)}, v15, {s(S_GW,2)} offset:16")
    for g in chunk_groups(0): emit(g)
    a("s_barrier")
    for g in chunk_groups(1): emit(g)
    if G.DEEP:
        a("s_barrier")
        for g in chunk_groups(2): emit(g)
    st.stamp(a, "b_issued")
    a(f"v_and_b32 v12, 31, v1")
    a(f"s_lshl_b32 s{S_T0}, s{S_RG}, 5")
    a(f"v_add_u32 v12, s{S_T0}, v12")
    a(f"v_lshrrev_b32 v13, 5, v1")
    a(f"v_bfe_u32 v14, v12, 1, 3")
    a(f"v_xor_b32 v14, v14, v13")
    a(f"v_lshlrev_b32 v14, 4, v14")
    a(f"v_lshl_add_u32 v{XA[0]}, v12, 7, v14")
    for ks in range(1,4):
        a(f"v_xor_b32 v{XA[ks]}, {32*ks}, v{XA[0]}")
    a(f"v_and_b32 v12, 15, v1")
    a(f"v_lshrrev_b32 v14, 2, v12")
    a(f"v_lshl_add_u32 v15, v13, 3, v14")
    a(f"v_lshlrev_b32 v15, 7, v15")
    a(f"v_bfe_u32 v7, v1, 4, 1")
    a(f"v_lshlrev_b32 v7, 1, v7")
    a(f"s_lshl_b32 s{S_T0}, s{S_CG}, 2")
    a(f"v_add_u32 v7, s{S_T0}, v7")
    a(f"v_bfe_u32 v13, v12, 1, 1")
    a(f"v_add_u32 v7, v7, v13")
    a(f"v_bfe_u32 v13, v14, 1, 1")
    a(f"v_lshlrev_b32 v13, 2, v13")
    a(f"v_xor_b32 v7, v7, v13")
    a(f"v_lshl_add_u32 v15, v7, 4, v15")
    a(f"v_and_b32 v13, 1, v12")
    a(f"v_lshl_add_u32 v{WA}, v13, 3, v15")
    a(f"s_mov_b32 s{S_L2E}, {LOG2E}"); a(f"s_mov_b32 s{S_L2E+1}, {LOG2E}")
    a(f"s_mov_b32 s{S_EPS}, 0x358637bd"); a(f"s_mov_b32 s{S_EPS+1}, 0x358637bd")
    a(f"s_add_u32 s{S_KVB}, s{S_WS}, {WS_KV}"); a(f"s_addc_u32 s{S_KVB+1}, s{S_WS+1}, 0")
    a(f"v_lshrrev_b32 v12, 2, v0")
    a(f"v_and_b32 v13, 3, v0")
    a(f"v_lshlrev_b32 v13, 1, v13")
    a(f"v_bfe_u32 v14, v12, 1, 3")
    a(f"v_xor_b32 v13, v13, v14")
    a(f"v_lshlrev_b32 v13, 4, v13")
    a(f"v_lshl_add_u32 v12, v12, 7, v13")
    a(f"v_xor_b32 v13, 16, v12")
    def frag_reads(i):
        slot = (i & 1) * 32768; fr = FR[i & 1]; L = []
        for ks in range(4):
            L.append(f"ds_read_b128 {v(XF + 16*i + 4*ks, 4)}, v{XA[ks]} offset:{slot}")
            for T, toff in ((0, 16384), (1, 24576)):
                for rdx in range(2):
                    L.append(f"ds_read_b64_tr_b16 {v(fr + 8*ks + 4*T + 2*rdx, 2)}, v{WA} offset:{slot + toff + 2048*ks + 512*rdx}")
        return L
    def toggle():
        return [f"v_xor_b32 v{r}, 0x10000, v{r}" for r in XA + [WA]]
    def q_reads(n0, n1):
        L = []
        for n in range(n0, n1):
            off = (n // 16) * 32768 + ((n % 16) // 4) * 8192 + (n % 4) * 2048
            for rdx in range(2):
                L.append(f"ds_read_b64_tr_b16 {v(48 + 4*(n % 8) + 2*rdx, 2)}, v{WA} offset:{off + 512*rdx}")
        return L
    a(f"s_waitcnt vmcnt({8 if G.DEEP else 4})")
    a("s_barrier")
    st.stamp(a, "b_first")
    def gate_reads(c):
        lab = f"L_b_gr{c}"
        a(f"s_cmp_eq_u32 s{S_GI}, {c}")
        a(f"s_cbranch_scc0 {lab}")
        off = (c & 3) * 32768
        if off >= 65536:
            a(f"v_add_u32 v12, 65536, v12"); a(f"v_add_u32 v13, 65536, v13"); off -= 65536
        a(f"ds_read_b128 {v(GT,4)}, v12 offset:{off}")
        a(f"ds_read_b128 {v(GT+4,4)}, v13 offset:{off}")
        a.label(lab)
    def gate_dot(c):
        lab = f"L_b_gd{c}"
        a(f"s_cmp_eq_u32 s{S_GI}, {c}")
        a(f"s_cbranch_scc0 {lab}")
        a(f"v_mov_b32 v{GP}, 0")
        for k2 in range(8): a(f"v_dot2_f32_bf16 v{GP}, v{GT+k2}, v{GW+k2}, v{GP}")
        a.label(lab)
    emit(frag_reads(0))
    gate_reads(0)
    if G.DEEP:
        for g in chunk_groups(3): emit(g)
        sched = {0: [4], 1: [5], 2: [6], 3: [7], 4: [8], 5: [9]}
        vmw = [8, 8, 8, 8, 8, 8, 8, 4]
    else:
        sched = {0: [2, 3], 1: [4], 2: [5, 6], 3: [7], 4: [8], 5: [9]}
        vmw = [0, 4, 4, 8, 8, 8, 8, 5]
    for i in range(8):
        fr = FR[i & 1]
        mm = []
        for ks in range(4):
            x = v(XF + 16*i + 4*ks, 4)
            cK = "0" if (i == 0 and ks == 0) else v(ACCK,16)
            cV = "0" if (i == 0 and ks == 0) else v(ACCV,16)
            mm.append(f"v_mfma_f32_32x32x16_bf16 {v(ACCK,16)}, {x}, {v(fr+8*ks,4)}, {cK}")
            mm.append(f"v_mfma_f32_32x32x16_bf16 {v(ACCV,16)}, {x}, {v(fr+8*ks+4,4)}, {cV}")
        npre = (G.NPRE if G.DEEP else 8) if i == 0 else G.NPRE
        a("s_waitcnt lgkmcnt(0)")
        emit(mm[:npre])
        gate_dot(i)
        pre = []
        if (i + 1) in (2, 4, 6, 8): pre += toggle()
        emit(pre)
        a(f"s_waitcnt vmcnt({vmw[i]})")
        a("s_barrier")
        if G.ITERSTAMP: st.stamp(a, f"it{i}")
        if i + 1 <= 7: gate_reads(i + 1)
        rd = frag_reads(i+1) if i + 1 <= 7 else q_reads(0, 6)
        groups = []
        for n in sched.get(i, []): groups += chunk_groups(n)
        rest = mm[npre:]
        seq = []
        if rest:
            nm = len(rest)
            k = 0; gi = 0
            for m in range(nm):
                seq.append(rest[m])
                take = (len(rd) - k + (nm - m) - 1) // (nm - m) if m < nm - 1 else len(rd) - k
                take = min(take, 3) if m < nm - 1 else take
                seq += rd[k:k+take]; k += take
                if m % 2 == 1 or m == nm - 1:
                    left = len(groups) - gi
                    slots_left = max(1, (nm - m + 1) // 2)
                    ng = left if m == nm - 1 else (left + slots_left - 1) // slots_left
                    for _ in range(ng):
                        seq += groups[gi]; gi += 1
        else:
            seq += rd
            for g_ in groups: seq += g_
        emit(seq)
    st.stamp(a, "b_pass1")
    if G.ITERSTAMP: st.on = False
    PK=80; VV=88; ONE=96; TMP=100
    PF = 6
    KVL = 65536
    D1=ACCK; D2=ACCV
    def qm(n):
        c = "0" if n == 0 else v(ACCQ,16)
        return f"v_mfma_f32_32x32x16_bf16 {v(ACCQ,16)}, {v(48+4*(n%8),4)}, {v(XF+4*n,4)}, {c}"
    fill = [f"v_add_f32_dpp v{GP}, v{GP}, v{GP} quad_perm:[1,0,3,2] row_mask:0xf bank_mask:0xf"]
    fill += [f"v_mov_b32 v{ONE+k}, 0x3f803f80" for k in range(4)]
    fill += phi_list(ACCK, 16, PK, TMP, S_L2E, S_EPS)
    fill += [f"v_add_f32_dpp v{GP}, v{GP}, v{GP} quad_perm:[2,3,0,1] row_mask:0xf bank_mask:0xf"]
    fill += [f"v_cvt_pk_bf16_f32 v{VV+p}, v{ACCV+2*p}, v{ACCV+2*p+1}" for p in range(8)]
    kvm = []
    for sg in range(2):
        c = "0" if sg == 0 else v(D1,16)
        kvm.append(f"v_mfma_f32_32x32x16_bf16 {v(D1,16)}, {v(PK+4*sg,4)}, {v(VV+4*sg,4)}, {c}")
    for sg in range(2):
        c = "0" if sg == 0 else v(D2,16)
        kvm.append(f"v_mfma_f32_32x32x16_bf16 {v(D2,16)}, {v(PK+4*sg,4)}, {v(ONE,4)}, {c}")
    fill += kvm
    fill += [
      f"v_and_b32 v12, 15, v1", f"v_bfe_u32 v13, v1, 4, 1", f"v_lshrrev_b32 v7, 5, v1",
      f"v_mul_u32_u24 v12, 68, v12", f"v_mul_u32_u24 v8, 1156, v13", f"v_add_u32 v12, v12, v8",
      f"v_lshl_add_u32 v12, v7, 5, v12",
      f"s_mul_i32 s{S_T0}, s{S_RG}, 4624", f"s_mul_i32 s{S_T1}, s{S_CG}, 2312", f"s_add_u32 s{S_T0}, s{S_T0}, s{S_T1}",
      f"s_add_u32 s{S_T0}, s{S_T0}, {KVL}", f"v_add_u32 v12, s{S_T0}, v12",
      f"v_cmp_eq_u32_e64 s[98:99], 1, v13",
      f"s_lshr_b32 s64, s{S_WAVE}, 1", f"s_and_b32 s65, s{S_WAVE}, 1",
      f"v_lshrrev_b32 v2, 4, v1", f"v_and_b32 v3, 15, v1", f"s_lshl_b32 s{S_T0}, s65, 3", f"v_add_u32 v2, s{S_T0}, v2",
      f"v_mul_u32_u24 v8, 68, v2", f"v_lshl_add_u32 v8, v3, 2, v8", f"s_mul_i32 s{S_T0}, s64, 1156",
      f"s_add_u32 s{S_T0}, s{S_T0}, {KVL}", f"v_add_u32 v8, s{S_T0}, v8",
      f"s_lshl_b32 s{S_T0}, s{S_HG}, 2", f"s_add_u32 s{S_T0}, s{S_T0}, s64", f"s_lshl_b32 s{S_T1}, s{S_T0}, 10",
      f"v_lshlrev_b32 v9, 6, v2", f"v_lshl_add_u32 v9, v3, 2, v9", f"v_add_u32 v9, s{S_T1}, v9",
      f"s_lshl_b32 s{S_T1}, s{S_T0}, 6", f"s_add_u32 s{S_T1}, s{S_T1}, {Z_OFF}", f"v_lshlrev_b32 v10, 2, v3", f"v_add_u32 v10, s{S_T1}, v10",
      f"v_lshrrev_b32 v7, 2, v0", f"s_lshl_b32 s{S_T0}, s{S_RB}, 7", f"v_add_u32 v7, s{S_T0}, v7", f"v_lshlrev_b32 v7, 2, v7",
      f"v_add_u32 v7, {G_OFF}, v7"]
    fill += [f"v_cndmask_b32_e64 v{100+j}, v{D1+j}, v{D1+8+j}, s[98:99]" for j in range(8)]
    fill += [f"v_cndmask_b32_e64 v{80+j}, v{D2+j}, v{D2+8+j}, s[98:99]" for j in range(8)]
    nper = (len(fill) + 30) // 31
    k = 0
    for n in range(32):
        issued = min(32, n + PF)
        if n == 10:
            a("s_waitcnt vmcnt(0)")
            a("s_barrier")
            a("v_and_b32 v5, 15, v1"); a("v_lshlrev_b32 v5, 8, v5"); a(f"v_add_u32 v5, {WS_KV + WOC_OFF}, v5")
            a(f"s_cmp_eq_u32 s{S_WAVE}, 0")
            a("s_cbranch_scc0 L_b_nodbg")
            a(f"global_load_dword v15, v5, {s(S_WS,2)} sc1")
            a("v_and_b32 v5, 7, v1"); a("v_lshlrev_b32 v5, 2, v5")
            a(f"global_load_dword v14, v5, {s(S_DBG,2)} sc1")
            a.label("L_b_nodbg")
            a(f"s_lshr_b32 s66, s2, 3"); a("s_and_b32 s66, s66, 3"); a("s_lshl_b32 s66, s66, 2")
            a(f"s_add_u32 s66, s66, s{S_RG}")
            a(f"s_lshl_b32 s67, s{S_CG}, 8"); a("s_add_u32 s66, s66, s67")
            a("s_lshl_b32 s66, s66, 10"); a(f"s_add_u32 s66, s66, {WS_WF}")
            a("v_lshlrev_b32 v4, 4, v1"); a("v_add_u32 v4, s66, v4")
        if n == 15:
            a(f"s_cmp_eq_u32 s{S_WAVE}, 0")
            a("s_cbranch_scc0 L_b_wfok")
            a("s_waitcnt vmcnt(0)")
            a.label("L_b_wfpoll")
            sum16(a, 15, 66)
            sum8(a, 14, 67)
            a("s_add_u32 s66, s66, s67")
            a("s_cmp_eq_u32 s66, 136")
            a("s_cbranch_scc1 L_b_wfok")
            a("s_sleep 8")
            a("v_and_b32 v5, 15, v1"); a("v_lshlrev_b32 v5, 8, v5"); a(f"v_add_u32 v5, {WS_KV + WOC_OFF}, v5")
            a(f"global_load_dword v15, v5, {s(S_WS,2)} sc1")
            a("v_and_b32 v5, 7, v1"); a("v_lshlrev_b32 v5, 2, v5")
            a(f"global_load_dword v14, v5, {s(S_DBG,2)} sc1")
            a("s_waitcnt vmcnt(0)")
            a("s_branch L_b_wfpoll")
            a.label("L_b_wfok")
            a("s_barrier")
        if n >= 16:
            hl = n - 16
            a(f"global_load_dwordx4 {v(128+4*hl,4)}, v4, {s(S_WS,2)}{G.HL}")
            if hl < 15: a("v_add_u32 v4, 16384, v4")
        a(f"s_waitcnt lgkmcnt({2*(issued - n - 1)})")
        a(qm(n))
        if n + PF < 32: emit(q_reads(n + PF, n + PF + 1))
        if n >= 1:
            emit(fill[k:k+nper]); k += nper
    emit(fill[k:])
    st.stamp(a, "b_pass2")
    for j in range(0, 8, 2):
        a(f"ds_write2_b32 v12, v{100+j}, v{101+j} offset0:{j} offset1:{j+1}")
    a(f"v_add_u32 v12, {16*68}, v12")
    a("s_mov_b32 s66, 0x00010001"); a("s_mov_b32 s67, 0x00010001")
    a("s_mov_b64 exec, s[66:67]")
    for j in range(0, 8, 2):
        a(f"ds_write2_b32 v12, v{80+j}, v{81+j} offset0:{j} offset1:{j+1}")
    a("s_mov_b64 exec, -1")
    emit([f"s_lshl_b32 s{S_T0}, s{S_RB}, 2", f"s_add_u32 s{S_T0}, s{S_T0}, s{S_RG}", f"s_lshl_b32 s{S_T0}, s{S_T0}, 5",
          f"s_lshl_b32 s{S_T1}, s{S_HG}, 2", f"s_add_u32 s{S_T0}, s{S_T0}, s{S_T1}", f"s_lshl_b32 s{S_T1}, s{S_CG}, 1",
          f"s_add_u32 s{S_T0}, s{S_T0}, s{S_T1}", f"s_lshl_b32 s{S_T0}, s{S_T0}, 10", f"s_add_u32 s{S_T0}, s{S_T0}, {WS_PQ}",
          f"v_lshlrev_b32 v12, 4, v1", f"v_add_u32 v12, s{S_T0}, v12"])
    emit(phi_list(ACCQ, 8, 40, 32, S_L2E, S_EPS))
    a(f"global_store_dwordx4 v12, v[40:43], {s(S_WS,2)} sc1")
    a("s_waitcnt lgkmcnt(0)")
    a("s_barrier")
    st.stamp(a, "b_kvbar")
    for n in range(3):
        for rg in range(4):
            a(f"ds_read_b32 v{80+4*n+rg}, v8 offset:{rg*4624 + n*4*68}")
    a("s_waitcnt lgkmcnt(0)")
    for n in range(3):
        a(f"v_add_f32 v{80+4*n}, v{80+4*n}, v{81+4*n}")
        a(f"v_add_f32 v{82+4*n}, v{82+4*n}, v{83+4*n}")
    for n in range(3):
        a(f"v_add_f32 v{80+4*n}, v{80+4*n}, v{82+4*n}")
    a(f"global_atomic_add_f32 v9, v80, {s(S_KVB,2)} sc1")
    a(f"global_atomic_add_f32 v9, v84, {s(S_KVB,2)} offset:256 sc1")
    a("s_mov_b32 s66, 0x11111111"); a("s_mov_b32 s67, 0x11111111"); a("s_mov_b64 exec, s[66:67]")
    a(f"global_atomic_add_f32 v7, v{GP}, {s(S_KVB,2)} sc1")
    a("s_mov_b64 exec, -1")
    a(f"s_cmp_eq_u32 s65, 1")
    a("s_cbranch_scc0 L_b_noz")
    a("s_mov_b64 exec, 0xffff")
    a(f"global_atomic_add_f32 v10, v88, {s(S_KVB,2)} sc1")
    a("s_mov_b64 exec, -1")
    a.label("L_b_noz")
    emit(phi_list(ACCQ+8, 8, 44, 32, S_L2E, S_EPS))
    a(f"global_store_dwordx4 v12, v[44:47], {s(S_WS,2)} offset:1024 sc1")
    st.stamp(a, "b_end")
    if G.ITERSTAMP: st.on = True


CNT_OFF = 34816 + 8192
NSHARD = 16

def phase2_fused(a, st):
    S_W=S_WAVE; S_SB=51; S_CB=52; S_T0=53; S_T1=54; S_CW=55; S_KH=56; SRD=60; S_M0=57; S_SO=58; SKV=64; S_CN=86
    def emit(L):
        for x in L: a(x)
    ws = s(S_WS,2)
    a(f"s_add_u32 s{S_CN}, s{S_WS}, {WS_KV + CNT_OFF}")
    a(f"s_addc_u32 s{S_CN+1}, s{S_WS+1}, 0")
    a(f"s_cmp_lg_u32 s{S_W}, 0")
    a("s_cbranch_scc1 L_p2_noarr")
    a(f"s_lshr_b32 s{S_T0}, s2, 3")
    a(f"s_and_b32 s{S_T0}, s{S_T0}, 7")
    a(f"s_lshl_b32 s{S_T0}, s{S_T0}, 8")
    a(f"v_and_b32 v2, 7, v0")
    a(f"v_lshlrev_b32 v2, 11, v2")
    a(f"v_add_u32 v2, s{S_T0}, v2")
    a("v_mov_b32 v3, 1")
    a("s_mov_b64 exec, 0xff")
    a(f"global_atomic_add v2, v3, {s(S_CN,2)} sc1")
    a("s_mov_b64 exec, -1")
    a.label("L_p2_noarr")
    st.stamp(a, "p2_arr")
    if st.on:
        a("s_memrealtime s[96:97]"); a("s_waitcnt lgkmcnt(0)"); a("s_mov_b32 s82, s96")
    a(f"s_and_b32 s{S_T0}, s2, 7")
    a(f"s_lshr_b32 s{S_T1}, s2, 3")
    a(f"s_and_b32 s{S_CB}, s{S_T1}, 3")
    a(f"s_lshr_b32 s{S_T1}, s{S_T1}, 2")
    a(f"s_lshl_b32 s{S_SB}, s{S_T0}, 3")
    a(f"s_add_u32 s{S_SB}, s{S_SB}, s{S_T1}")
    a(f"s_and_b32 s{S_CW}, s{S_W}, 3")
    a(f"s_lshr_b32 s{S_KH}, s{S_W}, 2")
    M=2; HH=3
    a(f"v_and_b32 v1, 63, v0")
    a(f"v_and_b32 v{M}, 31, v1")
    a(f"v_lshrrev_b32 v{HH}, 5, v1")
    a(f"v_lshlrev_b32 v4, 4, v1")
    a(f"s_lshl_b32 s{S_T0}, s{S_SB}, 5")
    a(f"s_lshl_b32 s{S_T1}, s{S_W}, 2")
    a(f"s_add_u32 s{S_T0}, s{S_T0}, s{S_T1}")
    a(f"s_lshl_b32 s{S_T0}, s{S_T0}, 10")
    a(f"s_add_u32 s{S_T0}, s{S_T0}, {WS_PQ}")
    a(f"v_add_u32 v5, s{S_T0}, v4")
    a(f"s_lshl_b32 s{S_T0}, s{S_SB}, 7")
    a(f"s_add_u32 s{S_T0}, s{S_T0}, {WS_KV + G_OFF}")
    a(f"v_lshlrev_b32 v8, 2, v{M}")
    a(f"v_add_u32 v8, s{S_T0}, v8")
    a(f"s_lshl_b32 s{S_T0}, s{S_CB}, 7")
    a(f"s_lshl_b32 s{S_T1}, s{S_CW}, 5")
    a(f"s_add_u32 s{S_T0}, s{S_T0}, s{S_T1}")
    a(f"v_add_u32 v9, s{S_T0}, v{M}")
    a(f"v_lshlrev_b32 v9, 12, v9")
    a(f"v_lshl_add_u32 v9, v{HH}, 4, v9")
    a(f"s_lshl_b32 s{S_T0}, s{S_SB}, 6")
    a(f"v_add_u32 v9, s{S_T0}, v9")
    OF=65536; ZS=32768; XCHG=98304
    OFA=12; OWN=11
    a(f"s_lshl_b32 s{S_T0}, s{S_KH}, 14")
    a(f"s_add_u32 s{S_T0}, s{S_T0}, {OF}")
    a(f"v_add_u32 v{OFA}, s{S_T0}, v4")
    a(f"s_lshl_b32 s{S_T0}, s{S_W}, 12")
    a(f"s_add_u32 s{S_T1}, s{S_T0}, {OF}")
    a(f"v_add_u32 v{OWN}, s{S_T1}, v4")
    KVA=[16,17,18,19]
    a(f"v_lshlrev_b32 v24, 6, v{M}")
    a(f"v_lshl_add_u32 v24, v{HH}, 5, v24")
    a(f"v_add_u32 v24, s{S_T0}, v24")
    a(f"s_lshl_b32 s{S_T1}, s{S_W}, 8")
    a(f"s_add_u32 s{S_T1}, s{S_T1}, {ZS}")
    a(f"v_lshlrev_b32 v25, 5, v{HH}")
    a(f"v_add_u32 v25, s{S_T1}, v25")
    a(f"v_cmp_gt_u32_e64 s[98:99], 16, v{M}")
    a(f"v_cndmask_b32_e64 v{KVA[0]}, v25, v24, s[98:99]")
    a(f"v_mov_b32 v26, 64"); a(f"v_mov_b32 v27, 1024")
    a(f"v_cndmask_b32_e64 v26, v26, v27, s[98:99]")
    for n in range(1, 4):
        a(f"v_add_u32 v{KVA[n]}, v{KVA[n-1]}, v26")
    a(f"v_and_b32 v192, 7, v{M}")
    a(f"v_and_b32 v193, 1, v192")
    a(f"v_lshlrev_b32 v193, 4, v193")
    a(f"v_mov_b32 v194, 0x3f80")
    a(f"v_lshlrev_b32 v194, v193, v194")
    a(f"v_lshrrev_b32 v192, 1, v192")
    a(f"v_bfe_u32 v193, v{M}, 3, 1")
    a(f"v_cmp_eq_u32_e64 s[98:99], v193, v{HH}")
    a(f"v_cndmask_b32_e64 v194, 0, v194, s[98:99]")
    a(f"v_lshrrev_b32 v193, 4, v{M}")
    a(f"v_lshl_add_u32 v192, v193, 2, v192")
    for k in range(8):
        a(f"v_cmp_eq_u32_e64 s[98:99], {k}, v192")
        a(f"v_cndmask_b32_e64 v{24+k}, 0, v194, s[98:99]")
    a(f"s_add_u32 s{SKV}, s{S_WS}, {WS_KV}"); a(f"s_addc_u32 s{SKV+1}, s{S_WS+1}, 0"); a(f"s_mov_b32 s{SKV+2}, {KV16_BYTES + 2048}"); a(f"s_mov_b32 s{SKV+3}, 0x20000")
    a(f"s_lshl_b32 s{S_T0}, s{S_SB}, 5")
    a(f"v_add_u32 v6, s{S_T0}, v{M}")
    a(f"v_lshlrev_b32 v6, 10, v6")
    a(f"v_lshl_add_u32 v6, v{HH}, 4, v6")
    a(f"s_lshl_b32 s{S_T0}, s{S_CB}, 8")
    a(f"s_lshl_b32 s{S_T1}, s{S_CW}, 6")
    a(f"s_add_u32 s{S_T0}, s{S_T0}, s{S_T1}")
    a(f"s_lshl_b32 s{S_T1}, s{S_KH}, 5")
    a(f"s_add_u32 s{S_T0}, s{S_T0}, s{S_T1}")
    a(f"v_add_u32 v6, s{S_T0}, v6")
    FW=128
    a(f"s_cmp_lg_u32 s{S_W}, 0")
    a("s_cbranch_scc1 L_p2_wait")
    a(f"v_and_b32 v7, 7, v1")
    a(f"v_lshlrev_b32 v7, 8, v7")
    a(f"s_and_b32 s92, s2, 7"); a("s_lshl_b32 s92, s92, 11")
    a(f"v_add_u32 v7, s92, v7")
    a("s_mov_b32 s92, 0")
    a("s_mov_b64 exec, 0xff")
    a.label("L_p2_poll")
    a(f"global_load_dword v13, v7, {s(S_CN,2)} sc1")
    a("s_waitcnt vmcnt(0)")
    a(f"v_add_u32_dpp v13, v13, v13 row_shr:1 row_mask:0xf bank_mask:0xf bound_ctrl:0")
    a(f"v_add_u32_dpp v13, v13, v13 row_shr:2 row_mask:0xf bank_mask:0xf bound_ctrl:0")
    a(f"v_add_u32_dpp v13, v13, v13 row_shr:4 row_mask:0xf bank_mask:0xf bound_ctrl:0")
    a(f"v_readlane_b32 s93, v13, 7")
    a("s_add_u32 s92, s92, 1")
    a("s_cmp_eq_u32 s93, 256")
    a("s_cbranch_scc1 L_p2_got")
    a(f"s_sleep {G.PSLEEP}")
    a("s_cmp_lt_u32 s92, 0x100000")
    a("s_cbranch_scc1 L_p2_poll")
    a.label("L_p2_got")
    a("s_mov_b64 exec, -1")
    a.label("L_p2_wait")
    a("s_waitcnt lgkmcnt(0)")
    a("s_barrier")
    st.stamp(a, "p2_go")
    if st.on:
        a("s_memrealtime s[96:97]"); a("s_waitcnt lgkmcnt(0)"); a("s_mov_b32 s83, s96")
    PQ=32; KVF=64; G_=13; AT=48
    a(f"s_lshl_b32 s{S_M0}, s{S_W}, 12")
    for n in range(4):
        a(f"s_add_u32 m0, s{S_M0}, {1024*n}")
        a(f"s_add_u32 s{S_T0}, s{S_M0}, {1024*n}")
        a(f"buffer_load_dwordx4 v4, {s(SKV,4)}, s{S_T0} offen{G.HL} lds")
    a(f"s_lshl_b32 s{S_T1}, s{S_W}, 8")
    a(f"s_add_u32 m0, s{S_T1}, {ZS}")
    a(f"s_add_u32 s{S_T0}, s{S_T1}, {Z_OFF}")
    a("s_mov_b64 exec, 0xffff")
    a(f"buffer_load_dwordx4 v4, {s(SKV,4)}, s{S_T0} offen{G.HL} lds")
    a("s_mov_b64 exec, -1")
    for n in range(4):
        a(f"global_load_dwordx4 {v(PQ+4*n,4)}, v5, {ws} offset:{n*1024}{G.HL}")
    a("s_waitcnt vmcnt(4)")
    for n in range(4):
        a(f"ds_read_b128 {v(KVF+8*n,4)}, v{KVA[n]}")
        a(f"ds_read_b128 {v(KVF+8*n+4,4)}, v{KVA[n]} offset:16")
    a("s_waitcnt vmcnt(0) lgkmcnt(0)")
    st.stamp(a, "p2_in")
    a(f"global_load_dword v{G_}, v8, {ws}{G.HL}")
    a(f"s_cmp_eq_u32 s{S_KH}, 0")
    a("s_mov_b32 s93, 0xffff0000")
    a("s_cselect_b32 s92, 0x0000ffff, s93")
    a("s_mov_b32 s93, s92")
    a("s_mov_b64 exec, s[92:93]")
    a(f"global_load_dwordx4 {v(AT,4)}, v9, {ws}{G.HL}")
    a(f"global_load_dwordx4 {v(AT+4,4)}, v9, {ws} offset:32{G.HL}")
    a("s_mov_b64 exec, -1")
    D=192; AF=224; OO=232
    a("s_mov_b32 s92, 0x358637bd")
    def kvcvt(n):
        for k in range(4):
            a(f"v_cvt_pk_bf16_f32 v{AF+4*(n%2)+k}, v{KVF+8*n+2*k}, v{KVF+8*n+2*k+1}")
    def omfma(n):
        a(f"v_mfma_f32_32x32x16_bf16 {v(D+16*(n%2),16)}, {v(AF+4*(n%2),4)}, {v(PQ+4*n,4)}, 0")
    def onorm(n):
        d = D + 16*(n%2); o = OO + 4*(n%2)
        a(f"v_add_f32 v{d+8}, s92, v{d+8}")
        a(f"v_rcp_f32 v{d+8}, v{d+8}")
        for k in range(0, 8, 2):
            a(f"v_pk_mul_f32 {v(d+k,2)}, {v(d+k,2)}, {v(d+8,2)} op_sel_hi:[1,0]")
        for k in range(4):
            a(f"v_cvt_pk_bf16_f32 v{o+k}, v{d+2*k}, v{d+2*k+1}")
        a(f"ds_write_b128 v{OWN}, {v(o,4)} offset:{1024*n}")
    kvcvt(0); omfma(0); kvcvt(1); omfma(1)
    onorm(0); kvcvt(2); omfma(2); onorm(1); kvcvt(3); omfma(3); onorm(2); onorm(3)
    ACCA=240; ACCB=96
    a(f"s_waitcnt lgkmcnt(0)")
    a("s_barrier")
    st.stamp(a, "p2_of")
    FO=192
    for hl in range(8):
        a(f"ds_read_b128 {v(FO+4*hl,4)}, v{OFA} offset:{1024*hl}")
    for hl in range(16):
        left = min(16, hl + 8) - hl - 1
        a(f"s_waitcnt lgkmcnt({left})")
        c = "0" if hl == 0 else v(ACCB,16)
        a(f"v_mfma_f32_32x32x16_bf16 {v(ACCB,16)}, {v(FW+4*hl,4)}, {v(FO+4*(hl%8),4)}, {c}")
        if hl + 8 < 16: a(f"ds_read_b128 {v(FO+4*(hl%8),4)}, v{OFA} offset:{1024*(hl+8)}")
        if hl == 11:
            a(f"s_waitcnt vmcnt(0)")
            a(f"v_mul_f32 v{G_}, 0xbfb8aa3b, v{G_}")
            a(f"v_exp_f32 v{G_}, v{G_}")
        if hl == 12:
            a(f"v_add_f32 v{G_}, 1.0, v{G_}")
            a(f"v_rcp_f32 v{G_}, v{G_}")
    a(f"v_mfma_f32_32x32x16_bf16 {v(ACCA,16)}, {v(AT,4)}, v[24:27], 0")
    a(f"v_mfma_f32_32x32x16_bf16 {v(ACCA,16)}, {v(AT+4,4)}, v[28:31], {v(ACCA,16)}")
    st.stamp(a, "p2_gemm")
    XA_=20
    a(f"s_lshl_b32 s{S_T0}, s{S_CW}, 12")
    a(f"s_add_u32 s{S_T0}, s{S_T0}, {XCHG}")
    a(f"v_add_u32 v{XA_}, s{S_T0}, v4")
    a(f"s_cmp_eq_u32 s{S_KH}, 0")
    a("s_cbranch_scc0 L_p2_x1")
    a(f"ds_write_b128 v{XA_}, {v(ACCB+8,4)} offset:0")
    a(f"ds_write_b128 v{XA_}, {v(ACCB+12,4)} offset:1024")
    a("s_waitcnt lgkmcnt(0)")
    a("s_barrier")
    a(f"ds_read_b128 v[32:35], v{XA_} offset:2048")
    a(f"ds_read_b128 v[36:39], v{XA_} offset:3072")
    a("s_waitcnt lgkmcnt(0)")
    for k in range(8):
        a(f"v_add_f32 v{40+k}, v{ACCB+k}, v{32+k}")
        a(f"v_sub_f32 v{48+k}, v{ACCA+k}, v{40+k}")
    a("s_branch L_p2_x2")
    a.label("L_p2_x1")
    a(f"ds_write_b128 v{XA_}, {v(ACCB,4)} offset:2048")
    a(f"ds_write_b128 v{XA_}, {v(ACCB+4,4)} offset:3072")
    a("s_waitcnt lgkmcnt(0)")
    a("s_barrier")
    a(f"ds_read_b128 v[32:35], v{XA_} offset:0")
    a(f"ds_read_b128 v[36:39], v{XA_} offset:1024")
    a("s_waitcnt lgkmcnt(0)")
    for k in range(8):
        a(f"v_add_f32 v{40+k}, v{ACCB+8+k}, v{32+k}")
        a(f"v_sub_f32 v{48+k}, v{ACCA+8+k}, v{40+k}")
    a.label("L_p2_x2")
    for k in range(8):
        a(f"v_fma_f32 v{48+k}, v{48+k}, v{G_}, v{40+k}")
    P=56
    for k in range(4):
        a(f"v_cvt_pk_bf16_f32 v{P+k}, v{48+2*k}, v{48+2*k+1}")
    a(f"v_permlane32_swap_b32 v{P}, v{P+2}")
    a(f"v_permlane32_swap_b32 v{P+1}, v{P+3}")
    a(f"global_store_dwordx4 v6, {v(P,4)}, {s(S_OUT,2)}")
    st.stamp(a, "p2_end")
```

```python
import sys, math
from asmlib import Asm

NAME = "gated_mix__ssm_conv_s4__linear_attn_block__prompt"
WS_AT = 0
WS_PQ = 2 << 20
WS_WF = 5 << 20
WS_KV = 4 << 20
ZERO_BYTES = 32*1024 + 2048 + 8192 + 64*256 + 16*256
NPRE = int(([x[5:] for x in sys.argv if x.startswith('npre=')] + ['0'])[0])
DEEP = 'shallow' not in sys.argv
ITERSTAMP = 'iter' in sys.argv
FMODE = ([x[2:] for x in sys.argv if x.startswith('f=')] + ['rb'])[0]
PNT = '' if 'nont' in sys.argv else ' nt'
PSLEEP = int(([x[7:] for x in sys.argv if x.startswith('psleep=')] + ['4'])[0])
HL = ' sc1' if 'hlsc1' in sys.argv else ''
XNT = 'xnt' in sys.argv
WNT = 'wnt' in sys.argv
SNT = 'snt' in sys.argv
LOG2E = 0x3fb8aa3b
INV2PI = 0x3e22f983

FT_STRIDE = 60 * 528
ROWB = 528
U_BASE = 4 * FT_STRIDE
U_CH = 9280
U1_OFF = 4640
KC1 = 4224
WOC_OFF = 32*1024 + 2048 + 8192 + 64*256
LFLAG = 20480
XCH = 8704

def v(i, n=1):
    return f"v{i}" if n == 1 else f"v[{i}:{i+n-1}]"
def s(i, n=1):
    return f"s{i}" if n == 1 else f"s[{i}:{i+n-1}]"

class Stamps:
    def __init__(self, on): self.on = on; self.n = 0; self.base = 70
    def stamp(self, a, name):
        if not self.on: return
        a(f"s_memtime s[96:97]")
        a(f"s_waitcnt lgkmcnt(0)")
        a(f"s_mov_b32 s{self.base+self.n}, s96")
        self.n += 1

def sum16(a, r, sdst):
    for sh in (1, 2, 4, 8):
        a(f"v_add_u32_dpp v{r}, v{r}, v{r} row_shr:{sh} row_mask:0xf bank_mask:0xf bound_ctrl:0")
    a(f"v_readlane_b32 s{sdst}, v{r}, 15")

def sum8(a, r, sdst):
    for sh in (1, 2, 4):
        a(f"v_add_u32_dpp v{r}, v{r}, v{r} row_shr:{sh} row_mask:0xf bank_mask:0xf bound_ctrl:0")
    a(f"v_readlane_b32 s{sdst}, v{r}, 7")

def cmul(a, dst, x, y, tmp):
    a(f"v_pk_mul_f32 {v(tmp,2)}, {v(x,2)}, {v(y,2)} op_sel:[0,0] op_sel_hi:[0,1]")
    a(f"v_pk_fma_f32 {v(dst,2)}, {v(x,2)}, {v(y,2)}, {v(tmp,2)} op_sel:[1,1,0] op_sel_hi:[1,0,1] neg_lo:[1,0,0]")

def cmul2(a, dsts, xs, ys, tmps):
    for d, x, y, t in zip(dsts, xs, ys, tmps):
        a(f"v_pk_mul_f32 {v(t,2)}, {v(x,2)}, {v(y,2)} op_sel:[0,0] op_sel_hi:[0,1]")
    for d, x, y, t in zip(dsts, xs, ys, tmps):
        a(f"v_pk_fma_f32 {v(d,2)}, {v(x,2)}, {v(y,2)}, {v(t,2)} op_sel:[1,1,0] op_sel_hi:[1,0,1] neg_lo:[1,0,0]")

def cexp(a, dst, ar, ai, scale, t0, t1):
    if scale is None:
        a(f"v_exp_f32 {v(t0)}, {v(ar)}")
        a(f"v_fract_f32 {v(t1)}, {v(ai)}")
    else:
        a(f"v_mul_f32 {v(t0)}, {scale}, {v(ar)}")
        a(f"v_mul_f32 {v(t1)}, {scale}, {v(ai)}")
        a(f"v_exp_f32 {v(t0)}, {v(t0)}")
        a(f"v_fract_f32 {v(t1)}, {v(t1)}")
    a(f"v_cos_f32 {v(dst)}, {v(t1)}")
    a(f"v_sin_f32 {v(dst+1)}, {v(t1)}")
    a(f"v_mul_f32 {v(dst)}, {v(dst)}, {v(t0)}")
    a(f"v_mul_f32 {v(dst+1)}, {v(dst+1)}, {v(t0)}")

S_U=16; S_ARE=18; S_AIM=20; S_BRE=22; S_BIM=24; S_CRE=26; S_CIM=28; S_LDT=30
S_DSK=32; S_WQKV=36; S_WO=38; S_GW=40; S_OUT=42; S_DBG=44; S_WS=46
S_WAVE=48; S_XCD=49; S_IDX=50

def k1_prologue(a, st):
    a("s_cmp_ge_u32 s2, 256")
    a("s_cbranch_scc1 L_k1_end")
    a("s_load_dwordx16 s[16:31], s[0:1], 0")
    a("s_load_dwordx4 s[32:35], s[0:1], 64")
    a("s_load_dwordx4 s[36:39], s[0:1], 80")
    a("s_load_dwordx4 s[40:43], s[0:1], 96")
    a("s_load_dwordx4 s[44:47], s[0:1], 112")
    if st.on:
        a("s_memtime s[68:69]")
        a("s_memrealtime s[100:101]")
    a("v_lshrrev_b32 v1, 6, v0")
    a(f"v_readfirstlane_b32 s{S_WAVE}, v1")
    a("v_and_b32 v1, 63, v0")
    a(f"s_and_b32 s{S_XCD}, s2, 7")
    a(f"s_lshr_b32 s{S_IDX}, s2, 4")
    a("s_bitcmp1_b32 s2, 3")
    a("s_cbranch_scc1 L_roleB")

def role_a(a, st):
    S_CH=51; S_HALF=52; S_CHN=53; S_CH0=54; S_FT=55; S_T0=56; S_T1=57; S_DT=58; S_DSKV=59; S_UB=90
    SRD_U=64
    GA0=72; GA1=73; GM=74
    def grow(r): return f"buffer_load_dwordx2 v[{4+2*r}:{5+2*r}], v{GA0 if r < 4 else GA1}, {s(SRD_U,4)}, 0 offen offset:{(r%4)*1024}"
    a.label("L_roleA")
    a(f"s_and_b32 s{S_CH}, s{S_WAVE}, 3")
    a(f"s_lshr_b32 s{S_HALF}, s{S_WAVE}, 2")
    a(f"s_lshl_b32 s{S_CH0}, s{S_XCD}, 6")
    a(f"s_lshl_b32 s{S_T0}, s{S_IDX}, 2")
    a(f"s_add_u32 s{S_CH0}, s{S_CH0}, s{S_T0}")
    a(f"s_add_u32 s{S_CHN}, s{S_CH0}, s{S_CH}")
    a(f"s_mul_i32 s{S_FT}, s{S_CH}, {FT_STRIDE}")
    a(f"s_mul_i32 s{S_UB}, s{S_CH}, {U_CH}")
    a(f"s_add_u32 s{S_UB}, s{S_UB}, {U_BASE}")
    a(f"s_lshl_b32 s{S_T0}, s{S_CHN}, 8")
    a(f"v_lshlrev_b32 v26, 2, v1")
    a(f"v_add_u32 v26, s{S_T0}, v26")
    a("s_waitcnt lgkmcnt(0)")
    a("s_cmp_ge_u32 s2, 8")
    a("s_cbranch_scc1 L_a_nozero")
    a(f"s_add_u32 s60, s{S_WS}, {WS_KV}")
    a(f"s_addc_u32 s61, s{S_WS+1}, 0")
    a(f"s_mov_b32 s62, {ZERO_BYTES}")
    a("s_mov_b32 s63, 0x20000")
    a("v_lshlrev_b32 v27, 4, v0")
    a("s_lshl_b32 s66, s2, 13")
    a("v_add_u32 v27, s66, v27")
    for i in range(4): a(f"v_mov_b32 v{28+i}, 0")
    a(f"buffer_store_dwordx4 v[28:31], v27, s[60:63], 0 offen sc1")
    a.label("L_a_nozero")
    a(f"global_load_dword v20, v26, {s(S_ARE,2)}{PNT}")
    a(f"global_load_dword v21, v26, {s(S_AIM,2)}{PNT}")
    a(f"s_lshl_b32 s{S_T0}, s{S_CHN}, 1")
    a(f"s_and_b32 s{S_T0}, s{S_T0}, 0xfffffffc")
    a(f"s_load_dword s{S_DT}, {s(S_LDT,2)}, s{S_T0}")
    a(f"s_load_dword s{S_DSKV}, {s(S_DSK,2)}, s{S_T0}")
    a(f"s_cmp_eq_u32 s{S_HALF}, 0")
    a("s_cbranch_scc0 L_a_gather")
    a(f"global_load_dword v22, v26, {s(S_BRE,2)}{PNT}")
    a(f"global_load_dword v23, v26, {s(S_BIM,2)}{PNT}")
    a(f"global_load_dword v24, v26, {s(S_CRE,2)}{PNT}")
    a(f"global_load_dword v25, v26, {s(S_CIM,2)}{PNT}")
    S_AI=92
    a(f"s_lshl_b32 s{S_AI}, s{S_XCD}, 4"); a(f"s_add_u32 s{S_AI}, s{S_AI}, s{S_IDX}")
    a(f"s_mov_b32 s4, s{S_WO}"); a(f"s_mov_b32 s5, s{S_WO+1}"); a(f"s_mov_b32 s6, {512*1024}"); a(f"s_mov_b32 s7, 0x20000")
    a(f"s_and_b32 s{S_T0}, s{S_AI}, 3"); a(f"s_lshl_b32 s{S_T0}, s{S_T0}, 2"); a(f"s_add_u32 s93, s{S_T0}, s{S_CH}")
    a(f"v_lshrrev_b32 v27, 2, v1")
    a(f"v_lshlrev_b32 v27, 10, v27")
    a(f"v_and_b32 v28, 3, v1")
    a(f"v_lshl_add_u32 v27, v28, 4, v27")
    a(f"s_lshr_b32 s{S_T0}, s{S_AI}, 2"); a(f"s_lshl_b32 s{S_T0}, s{S_T0}, 14")
    a(f"s_lshl_b32 s{S_T1}, s93, 6"); a(f"s_add_u32 s{S_T0}, s{S_T0}, s{S_T1}")
    a(f"s_lshl_b32 s{S_T1}, s{S_CH}, 10"); a(f"s_add_u32 m0, s{S_T1}, {U_BASE}")
    a(f"buffer_load_dwordx4 v27, s[4:7], s{S_T0} offen lds")
    a("s_branch L_a_p1")
    a.label("L_a_gather")
    a(f"s_mov_b32 s{SRD_U}, s{S_U}")
    a(f"s_mov_b32 s{SRD_U+1}, s{S_U+1}")
    a(f"s_mov_b32 s{SRD_U+2}, {2048*1024}")
    a(f"s_mov_b32 s{SRD_U+3}, 0x20000")
    a(f"v_and_b32 v27, 255, v0")
    a(f"v_lshrrev_b32 v28, 3, v27")
    a(f"s_lshl_b32 s{S_T0}, s{S_IDX}, 7")
    a(f"v_add_u32 v28, s{S_T0}, v28")
    a(f"v_lshlrev_b32 v28, 10, v28")
    a(f"v_and_b32 v29, 7, v27")
    a(f"v_lshl_add_u32 v28, v29, 4, v28")
    a(f"s_lshl_b32 s{S_T0}, s{S_XCD}, 7")
    a(f"v_add_u32 v28, s{S_T0}, v28")
    for j in range(4):
        a(f"s_mov_b32 s{S_T1}, {j*32768}")
        a(f"buffer_load_dwordx4 v[224:227], v28, {s(SRD_U,4)}, s{S_T1} offen" + (" nt" if SNT else ""))
    a(f"v_lshlrev_b32 v{GA0}, 13, v27")
    a(f"s_lshl_b32 s{S_T0}, s{S_CH0}, 1")
    a(f"v_add_u32 v{GA0}, s{S_T0}, v{GA0}")
    a(f"v_add_u32 v{GA1}, 4096, v{GA0}")
    a(f"v_subrev_u32 v{GM}, 1024, v{GA0}")
    a(f"v_cmp_eq_u32_e64 s[98:99], 0, v27")
    a(f"v_mov_b32 v31, 0x7ffffff0")
    a(f"v_cndmask_b32_e64 v{GM}, v{GM}, v31, s[98:99]")
    a.label("L_a_p1")
    a(f"s_lshl_b32 s91, s{S_XCD}, 4"); a(f"s_add_u32 s91, s91, s{S_IDX}")
    a("s_waitcnt lgkmcnt(0)")
    a(f"s_bitcmp1_b32 s{S_CHN}, 0")
    a(f"s_cselect_b32 s{S_T0}, 16, 0")
    a(f"s_lshr_b32 s{S_DT}, s{S_DT}, s{S_T0}")
    a(f"s_lshl_b32 s{S_DT}, s{S_DT}, 16")
    a(f"s_lshr_b32 s{S_DSKV}, s{S_DSKV}, s{S_T0}")
    a(f"s_lshl_b32 s{S_DSKV}, s{S_DSKV}, 16")
    DT=68
    a(f"v_mov_b32 v{DT}, {LOG2E}")
    a(f"v_mul_f32 v{DT}, s{S_DT}, v{DT}")
    a(f"v_exp_f32 v{DT}, v{DT}")
    a(f"v_cvt_pk_bf16_f32 v{DT}, v{DT}, v{DT}")
    a(f"v_lshlrev_b32 v{DT}, 16, v{DT}")
    WA=69
    a(f"v_lshlrev_b32 v{WA}, 3, v1")
    a(f"v_add_u32 v{WA}, s{S_FT}, v{WA}")
    a(f"s_cmp_eq_u32 s{S_HALF}, 0")
    a("s_cbranch_scc0 L_a_p1B")
    a("s_waitcnt vmcnt(0)")
    a("s_cmp_ge_u32 s2, 8")
    a("s_cbranch_scc1 L_a_ezA")
    a("s_barrier")
    a(f"s_cmp_lg_u32 s{S_WAVE}, 0")
    a("s_cbranch_scc1 L_a_ezA")
    a("s_lshl_b32 s66, s2, 2")
    a("v_mov_b32 v26, s66")
    a("v_mov_b32 v27, 1")
    a("s_mov_b64 exec, 1")
    a(f"global_store_dword v26, v27, {s(S_DBG,2)} sc1")
    a("s_mov_b64 exec, -1")
    a.label("L_a_ezA")
    st.stamp(a, "a_params")
    AR=[26,27]; AI=[28,29]
    def unpack(dst0, dst1, src):
        a(f"v_lshlrev_b32 v{dst0}, 16, v{src}")
        a(f"v_and_b32 v{dst1}, 0xffff0000, v{src}")
    def arai():
        unpack(AR[0], AR[1], 20); unpack(AI[0], AI[1], 21)
        a(f"s_mov_b32 s{S_T0}, {LOG2E}")
        a(f"s_mov_b32 s{S_T1}, {INV2PI}")
        for m in range(2):
            a(f"v_mul_f32 v{AR[m]}, v{AR[m]}, v{DT}")
            a(f"v_mul_f32 v{AI[m]}, v{AI[m]}, v{DT}")
        for m in range(2):
            a(f"v_mul_f32 v{AR[m]}, s{S_T0}, v{AR[m]}")
            a(f"v_mul_f32 v{AI[m]}, s{S_T1}, v{AI[m]}")
    arai()
    E1=[30,32]; E256=[34,36]; G0=[38,40]; G2=[42,44]; G4=[46,48]; G6=[50,52]; G8=[54,56]; CUR=[58,60]; TMP=[62,64]; O=[66,70]
    for m in range(2):
        cexp(a, E1[m], AR[m], AI[m], None, TMP[m], TMP[m]+1)
    a(f"s_mov_b32 s{S_T0}, 0x43800000")
    for m in range(2):
        cexp(a, E256[m], AR[m], AI[m], f"s{S_T0}", TMP[m], TMP[m]+1)
    unpack(CUR[0], CUR[1], 22)
    a.items = a.items[:-2]
    a(f"v_lshlrev_b32 v{CUR[0]}, 16, v22"); a(f"v_and_b32 v{CUR[1]}, 0xffff0000, v22")
    a(f"v_lshlrev_b32 v{CUR[0]+1}, 16, v23"); a(f"v_and_b32 v{CUR[1]+1}, 0xffff0000, v23")
    a(f"v_lshlrev_b32 v{G2[0]}, 16, v24"); a(f"v_and_b32 v{G2[1]}, 0xffff0000, v24")
    a(f"v_lshlrev_b32 v{G2[0]+1}, 16, v25"); a(f"v_and_b32 v{G2[1]+1}, 0xffff0000, v25")
    for m in range(2):
        a(f"v_mul_f32 v{CUR[m]}, v{CUR[m]}, v{DT}")
        a(f"v_mul_f32 v{CUR[m]+1}, v{CUR[m]+1}, v{DT}")
    cmul2(a, G0, G2, CUR, TMP)
    tog = [0]
    def wrow(src, rho):
        o = O[tog[0]]; tog[0] ^= 1
        for m in range(2):
            a(f"v_cvt_pk_bf16_f32 v{o+m}, v{src[m]}, -v{src[m]+1}")
        for r in (rho if isinstance(rho, (list,tuple)) else [rho]):
            a(f"ds_write_b64 v{WA}, {v(o,2)} offset:{r*ROWB}")
    wrow(G0, 0)
    cmul2(a, CUR, G0, E1, TMP); wrow(CUR, 1)
    cmul2(a, G2, CUR, E1, TMP); wrow(G2, 2)
    cmul2(a, CUR, G2, E1, TMP); wrow(CUR, 3)
    cmul2(a, G4, CUR, E1, TMP); wrow(G4, 4)
    cmul2(a, CUR, G4, E1, TMP); wrow(CUR, 5)
    cmul2(a, G6, CUR, E1, TMP); wrow(G6, 6)
    cmul2(a, CUR, G6, E1, TMP); wrow(CUR, 7)
    cmul2(a, G8, CUR, E1, TMP)
    cmul2(a, G0, G0, E256, TMP); wrow(G0, 8)
    cmul2(a, G2, G2, E256, TMP); wrow(G2, 9)
    cmul2(a, G4, G4, E256, TMP); wrow(G4, [10, 11])
    cmul2(a, G6, G6, E256, TMP); wrow(G6, 12)
    cmul2(a, G8, G8, E256, TMP); wrow(G8, 13)
    for base in (14, 17):
        cmul2(a, G0, G0, E256, TMP); wrow(G0, base)
        cmul2(a, G4, G4, E256, TMP); wrow(G4, base+1)
        cmul2(a, G8, G8, E256, TMP); wrow(G8, base+2)
    for base in (20, 22, 24, 26):
        cmul2(a, G0, G0, E256, TMP); wrow(G0, base)
        cmul2(a, G8, G8, E256, TMP); wrow(G8, base+1)
    a(f"v_and_b32 v38, 15, v1")
    a(f"v_lshrrev_b32 v39, 2, v38")
    a(f"v_lshrrev_b32 v40, 5, v1")
    a(f"v_lshl_add_u32 v39, v40, 2, v39")
    a(f"v_lshlrev_b32 v39, 6, v39")
    a(f"v_bfe_u32 v40, v1, 4, 1")
    a(f"v_lshl_add_u32 v39, v40, 5, v39")
    a(f"v_and_b32 v40, 3, v38")
    a(f"v_lshl_add_u32 v39, v40, 3, v39")
    a(f"s_lshl_b32 s{S_T1}, s{S_CH}, 10"); a(f"s_add_u32 s{S_T1}, s{S_T1}, {U_BASE}")
    a(f"v_add_u32 v39, s{S_T1}, v39")
    a(f"ds_read_b64_tr_b16 v[42:43], v39")
    a(f"ds_read_b64_tr_b16 v[44:45], v39 offset:512")
    a(f"s_lshr_b32 s{S_T0}, s92, 2"); a(f"s_lshl_b32 s{S_T0}, s{S_T0}, 4"); a(f"s_add_u32 s{S_T0}, s{S_T0}, s93")
    a(f"s_lshl_b32 s{S_T0}, s{S_T0}, 10"); a(f"s_add_u32 s{S_T0}, s{S_T0}, {WS_WF}")
    a(f"v_lshlrev_b32 v40, 4, v1")
    a(f"v_add_u32 v40, s{S_T0}, v40")
    a("s_waitcnt lgkmcnt(0)")
    a(f"global_store_dwordx4 v40, v[42:45], {s(S_WS,2)} sc1")
    a("v_and_b32 v46, 7, v1")
    a("v_lshlrev_b32 v46, 2, v46")
    a(f"global_load_dword v47, v46, {s(S_DBG,2)} sc1")
    a("s_waitcnt vmcnt(0)")
    a("s_branch L_a_p1done")
    a.label("L_a_p1B")
    st.n -= 1
    a("s_waitcnt vmcnt(4)")
    a("s_cmp_ge_u32 s2, 8")
    a("s_cbranch_scc1 L_a_ezB")
    a("s_barrier")
    a(f"s_cmp_lg_u32 s{S_WAVE}, 0")
    a("s_cbranch_scc1 L_a_ezB")
    a("s_lshl_b32 s66, s2, 2")
    a("v_mov_b32 v26, s66")
    a("v_mov_b32 v27, 1")
    a("s_mov_b64 exec, 1")
    a(f"global_store_dword v26, v27, {s(S_DBG,2)} sc1")
    a("s_mov_b64 exec, -1")
    a.label("L_a_ezB")
    st.stamp(a, "a_params")
    a("s_mov_b64 exec, 1")
    a(f"buffer_load_dwordx2 v[2:3], v{GM}, {s(SRD_U,4)}, 0 offen")
    a("s_mov_b64 exec, -1")
    for r in range(4): a(grow(r))
    arai()
    E8=[30,32]; F=[34,36]
    a(f"s_mov_b32 s{S_T0}, 0x41000000")
    for m in range(2):
        cexp(a, E8[m], AR[m], AI[m], f"s{S_T0}", TMP[m], TMP[m]+1)
    for m in range(2):
        a(f"v_mov_b32 v{F[m]}, 1.0"); a(f"v_mov_b32 v{F[m]+1}, 0")
    a(f"v_add_u32 v{WA}, {28*ROWB}, v{WA}")
    def brows(n):
        for k in range(n):
            o = O[k & 1]
            for m in range(2):
                a(f"v_cvt_pk_bf16_f32 v{o+m}, v{F[m]}, v{F[m]+1}")
            cmul2(a, F, F, E8, TMP)
            a(f"ds_write_b64 v{WA}, {v(o,2)} offset:{(k%4)*ROWB}")
            if k % 4 == 3: a(f"v_add_u32 v{WA}, {4*ROWB}, v{WA}")
    a(f"s_mov_b32 s{S_T0}, 3")
    a.label("L_a_p1Bloop1")
    brows(4)
    a(f"s_sub_u32 s{S_T0}, s{S_T0}, 1")
    a(f"s_cmp_lg_u32 s{S_T0}, 0")
    a("s_cbranch_scc1 L_a_p1Bloop1")
    a(f"s_mov_b32 s{S_T0}, 3")
    a.label("L_a_p1Bloop2")
    brows(4)
    a(f"s_sub_u32 s{S_T0}, s{S_T0}, 1")
    a(f"s_cmp_lg_u32 s{S_T0}, 0")
    a("s_cbranch_scc1 L_a_p1Bloop2")
    brows(8)
    a.label("L_a_p1done")
    a("v_and_b32 v46, 7, v1")
    a("v_lshlrev_b32 v46, 2, v46")
    st.stamp(a, "a_p1end")
    a("s_waitcnt lgkmcnt(0)")
    a("s_barrier")
    st.stamp(a, "a_p1done")
    a(f"s_cmp_eq_u32 s{S_WAVE}, 1")
    a("s_cbranch_scc0 L_a_nosig")
    a.label("L_a_zpoll")
    sum8(a, 47, 66)
    a("s_cmp_eq_u32 s66, 8")
    a("s_cbranch_scc1 L_a_zok")
    a("s_sleep 4")
    a(f"global_load_dword v47, v46, {s(S_DBG,2)} sc1")
    a("s_waitcnt vmcnt(0)")
    a("s_branch L_a_zpoll")
    a.label("L_a_zok")
    a(f"s_and_b32 s66, s91, 15"); a("s_lshl_b32 s66, s66, 8"); a(f"s_add_u32 s66, s66, {WS_KV + WOC_OFF}")
    a("v_mov_b32 v46, s66"); a("v_mov_b32 v47, 1")
    a("s_mov_b64 exec, 1")
    a(f"global_atomic_add v46, v47, {s(S_WS,2)} sc1")
    a("s_mov_b64 exec, -1")
    a.label("L_a_nosig")
    a(f"s_cmp_eq_u32 s{S_HALF}, 0")
    a("s_cbranch_scc0 L_a_utab")
    RA=26; RB=27; C=28; H=29
    a(f"v_and_b32 v{C}, 31, v1")
    a(f"v_lshrrev_b32 v{H}, 5, v1")
    a(f"v_subrev_u32 v30, 8, v{C}")
    a(f"v_max_i32 v30, 0, v30")
    a(f"v_lshrrev_b32 v30, 2, v30")
    a(f"v_min_u32 v30, 4, v30")
    a(f"v_sub_u32 v30, v{C}, v30")
    a(f"v_mul_u32_u24 v{RA}, {ROWB}, v30")
    a(f"v_mul_u32_u24 v{RB}, {ROWB}, v{C}")
    a(f"v_lshlrev_b32 v31, 4, v{H}")
    a(f"v_add_u32 v31, s{S_FT}, v31")
    a(f"v_add_u32 v{RA}, v{RA}, v31")
    a(f"v_add_u32 v{RB}, v{RB}, v31")
    D=100
    FA=36; FB=68+4
    FB=116
    def rd(sidx):
        a(f"ds_read_b128 {v(FA+4*(sidx%8),4)}, v{RA} offset:{32*sidx}")
        a(f"ds_read_b128 {v(FB+4*(sidx%8),4)}, v{RB} offset:{28*ROWB+32*sidx}")
    for sidx in range(6): rd(sidx)
    for sidx in range(16):
        issued = min(16, sidx + 6)
        a(f"s_waitcnt lgkmcnt({2*(issued - sidx - 1)})")
        c = "0" if sidx == 0 else v(D,16)
        a(f"v_mfma_f32_32x32x16_bf16 {v(D,16)}, {v(FA+4*(sidx%8),4)}, {v(FB+4*(sidx%8),4)}, {c}")
        if sidx + 6 < 16: rd(sidx + 6)
    st.stamp(a, "a_p2")
    B2=30; B3=31; Z=36; FX=32
    a(f"v_sub_u32 v{B2}, 31, v{C}")
    a(f"v_lshlrev_b32 v{B2}, 4, v{B2}")
    a(f"v_add_u32 v{B2}, s{S_FT}, v{B2}")
    a(f"v_sub_u32 v37, 1, v{H}")
    a(f"v_lshl_add_u32 v{B3}, v37, 10, v{B2}")
    a(f"v_lshl_add_u32 v{B2}, v37, 9, v{B2}")
    a(f"v_lshlrev_b32 v38, 2, v1")
    a(f"v_add_u32 v38, s{S_FT}, v38")
    a(f"v_mov_b32 v{Z}, 0")
    a(f"v_and_b32 v39, 1, v{C}")
    a(f"v_cmp_eq_u32_e64 s[98:99], 1, v39")
    a(f"s_cmp_eq_u32 s{S_WAVE}, 0")
    a("s_cbranch_scc0 L_a_nolf")
    a(f"v_mov_b32 v39, {LFLAG}")
    a(f"ds_write_b32 v39, v{Z}")
    a.label("L_a_nolf")
    a(f"ds_write_b32 v38, v{Z} offset:4096")
    a(f"ds_write_b32 v38, v{Z} offset:{KC1-4+4096}")
    d = lambda i: f"v{D+i}"
    P=40
    a(f"v_cvt_pk_bf16_f32 v{P+2}, {d(3)}, {d(2)}")
    a(f"v_cvt_pk_bf16_f32 v{P+3}, {d(1)}, {d(0)}")
    a(f"v_cvt_pk_bf16_f32 v{P}, {d(6)}, {d(5)}")
    a(f"v_cvt_pk_bf16_f32 v{P+1}, {d(4)}, {d(4)}")
    a(f"v_cvt_pk_bf16_f32 v{P+4}, {d(10)}, {d(10)}")
    a(f"v_cvt_pk_bf16_f32 v{P+5}, {d(9)}, {d(9)}")
    a(f"v_cvt_pk_bf16_f32 v{P+6}, {d(9)}, {d(8)}")
    a(f"v_cvt_pk_bf16_f32 v{P+7}, {d(8)}, {d(8)}")
    a(f"v_permlane32_swap_b32 v{P+2}, v{P}")
    a(f"v_permlane32_swap_b32 v{P+3}, v{P+1}")
    for io in range(2):
        k0 = 12 + 2*io; k8 = k0 + 1; q = P + 8 + 4*io
        a(f"v_cndmask_b32_e64 v{q+1}, {d(k0)}, {d(k8)}, s[98:99]")
        a(f"v_cvt_pk_bf16_f32 v{q}, {d(k8)}, {d(k8)}")
        a(f"v_cvt_pk_bf16_f32 v{q+1}, {d(k8)}, v{q+1}")
        a(f"v_cvt_pk_bf16_f32 v{q+2}, {d(k0)}, {d(k0)}")
        a(f"v_mov_b32 v{q+3}, v{q+2}")
    chunks = [(P, B2, 3072), (P+4, B2, 2048), (P+8, B3, 512), (P+12, B3, 0)]
    for (q, br, off) in chunks:
        a(f"ds_write_b128 v{br}, {v(q,4)} offset:{off}")
    for n, (q, br, off) in enumerate(chunks):
        c1 = 56 + 4*n
        a(f"v_mov_b32 v{c1}, v{q+1}")
        a(f"v_mov_b32 v{c1+1}, v{q+2}")
        a(f"v_mov_b32 v{c1+2}, v{q+3}")
        a(f"v_mov_b32_dpp v{c1+3}, v{q} wave_shr:1 row_mask:0xf bank_mask:0xf")
        a(f"ds_write_b128 v{br}, {v(c1,4)} offset:{off + KC1}")
    a("s_mov_b32 s92, 0x80000000"); a("s_mov_b32 s93, 0x80000000")
    a("s_mov_b64 exec, s[92:93]")
    for (q, br, off) in chunks:
        a(f"ds_write_b32 v{br}, v{q} offset:{off + KC1 - 4}")
    a("s_mov_b64 exec, 1")
    a(f"ds_write_b32 v{B2}, v{Z} offset:{3072 + KC1 + 12}")
    a("s_mov_b64 exec, -1")
    a("s_branch L_a_p3done")
    a.label("L_a_utab")
    st.n -= 1
    for r in range(4, 8): a(grow(r))
    a("s_waitcnt vmcnt(0)")
    st.stamp(a, "a_gather")
    a(f"v_and_b32 v27, 255, v0")
    a(f"v_lshlrev_b32 v28, 4, v27")
    a(f"v_add_u32 v28, {U_BASE+512}, v28")
    a(f"v_mov_b32_dpp v2, v18 wave_shr:1 row_mask:0xf bank_mask:0xf")
    a(f"v_mov_b32_dpp v3, v19 wave_shr:1 row_mask:0xf bank_mask:0xf")
    a(f"s_mov_b32 s{S_T0}, 0x05040100")
    a(f"s_mov_b32 s{S_T1}, 0x07060302")
    row = lambda r, dw: f"v{2+2*(r+1)+dw}"
    T=32
    n = 0
    for cc in range(4):
        dw = cc >> 1; sel = S_T0 if (cc & 1) == 0 else S_T1
        for cp in range(2):
            t = T + 4*(n % 4); n += 1
            for i in range(4):
                lo = 2*i - 1 if cp == 0 else 2*i
                a(f"v_perm_b32 v{t+i}, {row(lo+1,dw)}, {row(lo,dw)}, s{sel}")
            a(f"ds_write_b128 v28, {v(t,4)} offset:{cc*U_CH + cp*U1_OFF}")
    a(f"v_and_b32 v29, 255, v0")
    a(f"v_lshrrev_b32 v30, 5, v29")
    a(f"v_mul_u32_u24 v30, {U1_OFF}, v30")
    a(f"v_and_b32 v29, 31, v29")
    a(f"v_lshl_add_u32 v30, v29, 4, v30")
    a(f"v_add_u32 v30, {U_BASE}, v30")
    for i in range(4): a(f"v_mov_b32 v{48+i}, 0")
    a(f"ds_write_b128 v30, v[48:51]")
    a.label("L_a_p3done")
    st.stamp(a, "a_p3end")
    a("s_waitcnt lgkmcnt(0)")
    a("s_barrier")
    st.stamp(a, "a_p3done")
    UB=20; KB=21; COL=22; G=23; CP=24; AL=25
    a(f"v_and_b32 v{COL}, 15, v1")
    a(f"v_lshrrev_b32 v{G}, 4, v1")
    a(f"v_and_b32 v{CP}, 1, v{COL}")
    a(f"v_lshrrev_b32 v{AL}, 1, v{COL}")
    a(f"v_mul_u32_u24 v{UB}, {U1_OFF}, v{CP}")
    a(f"v_lshl_add_u32 v{UB}, v{AL}, 6, v{UB}")
    a(f"v_lshl_add_u32 v{UB}, v{G}, 4, v{UB}")
    a(f"s_lshl_b32 s{S_T0}, s{S_HALF}, 8")
    a(f"s_sub_u32 s{S_T1}, s{S_UB}, s{S_T0}")
    a(f"s_add_u32 s{S_T1}, s{S_T1}, 512")
    a(f"v_add_u32 v{UB}, s{S_T1}, v{UB}")
    a(f"v_mov_b32 v26, v{UB}")
    a(f"v_sub_u32 v{KB}, 1023, v{COL}")
    a(f"v_lshl_add_u32 v{KB}, v{G}, 2, v{KB}")
    a(f"v_lshlrev_b32 v{KB}, 2, v{KB}")
    a(f"v_sub_u32 v27, 1, v{CP}")
    a(f"v_mul_u32_u24 v27, {KC1-4}, v27")
    a(f"v_add_u32 v{KB}, v{KB}, v27")
    a(f"s_sub_u32 s{S_T1}, s{S_FT}, s{S_T0}")
    a(f"s_sub_u32 s{S_T1}, s{S_T1}, 3584")
    a(f"v_add_u32 v{KB}, s{S_T1}, v{KB}")
    ACC=32
    SETB=[192, 64]; SETA=[224, 96]
    FW=128
    def rd_list(setidx):
        L = []
        for t in range(8):
            L.append(f"ds_read_b128 {v(SETB[setidx]+4*t,4)}, v{UB} offset:{512*t}")
        for q in range(8):
            L.append(f"ds_read_b64 {v(SETA[setidx]+4*q,2)}, v{KB} offset:{512*(7-q)}")
            L.append(f"ds_read_b64 {v(SETA[setidx]+4*q+2,2)}, v{KB} offset:{512*(7-q)+8}")
        order = [8, 9] + list(range(8)) + list(range(10, 24))
        return [L[i] for i in order]
    for x in rd_list(0): a(x)
    a("v_mov_b32 v4, 0")
    a(f"s_cmp_eq_u32 s{S_WAVE}, 0")
    a("s_cbranch_scc0 L_a_nodbg")
    a(f"v_and_b32 v11, 15, v1")
    a(f"v_lshlrev_b32 v11, 8, v11")
    a(f"v_add_u32 v11, {WS_KV + WOC_OFF}, v11")
    a.label("L_a_nodbg")
    WFA=5
    a(f"s_lshr_b32 s{S_T1}, s2, 3")
    a(f"s_and_b32 s{S_T1}, s{S_T1}, 3")
    a(f"s_lshl_b32 s{S_T1}, s{S_T1}, 2")
    a(f"s_add_u32 s{S_T1}, s{S_T1}, s{S_CH}")
    a(f"s_lshl_b32 s60, s{S_HALF}, 8")
    a(f"s_add_u32 s{S_T1}, s{S_T1}, s60")
    a(f"s_lshl_b32 s{S_T1}, s{S_T1}, 10")
    a(f"s_add_u32 s{S_T1}, s{S_T1}, {WS_WF}")
    a(f"v_lshlrev_b32 v{WFA}, 4, v1")
    a(f"v_add_u32 v{WFA}, s{S_T1}, v{WFA}")
    XA=27; UE=28; UR=29; SU=6; SL=7; SH=8
    a(f"v_lshlrev_b32 v{XA}, 4, v1")
    a(f"v_add_u32 v{XA}, s{S_FT}, v{XA}")
    a(f"v_lshlrev_b32 v{UE}, 6, v{AL}")
    a(f"v_lshl_add_u32 v{UE}, v{G}, 4, v{UE}")
    a(f"s_lshl_b32 s{S_T0}, s{S_HALF}, 11")
    a(f"s_add_u32 s{S_T1}, s{S_UB}, s{S_T0}")
    a(f"s_add_u32 s{S_T1}, s{S_T1}, {U1_OFF+512}")
    a(f"v_add_u32 v{UR}, s{S_T1}, v{UE}")
    a(f"v_lshl_add_u32 v{UE}, v{CP}, 9, v{UE}")
    a(f"s_lshl_b32 s{S_T1}, s{S_CHN}, 12")
    a(f"s_add_u32 s{S_T1}, s{S_T1}, s{S_T0}")
    a(f"v_add_u32 v{UE}, s{S_T1}, v{UE}")
    a(f"v_cmp_eq_u32_e64 s[98:99], 1, v{CP}")
    a(f"v_mov_b32 v{SU}, 0x01000c0c"); a(f"v_mov_b32 v9, 0x03020c0c")
    a(f"v_cndmask_b32_e64 v{SU}, v{SU}, v9, s[98:99]")
    a(f"v_mov_b32 v{SL}, 0x05040100"); a(f"v_mov_b32 v9, 0x01000504")
    a(f"v_cndmask_b32_e64 v{SL}, v{SL}, v9, s[98:99]")
    a(f"v_mov_b32 v{SH}, 0x07060302"); a(f"v_mov_b32 v9, 0x03020706")
    a(f"v_cndmask_b32_e64 v{SH}, v{SH}, v9, s[98:99]")
    UU=192
    for it in range(4):
        cur = it & 1
        nxt = []
        if it < 3:
            a(f"v_subrev_u32 v{UB}, 64, v{UB}")
            a(f"v_subrev_u32 v{KB}, 64, v{KB}")
            nxt = rd_list(cur ^ 1)
        else:
            nxt = [f"ds_read_b128 {v(UU+4*t,4)}, v{UR} offset:{512*t}" for t in range(4)]
        a("s_waitcnt lgkmcnt(0)")
        if it == 3:
            st.stamp(a, "a_it3")
            a(f"v_mov_b32 v9, {LFLAG}")
            a(f"s_cmp_eq_u32 s{S_WAVE}, 0")
            a("s_cbranch_scc0 L_a_wfl")
            a(f"global_load_dword v3, v11, {s(S_WS,2)} sc1")
            a("s_waitcnt vmcnt(0)")
            a.label("L_a_wfpoll")
            sum16(a, 3, 66)
            a("s_cmp_eq_u32 s66, 128")
            a("s_cbranch_scc1 L_a_wfset")
            a("s_sleep 8")
            a(f"global_load_dword v3, v11, {s(S_WS,2)} sc1")
            a("s_waitcnt vmcnt(0)")
            a("s_branch L_a_wfpoll")
            a.label("L_a_wfset")
            a("v_mov_b32 v10, 1")
            a("ds_write_b32 v9, v10")
            a("s_branch L_a_wfok")
            a.label("L_a_wfl")
            a("ds_read_b32 v10, v9")
            a("s_waitcnt lgkmcnt(0)")
            a("v_readfirstlane_b32 s66, v10")
            a("s_cmp_eq_u32 s66, 1")
            a("s_cbranch_scc1 L_a_wfok")
            a("s_sleep 2")
            a("s_branch L_a_wfl")
            a.label("L_a_wfok")
            st.stamp(a, "a_wfok")
        extra = []
        if it == 3:
            for hl in range(16):
                extra.append([f"global_load_dwordx4 {v(FW+4*hl,4)}, v{WFA}, {s(S_WS,2)}{HL}"] + ([f"v_add_u32 v{WFA}, 16384, v{WFA}"] if hl < 15 else []))
        late = []
        if it == 3:
            late = ["s_waitcnt lgkmcnt(0)"]
            late += [f"v_perm_b32 v{UU+i}, v{UU+i}, v{UU+i}, v{SU}" for i in range(16)]
            late += [f"v_mul_f32 v{UU+i}, s{S_DSKV}, v{UU+i}" for i in range(16)]
        k = 0; ke = 0; kl = 0
        mf = [(q, t) for q in range(8) for t in range(8 - q)]
        for idx, (q, t) in enumerate(mf):
            acc = v(ACC + 4*(t+q), 4)
            c = "0" if (it == 0 and q == 0) else acc
            a(f"v_mfma_f32_16x16x32_bf16 {acc}, {v(SETA[cur]+4*q,4)}, {v(SETB[cur]+4*t,4)}, {c}")
            if nxt and idx >= 2 and k < len(nxt):
                a(nxt[k]); k += 1
            if extra and idx % 2 == 1 and ke < len(extra):
                for x in extra[ke]: a(x)
                ke += 1
            if late and idx >= 14 and kl < len(late):
                for x in late[kl:kl+2]: a(x)
                kl += 2
        while k < len(nxt):
            a(nxt[k]); k += 1
        for e_ in extra[ke:]:
            for x in e_: a(x)
        for x in late[kl:]: a(x)
    st.stamp(a, "a_convdone")
    R=64; RX=96
    a(f"s_cmp_eq_u32 s{S_HALF}, 0")
    a("s_cbranch_scc0 L_a_x1")
    for t in range(4):
        a(f"ds_write_b128 v{XA}, {v(ACC+16+4*t,4)} offset:{XCH + 1024*t}")
    for i in range(16):
        a(f"v_add_f32 v{R+i}, v{ACC+i}, v{UU+i}")
    a("s_waitcnt lgkmcnt(0)")
    a("s_barrier")
    for t in range(4):
        a(f"ds_read_b128 {v(RX+4*t,4)}, v{XA} offset:{XCH + 4096 + 1024*t}")
    a("s_branch L_a_x2")
    a.label("L_a_x1")
    for t in range(4):
        a(f"ds_write_b128 v{XA}, {v(ACC+4*t,4)} offset:{XCH + 4096 + 1024*t}")
    for i in range(16):
        a(f"v_add_f32 v{R+i}, v{ACC+16+i}, v{UU+i}")
    a("s_waitcnt lgkmcnt(0)")
    a("s_barrier")
    for t in range(4):
        a(f"ds_read_b128 {v(RX+4*t,4)}, v{XA} offset:{XCH + 1024*t}")
    a.label("L_a_x2")
    st.stamp(a, "a_xbar")
    for tp in range(2):
        t0 = 2*tp; t1 = t0 + 1
        a(f"s_waitcnt lgkmcnt({2 - 2*tp})")
        for i in range(8):
            a(f"v_add_f32 v{R+4*t0+i}, v{R+4*t0+i}, v{RX+4*t0+i}")
        b_ = 208 + 16*tp
        P0, Q0, P1, Q1, SP, SQ, KP, KQ, RP, RQ = [b_ + x for x in range(10)]
        a(f"v_cvt_pk_bf16_f32 v{P0}, v{R+4*t0}, v{R+4*t0+1}")
        a(f"v_cvt_pk_bf16_f32 v{Q0}, v{R+4*t0+2}, v{R+4*t0+3}")
        a(f"v_cvt_pk_bf16_f32 v{P1}, v{R+4*t1}, v{R+4*t1+1}")
        a(f"v_cvt_pk_bf16_f32 v{Q1}, v{R+4*t1+2}, v{R+4*t1+3}")
        a(f"v_cndmask_b32_e64 v{SP}, v{P1}, v{P0}, s[98:99]")
        a(f"v_cndmask_b32_e64 v{SQ}, v{Q1}, v{Q0}, s[98:99]")
        a(f"v_cndmask_b32_e64 v{KP}, v{P0}, v{P1}, s[98:99]")
        a(f"v_cndmask_b32_e64 v{KQ}, v{Q0}, v{Q1}, s[98:99]")
        a(f"v_mov_b32_dpp v{RP}, v{SP} quad_perm:[1,0,3,2] row_mask:0xf bank_mask:0xf")
        a(f"v_mov_b32_dpp v{RQ}, v{SQ} quad_perm:[1,0,3,2] row_mask:0xf bank_mask:0xf")
        o = 240 + 4*tp
        a(f"v_perm_b32 v{o}, v{RP}, v{KP}, v{SL}")
        a(f"v_perm_b32 v{o+1}, v{RP}, v{KP}, v{SH}")
        a(f"v_perm_b32 v{o+2}, v{RQ}, v{KQ}, v{SL}")
        a(f"v_perm_b32 v{o+3}, v{RQ}, v{KQ}, v{SH}")
        a(f"global_store_dwordx4 v{UE}, {v(o,4)}, {s(S_WS,2)} offset:{1024*tp} sc1")
    st.stamp(a, "a_end")
    a("s_waitcnt vmcnt(0)")
    a("s_branch L_k1_fin")

def diag_store(a, st, label_end):
    if not st.on: return
    a(f"s_lshl_b32 s94, s2, 3")
    a(f"s_add_u32 s94, s94, s{S_WAVE}")
    a(f"s_lshl_b32 s94, s94, 6")
    a(f"s_add_u32 s94, s94, {8<<20}")
    a("v_mov_b32 v250, s94")
    for i in range(14):
        a(f"v_mov_b32 v251, s{68+i}" if i else "v_mov_b32 v251, s68")
        a("s_mov_b64 exec, 1")
        a(f"global_store_dword v250, v251, {s(S_WS,2)} offset:{4*i}")
        a("s_mov_b64 exec, -1")

def descriptor(name, vgpr, sgpr=102):
    return f""".p2align 6
.amdhsa_kernel {name}
  .amdhsa_next_free_vgpr {vgpr}
  .amdhsa_next_free_sgpr {sgpr}
  .amdhsa_accum_offset {vgpr}
  .amdhsa_group_segment_fixed_size 0
  .amdhsa_kernarg_size 128
  .amdhsa_user_sgpr_count 2
  .amdhsa_user_sgpr_kernarg_segment_ptr 1
  .amdhsa_system_sgpr_workgroup_id_x 1
.end_amdhsa_kernel
"""

HEADER_LAYOUT = open("cdna_kernels/" + NAME + ".s.ref").read().split("; Override launch geometry")[0]

def build(diag=False):
    import gen_b
    k1 = f"{NAME}_kernel"
    st = Stamps(diag)
    a = Asm()
    k1_prologue(a, st)
    role_a(a, st)
    nA = st.n; st.n = 0
    a.label("L_roleB")
    gen_b.role_b(a, st)
    a("s_waitcnt vmcnt(0)")
    a.label("L_k1_fin")
    a("s_barrier")
    if diag:
        st.n = 0; st.base = 4
    gen_b.phase2_fused(a, st)
    if diag:
        a("s_memrealtime s[84:85]"); a("s_waitcnt lgkmcnt(0)")
        a(f"s_lshl_b32 s94, s2, 3")
        a(f"s_add_u32 s94, s94, s{S_WAVE}")
        a(f"s_lshl_b32 s94, s94, 7")
        a(f"s_add_u32 s94, s94, {8<<20}")
        a("v_mov_b32 v250, s94")
        regs = [68, 69] + list(range(70, 82)) + list(range(4, 14)) + [100, 82, 83, 84] + [85, 86]
        a("s_mov_b64 exec, 1")
        for i, r in enumerate(regs):
            a(f"v_mov_b32 v251, s{r}")
            a(f"global_store_dword v250, v251, {s(S_WS,2)} offset:{4*i}")
            a("s_nop 0")
        a("s_mov_b64 exec, -1")
    a.label("L_k1_end")
    a("s_endpgm")
    t1 = a.finalize()
    out = HEADER_LAYOUT
    out += f"; @launch grid=(256,1,1) block=(512,1,1) lds=163840\n"
    out += '.amdgcn_target "amdgcn-amd-amdhsa--gfx950"\n.text\n'
    out += f".globl {k1}\n.p2align 8\n.type {k1},@function\n{k1}:\n" + t1
    out += '.section .rodata,"a"\n' + descriptor(k1, 256)
    return out

if __name__ == "__main__":
    diag = "diag" in sys.argv
    outp = [x for x in sys.argv[1:] if x.endswith(".s")]
    txt = build(diag)
    open(outp[0] if outp else "k.s", "w").write(txt)
```

```python
import sys
from asmlib import Asm
NAME="gated_mix__ssm_conv_s4__linear_attn_block__prompt"
DI = 12<<20
def make(src, which, outp):
    s = open(src).read()
    k1lab = NAME+"_kernel:\n"
    s = s.replace(k1lab, k1lab + "    s_memrealtime s[100:101]\n", 1)
    def rec(slot, tag):
        return f"""    s_memrealtime s[96:97]
    s_waitcnt lgkmcnt(0)
    s_mov_b32 s{8+slot}, s96
"""
    s = s.replace("L_p2_noarr:\n", "L_p2_noarr:\n" + rec(1, "a"), 1)
    i = s.index("L_p2_wait:\n")
    j = s.index("s_barrier\n", i) + len("s_barrier\n")
    s = s[:j] + rec(2, "g") + s[j:]
    end = f"""    s_memrealtime s[96:97]
    s_waitcnt lgkmcnt(0)
    s_cmp_lg_u32 s48, 0
    s_cbranch_scc1 L_k1_end
    v_mov_b32 v250, s100
    v_mov_b32 v251, s9
    v_mov_b32 v252, s10
    v_mov_b32 v253, s96
    s_lshl_b32 s96, s2, 4
    s_add_u32 s96, s96, {DI}
    v_mov_b32 v249, s96
    s_mov_b64 exec, 1
    s_nop 4
    global_store_dwordx4 v249, v[250:253], s[46:47]
"""
    s = s.replace("L_k1_end:\n", end + "L_k1_end:\n", 1)
    a = Asm()
    a("s_memrealtime s[4:5]")
    a("s_load_dwordx2 s[6:7], s[0:1], 120")
    a("v_lshlrev_b32 v1, 6, v0")
    a(f"v_add_u32 v1, {DI}, v1")
    a("s_waitcnt lgkmcnt(0)")
    for k in range(4):
        a(f"global_load_dwordx4 v[{4+4*k}:{7+4*k}], v1, s[6:7] offset:{16*k}")
    a("s_waitcnt vmcnt(0)")
    c = {"arr":1, "go":2, "end":3, "zero":0}[which]
    a("v_min_u32 v20, v4, v8"); a("v_min_u32 v21, v12, v16"); a("v_min_u32 v20, v20, v21")
    a(f"v_max_u32 v22, v{4+c}, v{8+c}"); a(f"v_max_u32 v23, v{12+c}, v{16+c}"); a("v_max_u32 v22, v22, v23")
    a("s_mov_b32 s8, -1"); a("s_mov_b32 s9, 0"); a("s_mov_b32 s10, 0")
    a.label("L_red")
    a("v_readlane_b32 s11, v20, s10"); a("v_readlane_b32 s12, v22, s10")
    a("s_min_u32 s8, s8, s11"); a("s_max_u32 s9, s9, s12")
    a("s_add_u32 s10, s10, 1"); a("s_cmp_lt_u32 s10, 64"); a("s_cbranch_scc1 L_red")
    a("s_sub_u32 s10, s9, s8")
    if which == "zero": a("s_mov_b32 s10, 0")
    a("s_min_u32 s10, s10, 10000")
    a("s_memrealtime s[4:5]"); a("s_waitcnt lgkmcnt(0)")
    a("s_add_u32 s10, s10, s4")
    a.label("L_sp")
    a("s_memrealtime s[12:13]"); a("s_waitcnt lgkmcnt(0)")
    a("s_sub_u32 s14, s12, s10"); a("s_cmp_lt_i32 s14, 0"); a("s_cbranch_scc1 L_sp")
    a("s_endpgm")
    body = a.finalize()
    lines = s.split("\n"); out = []
    for l in lines:
        if l.startswith("; @launch grid="):
            out.append(f"; @launch kernel={NAME}_kernel grid=(256,1,1) block=(512,1,1) lds=163840")
            out.append("; @launch kernel=cal_kernel grid=(1,1,1) block=(64,1,1) lds=0")
        else: out.append(l)
    s2 = "\n".join(out)
    s2 = s2.replace('.section .rodata,"a"', f'.globl cal_kernel\n.p2align 8\n.type cal_kernel,@function\ncal_kernel:\n{body}.section .rodata,"a"')
    s2 += """.p2align 6
.amdhsa_kernel cal_kernel
  .amdhsa_next_free_vgpr 32
  .amdhsa_next_free_sgpr 32
  .amdhsa_accum_offset 32
  .amdhsa_group_segment_fixed_size 0
  .amdhsa_kernarg_size 128
  .amdhsa_user_sgpr_count 2
  .amdhsa_user_sgpr_kernarg_segment_ptr 1
  .amdhsa_system_sgpr_workgroup_id_x 1
.end_amdhsa_kernel
"""
    open(outp, "w").write(s2)
if __name__ == "__main__":
    src = sys.argv[1]
    for w in ("zero","arr","go","end"):
        make(src, w, src[:-2] + f"_cal_{w}.s")
```

```python
from gen import *
import gen as G

K2_LDS = 163840
K2_VGPR = 256
KV16_BYTES = 32*1024
Z_OFF = KV16_BYTES
G_OFF = KV16_BYTES + 2048

def interleave(main, fill, per, start=0):
    out = []; k = 0
    for i, m in enumerate(main):
        out.append(m)
        if i >= start:
            n = per[i - start] if isinstance(per, (list, tuple)) and i - start < len(per) else (per if not isinstance(per, (list, tuple)) else 0)
            for _ in range(n):
                if k < len(fill): out.append(fill[k]); k += 1
    out += fill[k:]
    return out

def phi_list(src, n, dst, tmpbase, s_l2e, s_eps):
    L = []
    np_ = n // 2
    T = lambda p: tmpbase + 2*(p % 4)
    for g0 in range(0, np_, 4):
        ps = list(range(g0, min(np_, g0+4)))
        for p in ps:
            L.append(f"v_pk_mul_f32 {v(T(p),2)}, {v(src+2*p,2)}, {s(s_l2e,2)}")
        for p in ps:
            x = src + 2*p
            L.append(f"v_exp_f32_e64 v{T(p)}, v{T(p)} clamp")
            L.append(f"v_max_f32 v{x}, 0, v{x}")
            L.append(f"v_exp_f32_e64 v{T(p)+1}, v{T(p)+1} clamp")
            L.append(f"v_max_f32 v{x+1}, 0, v{x+1}")
        for p in ps:
            L.append(f"v_pk_add_f32 {v(src+2*p,2)}, {v(src+2*p,2)}, {s(s_eps,2)}")
        for p in ps:
            L.append(f"v_pk_add_f32 {v(src+2*p,2)}, {v(src+2*p,2)}, {v(T(p),2)}")
        for p in ps:
            x = src + 2*p
            L.append(f"v_cvt_pk_bf16_f32 v{dst+p}, v{x}, v{x+1}")
    return L

def fw_loads(a):
    a("s_lshr_b32 s66, s2, 3"); a("s_and_b32 s66, s66, 3"); a("s_lshl_b32 s66, s66, 2")
    a(f"s_and_b32 s67, s{S_WAVE}, 3"); a("s_add_u32 s66, s66, s67")
    a(f"s_lshr_b32 s67, s{S_WAVE}, 2"); a("s_lshl_b32 s67, s67, 8"); a("s_add_u32 s66, s66, s67")
    a("s_lshl_b32 s66, s66, 10"); a(f"s_add_u32 s66, s66, {WS_WF}")
    a("v_lshlrev_b32 v21, 4, v1"); a("v_add_u32 v21, s66, v21")
    for hl in range(16):
        a(f"global_load_dwordx4 {v(128+4*hl,4)}, v21, {s(S_WS,2)}{G.HL}")
        if hl < 15: a("v_add_u32 v21, 16384, v21")

def role_b(a, st):
    S_RB=51; S_HG=52; S_RG=53; S_CG=54; S_T0=55; S_T1=64; S_T2=65
    SX=56; SW=60
    S_L2E=82; S_EPS=84; S_KVB=86; S_M=88; S_F=91; S_GI=95
    XA=[2,3,4,5]; WA=6; X0=8; X1=9; W=10; GP=11
    ACCK=16; ACCV=32; FR=[48,80]; ACCQ=112; XF=128; GW=112; GT=120
    a(f"s_and_b32 s{S_T0}, s{S_XCD}, 3")
    a(f"s_lshl_b32 s{S_RB}, s{S_T0}, 2")
    a(f"s_and_b32 s{S_T0}, s{S_IDX}, 3")
    a(f"s_add_u32 s{S_RB}, s{S_RB}, s{S_T0}")
    a(f"s_lshr_b32 s{S_T0}, s{S_XCD}, 2")
    a(f"s_lshl_b32 s{S_HG}, s{S_T0}, 2")
    a(f"s_lshr_b32 s{S_T0}, s{S_IDX}, 2")
    a(f"s_add_u32 s{S_HG}, s{S_HG}, s{S_T0}")
    a(f"s_and_b32 s{S_RG}, s{S_WAVE}, 3")
    a(f"s_lshr_b32 s{S_CG}, s{S_WAVE}, 2")
    fm = G.FMODE
    if fm == "zero":
        a(f"s_mov_b32 s{S_F}, 0")
    elif fm == "hg":
        a(f"s_mov_b32 s{S_F}, s{S_HG}")
    elif fm == "rb":
        a(f"s_and_b32 s{S_F}, s{S_IDX}, 3")
        a(f"s_lshl_b32 s{S_F}, s{S_F}, 1")
        a(f"s_and_b32 s{S_T0}, s{S_XCD}, 1")
        a(f"s_add_u32 s{S_F}, s{S_F}, s{S_T0}")
    elif fm == "latin":
        a(f"s_and_b32 s{S_F}, s{S_IDX}, 3")
        a(f"s_lshr_b32 s{S_T0}, s{S_IDX}, 2")
        a(f"s_add_u32 s{S_F}, s{S_F}, s{S_T0}")
        a(f"s_lshl_b32 s{S_F}, s{S_F}, 1")
        a(f"s_lshr_b32 s{S_T0}, s{S_XCD}, 2")
        a(f"s_add_u32 s{S_F}, s{S_F}, s{S_T0}")
        a(f"s_and_b32 s{S_F}, s{S_F}, 7")
    a(f"s_sub_u32 s{S_GI}, s{S_HG}, s{S_F}")
    a(f"s_and_b32 s{S_GI}, s{S_GI}, 7")
    a(f"v_lshrrev_b32 v12, 3, v1")
    a(f"v_and_b32 v13, 7, v1")
    a(f"v_lshrrev_b32 v14, 1, v12")
    a(f"v_xor_b32 v14, v14, v13")
    a(f"s_lshl_b32 s{S_T0}, s{S_RB}, 7")
    a(f"s_lshl_b32 s{S_T1}, s{S_WAVE}, 4")
    a(f"s_add_u32 s{S_T0}, s{S_T0}, s{S_T1}")
    a(f"v_add_u32 v15, s{S_T0}, v12")
    a(f"v_lshlrev_b32 v15, 10, v15")
    a(f"v_lshl_add_u32 v{X0}, v14, 4, v15")
    a(f"v_xor_b32 v14, 4, v14")
    a(f"v_lshl_add_u32 v{X1}, v14, 4, v15")
    a(f"v_add_u32 v{X1}, 8192, v{X1}")
    a(f"v_bfe_u32 v14, v1, 4, 1")
    a(f"v_lshlrev_b32 v14, 2, v14")
    a(f"v_xor_b32 v14, v14, v13")
    a(f"s_lshl_b32 s{S_T0}, s{S_WAVE}, 3")
    a(f"v_add_u32 v15, s{S_T0}, v12")
    a(f"v_mul_u32_u24 v15, 3072, v15")
    a(f"v_lshl_add_u32 v{W}, v14, 4, v15")
    a(f"s_lshl_b32 s{S_T0}, s{S_HG}, 7")
    a(f"v_add_u32 v{W}, s{S_T0}, v{W}")
    a(f"v_and_b32 v15, 3, v0")
    a(f"v_lshlrev_b32 v15, 5, v15")
    a(f"s_lshl_b32 s{S_T0}, s{S_HG}, 7")
    a(f"v_add_u32 v15, s{S_T0}, v15")
    a(f"s_lshl_b32 s{S_M}, s{S_WAVE}, 10")
    a(f"s_lshl_b32 s{S_M+1}, s{S_WAVE}, 11")
    a("s_waitcnt lgkmcnt(0)")
    a(f"s_mov_b32 s{SX}, s{S_U}"); a(f"s_mov_b32 s{SX+1}, s{S_U+1}"); a(f"s_mov_b32 s{SX+2}, {2048*1024}"); a(f"s_mov_b32 s{SX+3}, 0x20000")
    a(f"s_mov_b32 s{SW}, s{S_WQKV}"); a(f"s_mov_b32 s{SW+1}, s{S_WQKV+1}"); a(f"s_mov_b32 s{SW+2}, {512*3072}"); a(f"s_mov_b32 s{SW+3}, 0x20000")
    def chunk_off(i):
        return [f"s_add_u32 s{S_T0}, s{S_F}, {i}", f"s_and_b32 s{S_T0}, s{S_T0}, 7",
                f"s_lshl_b32 s66, s{S_T0}, 7", f"s_mul_i32 s67, s{S_T0}, 196608"]
    def dma(m0s, m0imm, voff, srd, soff):
        return [f"s_add_u32 m0, s{m0s}, {m0imm}", f"buffer_load_dwordx4 v{voff}, {s(srd,4)}, s{soff} offen lds"]
    def chunk_groups(n):
        slot = (n & 3) * 32768
        if n < 8:
            return [chunk_off(n) + dma(S_M+1, slot, X0, SX, 66),
                    dma(S_M+1, slot + 1024, X1, SX, 66),
                    [f"s_add_u32 s{S_T1}, s67, 1024"] + dma(S_M, slot + 16384, W, SW, S_T1),
                    [f"s_add_u32 s{S_T1}, s67, 2048"] + dma(S_M, slot + 24576, W, SW, S_T1)]
        else:
            return [chunk_off(4*(n-8)+k) + dma(S_M, slot + 8192*k, W, SW, 67) for k in range(4)]
    def emit(L):
        for x in L: a(x)
    a(f"global_load_dwordx4 {v(GW,4)}, v15, {s(S_GW,2)}")
    a(f"global_load_dwordx4 {v(GW+4,4)}, v15, {s(S_GW,2)} offset:16")
    for g in chunk_groups(0): emit(g)
    a("s_barrier")
    for g in chunk_groups(1): emit(g)
    if G.DEEP:
        a("s_barrier")
        for g in chunk_groups(2): emit(g)
    st.stamp(a, "b_issued")
    a(f"v_and_b32 v12, 31, v1")
    a(f"s_lshl_b32 s{S_T0}, s{S_RG}, 5")
    a(f"v_add_u32 v12, s{S_T0}, v12")
    a(f"v_lshrrev_b32 v13, 5, v1")
    a(f"v_bfe_u32 v14, v12, 1, 3")
    a(f"v_xor_b32 v14, v14, v13")
    a(f"v_lshlrev_b32 v14, 4, v14")
    a(f"v_lshl_add_u32 v{XA[0]}, v12, 7, v14")
    for ks in range(1,4):
        a(f"v_xor_b32 v{XA[ks]}, {32*ks}, v{XA[0]}")
    a(f"v_and_b32 v12, 15, v1")
    a(f"v_lshrrev_b32 v14, 2, v12")
    a(f"v_lshl_add_u32 v15, v13, 3, v14")
    a(f"v_lshlrev_b32 v15, 7, v15")
    a(f"v_bfe_u32 v7, v1, 4, 1")
    a(f"v_lshlrev_b32 v7, 1, v7")
    a(f"s_lshl_b32 s{S_T0}, s{S_CG}, 2")
    a(f"v_add_u32 v7, s{S_T0}, v7")
    a(f"v_bfe_u32 v13, v12, 1, 1")
    a(f"v_add_u32 v7, v7, v13")
    a(f"v_bfe_u32 v13, v14, 1, 1")
    a(f"v_lshlrev_b32 v13, 2, v13")
    a(f"v_xor_b32 v7, v7, v13")
    a(f"v_lshl_add_u32 v15, v7, 4, v15")
    a(f"v_and_b32 v13, 1, v12")
    a(f"v_lshl_add_u32 v{WA}, v13, 3, v15")
    a(f"s_mov_b32 s{S_L2E}, {LOG2E}"); a(f"s_mov_b32 s{S_L2E+1}, {LOG2E}")
    a(f"s_mov_b32 s{S_EPS}, 0x358637bd"); a(f"s_mov_b32 s{S_EPS+1}, 0x358637bd")
    a(f"s_add_u32 s{S_KVB}, s{S_WS}, {WS_KV}"); a(f"s_addc_u32 s{S_KVB+1}, s{S_WS+1}, 0")
    a(f"v_lshrrev_b32 v12, 2, v0")
    a(f"v_and_b32 v13, 3, v0")
    a(f"v_lshlrev_b32 v13, 1, v13")
    a(f"v_bfe_u32 v14, v12, 1, 3")
    a(f"v_xor_b32 v13, v13, v14")
    a(f"v_lshlrev_b32 v13, 4, v13")
    a(f"v_lshl_add_u32 v12, v12, 7, v13")
    a(f"v_xor_b32 v13, 16, v12")
    def frag_reads(i):
        slot = (i & 1) * 32768; fr = FR[i & 1]; L = []
        for ks in range(4):
            L.append(f"ds_read_b128 {v(XF + 16*i + 4*ks, 4)}, v{XA[ks]} offset:{slot}")
            for T, toff in ((0, 16384), (1, 24576)):
                for rdx in range(2):
                    L.append(f"ds_read_b64_tr_b16 {v(fr + 8*ks + 4*T + 2*rdx, 2)}, v{WA} offset:{slot + toff + 2048*ks + 512*rdx}")
        return L
    def toggle():
        return [f"v_xor_b32 v{r}, 0x10000, v{r}" for r in XA + [WA]]
    def q_reads(n0, n1):
        L = []
        for n in range(n0, n1):
            off = (n // 16) * 32768 + ((n % 16) // 4) * 8192 + (n % 4) * 2048
            for rdx in range(2):
                L.append(f"ds_read_b64_tr_b16 {v(48 + 4*(n % 8) + 2*rdx, 2)}, v{WA} offset:{off + 512*rdx}")
        return L
    a(f"s_waitcnt vmcnt({8 if G.DEEP else 4})")
    a("s_barrier")
    st.stamp(a, "b_first")
    def gate_reads(c):
        lab = f"L_b_gr{c}"
        a(f"s_cmp_eq_u32 s{S_GI}, {c}")
        a(f"s_cbranch_scc0 {lab}")
        off = (c & 3) * 32768
        if off >= 65536:
            a(f"v_add_u32 v12, 65536, v12"); a(f"v_add_u32 v13, 65536, v13"); off -= 65536
        a(f"ds_read_b128 {v(GT,4)}, v12 offset:{off}")
        a(f"ds_read_b128 {v(GT+4,4)}, v13 offset:{off}")
        a.label(lab)
    def gate_dot(c):
        lab = f"L_b_gd{c}"
        a(f"s_cmp_eq_u32 s{S_GI}, {c}")
        a(f"s_cbranch_scc0 {lab}")
        a(f"v_mov_b32 v{GP}, 0")
        for k2 in range(8): a(f"v_dot2_f32_bf16 v{GP}, v{GT+k2}, v{GW+k2}, v{GP}")
        a.label(lab)
    emit(frag_reads(0))
    gate_reads(0)
    if G.DEEP:
        for g in chunk_groups(3): emit(g)
        sched = {0: [4], 1: [5], 2: [6], 3: [7], 4: [8], 5: [9]}
        vmw = [8, 8, 8, 8, 8, 8, 8, 4]
    else:
        sched = {0: [2, 3], 1: [4], 2: [5, 6], 3: [7], 4: [8], 5: [9]}
        vmw = [0, 4, 4, 8, 8, 8, 8, 5]
    for i in range(8):
        fr = FR[i & 1]
        mm = []
        for ks in range(4):
            x = v(XF + 16*i + 4*ks, 4)
            cK = "0" if (i == 0 and ks == 0) else v(ACCK,16)
            cV = "0" if (i == 0 and ks == 0) else v(ACCV,16)
            mm.append(f"v_mfma_f32_32x32x16_bf16 {v(ACCK,16)}, {x}, {v(fr+8*ks,4)}, {cK}")
            mm.append(f"v_mfma_f32_32x32x16_bf16 {v(ACCV,16)}, {x}, {v(fr+8*ks+4,4)}, {cV}")
        npre = (G.NPRE if G.DEEP else 8) if i == 0 else G.NPRE
        a("s_waitcnt lgkmcnt(0)")
        emit(mm[:npre])
        gate_dot(i)
        pre = []
        if (i + 1) in (2, 4, 6, 8): pre += toggle()
        emit(pre)
        a(f"s_waitcnt vmcnt({vmw[i]})")
        a("s_barrier")
        if G.ITERSTAMP: st.stamp(a, f"it{i}")
        if i + 1 <= 7: gate_reads(i + 1)
        rd = frag_reads(i+1) if i + 1 <= 7 else q_reads(0, 6)
        groups = []
        for n in sched.get(i, []): groups += chunk_groups(n)
        rest = mm[npre:]
        seq = []
        if rest:
            nm = len(rest)
            k = 0; gi = 0
            for m in range(nm):
                seq.append(rest[m])
                take = (len(rd) - k + (nm - m) - 1) // (nm - m) if m < nm - 1 else len(rd) - k
                take = min(take, 3) if m < nm - 1 else take
                seq += rd[k:k+take]; k += take
                if m % 2 == 1 or m == nm - 1:
                    left = len(groups) - gi
                    slots_left = max(1, (nm - m + 1) // 2)
                    ng = left if m == nm - 1 else (left + slots_left - 1) // slots_left
                    for _ in range(ng):
                        seq += groups[gi]; gi += 1
        else:
            seq += rd
            for g_ in groups: seq += g_
        if i == 6:
            seq += ["v_and_b32 v7, 15, v1", "v_lshlrev_b32 v7, 8, v7", f"v_add_u32 v7, {WS_KV + WOC_OFF}, v7", "v_and_b32 v5, 7, v1", "v_lshlrev_b32 v5, 2, v5",
                    f"s_cmp_eq_u32 s{S_WAVE}, 0", "s_cbranch_scc0 L_b_nodbg",
                    f"global_load_dword v15, v7, {s(S_WS,2)} sc1", f"global_load_dword v14, v5, {s(S_DBG,2)} sc1", "L_b_nodbg:"]
        emit(seq)
    st.stamp(a, "b_pass1")
    if G.ITERSTAMP: st.on = False
    PK=80; VV=88; ONE=96; TMP=100
    PF = 6
    KVL = 65536
    D1=ACCK; D2=ACCV
    def qm(n):
        c = "0" if n == 0 else v(ACCQ,16)
        return f"v_mfma_f32_32x32x16_bf16 {v(ACCQ,16)}, {v(48+4*(n%8),4)}, {v(XF+4*n,4)}, {c}"
    fill = [f"v_add_f32_dpp v{GP}, v{GP}, v{GP} quad_perm:[1,0,3,2] row_mask:0xf bank_mask:0xf"]
    fill += [f"v_mov_b32 v{ONE+k}, 0x3f803f80" for k in range(4)]
    fill += phi_list(ACCK, 16, PK, TMP, S_L2E, S_EPS)
    fill += [f"v_add_f32_dpp v{GP}, v{GP}, v{GP} quad_perm:[2,3,0,1] row_mask:0xf bank_mask:0xf"]
    fill += [f"v_cvt_pk_bf16_f32 v{VV+p}, v{ACCV+2*p}, v{ACCV+2*p+1}" for p in range(8)]
    kvm = []
    for sg in range(2):
        c = "0" if sg == 0 else v(D1,16)
        kvm.append(f"v_mfma_f32_32x32x16_bf16 {v(D1,16)}, {v(PK+4*sg,4)}, {v(VV+4*sg,4)}, {c}")
    for sg in range(2):
        c = "0" if sg == 0 else v(D2,16)
        kvm.append(f"v_mfma_f32_32x32x16_bf16 {v(D2,16)}, {v(PK+4*sg,4)}, {v(ONE,4)}, {c}")
    fill += kvm
    fill += [
      f"v_and_b32 v12, 15, v1", f"v_bfe_u32 v13, v1, 4, 1", f"v_lshrrev_b32 v7, 5, v1",
      f"v_mul_u32_u24 v12, 68, v12", f"v_mul_u32_u24 v8, 1156, v13", f"v_add_u32 v12, v12, v8",
      f"v_lshl_add_u32 v12, v7, 5, v12",
      f"s_mul_i32 s{S_T0}, s{S_RG}, 4624", f"s_mul_i32 s{S_T1}, s{S_CG}, 2312", f"s_add_u32 s{S_T0}, s{S_T0}, s{S_T1}",
      f"s_add_u32 s{S_T0}, s{S_T0}, {KVL}", f"v_add_u32 v12, s{S_T0}, v12",
      f"v_cmp_eq_u32_e64 s[98:99], 1, v13",
      f"s_lshr_b32 s64, s{S_WAVE}, 1", f"s_and_b32 s65, s{S_WAVE}, 1",
      f"v_lshrrev_b32 v2, 4, v1", f"v_and_b32 v3, 15, v1", f"s_lshl_b32 s{S_T0}, s65, 3", f"v_add_u32 v2, s{S_T0}, v2",
      f"v_mul_u32_u24 v8, 68, v2", f"v_lshl_add_u32 v8, v3, 2, v8", f"s_mul_i32 s{S_T0}, s64, 1156",
      f"s_add_u32 s{S_T0}, s{S_T0}, {KVL}", f"v_add_u32 v8, s{S_T0}, v8",
      f"s_lshl_b32 s{S_T0}, s{S_HG}, 2", f"s_add_u32 s{S_T0}, s{S_T0}, s64", f"s_lshl_b32 s{S_T1}, s{S_T0}, 10",
      f"v_lshlrev_b32 v9, 6, v2", f"v_lshl_add_u32 v9, v3, 2, v9", f"v_add_u32 v9, s{S_T1}, v9",
      ]
    fill += [f"v_cndmask_b32_e64 v{100+j}, v{D1+j}, v{D1+8+j}, s[98:99]" for j in range(8)]
    fill += [f"v_cndmask_b32_e64 v{80+j}, v{D2+j}, v{D2+8+j}, s[98:99]" for j in range(8)]
    GL = KVL + 4*4624
    nper = (len(fill) + 14) // 15
    k = 0
    for n in range(16):
        issued = min(16, n + PF)
        a(f"s_waitcnt lgkmcnt({2*(issued - n - 1)})")
        a(qm(n))
        if n + PF < 16: emit(q_reads(n + PF, n + PF + 1))
        if n >= 1:
            emit(fill[k:k+nper]); k += nper
    emit(fill[k:])
    st.stamp(a, "b_pass2")
    for j in range(0, 8, 2):
        a(f"ds_write2_b32 v12, v{100+j}, v{101+j} offset0:{j} offset1:{j+1}")
    a(f"v_add_u32 v12, {16*68}, v12")
    a("s_mov_b32 s66, 0x00010001"); a("s_mov_b32 s67, 0x00010001")
    a("s_mov_b64 exec, s[66:67]")
    for j in range(0, 8, 2):
        a(f"ds_write2_b32 v12, v{80+j}, v{81+j} offset0:{j} offset1:{j+1}")
    a("s_mov_b32 s66, 0x11111111"); a("s_mov_b32 s67, 0x11111111"); a("s_mov_b64 exec, s[66:67]")
    a(f"v_add_u32 v13, {GL}, v0")
    a(f"ds_write_b32 v13, v{GP}")
    a("s_mov_b64 exec, -1")
    a("s_waitcnt vmcnt(0)")
    a(f"s_cmp_eq_u32 s{S_WAVE}, 0")
    a("s_cbranch_scc0 L_b_wfok")
    a.label("L_b_wfpoll")
    sum16(a, 15, 66)
    sum8(a, 14, 67)
    a("s_add_u32 s66, s66, s67")
    a("s_cmp_eq_u32 s66, 136")
    a("s_cbranch_scc1 L_b_wfok")
    a("s_sleep 8")
    a("v_and_b32 v5, 15, v1"); a("v_lshlrev_b32 v5, 8, v5"); a(f"v_add_u32 v5, {WS_KV + WOC_OFF}, v5")
    a(f"global_load_dword v15, v5, {s(S_WS,2)} sc1")
    a("v_and_b32 v5, 7, v1"); a("v_lshlrev_b32 v5, 2, v5")
    a(f"global_load_dword v14, v5, {s(S_DBG,2)} sc1")
    a("s_waitcnt vmcnt(0)")
    a("s_branch L_b_wfpoll")
    a.label("L_b_wfok")
    a("s_waitcnt lgkmcnt(0)")
    a("s_barrier")
    st.stamp(a, "b_kvbar")
    for n in range(2):
        for rg in range(4):
            a(f"ds_read_b32 v{80+4*n+rg}, v8 offset:{rg*4624 + n*4*68}")
    a(f"s_cmp_eq_u32 s{S_WAVE}, 0")
    a("s_cbranch_scc0 L_b_nz0")
    a("v_lshrrev_b32 v2, 4, v1"); a("v_and_b32 v3, 15, v1")
    a("v_mul_u32_u24 v2, 1156, v2"); a("v_lshl_add_u32 v2, v3, 2, v2")
    a(f"v_add_u32 v2, {KVL + 16*68}, v2")
    for rg in range(4):
        a(f"ds_read_b32 v{88+rg}, v2 offset:{rg*4624}")
    a(f"s_lshl_b32 s66, s{S_HG}, 8"); a(f"s_add_u32 s66, s66, {Z_OFF}")
    a("v_lshlrev_b32 v10, 2, v1"); a("v_add_u32 v10, s66, v10")
    a("s_branch L_b_nz1")
    a.label("L_b_nz0")
    a(f"s_cmp_le_u32 s{S_WAVE}, 2")
    a("s_cbranch_scc0 L_b_nz1")
    a(f"s_sub_u32 s66, s{S_WAVE}, 1"); a("s_lshl_b32 s66, s66, 8")
    a("v_lshlrev_b32 v2, 2, v1"); a("v_add_u32 v2, s66, v2")
    a(f"v_add_u32 v3, {GL}, v2")
    a("ds_read_b32 v88, v3")
    a("v_mov_b32 v89, 0"); a("v_mov_b32 v90, 0"); a("v_mov_b32 v91, 0")
    a(f"s_lshl_b32 s66, s{S_RB}, 9"); a(f"s_add_u32 s66, s66, {G_OFF}")
    a("v_add_u32 v10, s66, v2")
    a.label("L_b_nz1")
    emit(q_reads(16, 16 + PF))
    a(f"s_waitcnt lgkmcnt({2*PF})")
    for n in range(2):
        a(f"v_add_f32 v{80+4*n}, v{80+4*n}, v{81+4*n}")
        a(f"v_add_f32 v{82+4*n}, v{82+4*n}, v{83+4*n}")
    for n in range(2):
        a(f"v_add_f32 v{80+4*n}, v{80+4*n}, v{82+4*n}")
    a(f"global_atomic_add_f32 v9, v80, {s(S_KVB,2)} sc1")
    a(f"global_atomic_add_f32 v9, v84, {s(S_KVB,2)} offset:256 sc1")
    a(f"s_cmp_le_u32 s{S_WAVE}, 2")
    a("s_cbranch_scc0 L_b_noz")
    a("v_add_f32 v88, v88, v89"); a("v_add_f32 v90, v90, v91"); a("v_add_f32 v88, v88, v90")
    a(f"global_atomic_add_f32 v10, v88, {s(S_KVB,2)} sc1")
    a.label("L_b_noz")
    st.stamp(a, "b_atom")
    emit([f"s_lshl_b32 s{S_T0}, s{S_RB}, 2", f"s_add_u32 s{S_T0}, s{S_T0}, s{S_RG}", f"s_lshl_b32 s{S_T0}, s{S_T0}, 5",
          f"s_lshl_b32 s{S_T1}, s{S_HG}, 2", f"s_add_u32 s{S_T0}, s{S_T0}, s{S_T1}", f"s_lshl_b32 s{S_T1}, s{S_CG}, 1",
          f"s_add_u32 s{S_T0}, s{S_T0}, s{S_T1}", f"s_lshl_b32 s{S_T0}, s{S_T0}, 10", f"s_add_u32 s{S_T0}, s{S_T0}, {WS_PQ}",
          f"v_lshlrev_b32 v12, 4, v1", f"v_add_u32 v12, s{S_T0}, v12"])
    for n in range(16, 32):
        issued = min(32, n + PF)
        a(f"s_waitcnt lgkmcnt({2*(issued - n - 1)})")
        a(qm(n))
        if n + PF < 32: emit(q_reads(n + PF, n + PF + 1))
    emit(phi_list(ACCQ, 8, 40, 32, S_L2E, S_EPS))
    a(f"global_store_dwordx4 v12, v[40:43], {s(S_WS,2)} sc1")
    emit(phi_list(ACCQ+8, 8, 44, 32, S_L2E, S_EPS))
    a(f"global_store_dwordx4 v12, v[44:47], {s(S_WS,2)} offset:1024 sc1")
    st.stamp(a, "b_end")
    if G.ITERSTAMP: st.on = True


CNT_OFF = 34816 + 8192
NSHARD = 16

def phase2_fused(a, st):
    S_W=S_WAVE; S_SB=51; S_CB=52; S_T0=53; S_T1=54; S_CW=55; S_KH=56; SRD=60; S_M0=57; S_SO=58; SKV=64; S_CN=86
    def emit(L):
        for x in L: a(x)
    ws = s(S_WS,2)
    a(f"s_add_u32 s{S_CN}, s{S_WS}, {WS_KV + CNT_OFF}")
    a(f"s_addc_u32 s{S_CN+1}, s{S_WS+1}, 0")
    a(f"s_cmp_lg_u32 s{S_W}, 0")
    a("s_cbranch_scc1 L_p2_noarr")
    a(f"s_lshr_b32 s{S_T0}, s2, 3")
    a(f"s_and_b32 s{S_T0}, s{S_T0}, 7")
    a(f"s_lshl_b32 s{S_T0}, s{S_T0}, 8")
    a(f"v_and_b32 v2, 7, v0")
    a(f"v_lshlrev_b32 v2, 11, v2")
    a(f"v_add_u32 v2, s{S_T0}, v2")
    a("v_mov_b32 v3, 1")
    a("s_mov_b64 exec, 0xff")
    a(f"global_atomic_add v2, v3, {s(S_CN,2)} sc1")
    a("s_mov_b64 exec, -1")
    a.label("L_p2_noarr")
    st.stamp(a, "p2_arr")
    if st.on:
        a("s_memrealtime s[96:97]"); a("s_waitcnt lgkmcnt(0)"); a("s_mov_b32 s82, s96")
    a(f"s_and_b32 s{S_T0}, s2, 7")
    a(f"s_lshr_b32 s{S_T1}, s2, 3")
    a(f"s_and_b32 s{S_CB}, s{S_T1}, 3")
    a(f"s_lshr_b32 s{S_T1}, s{S_T1}, 2")
    a(f"s_lshl_b32 s{S_SB}, s{S_T0}, 3")
    a(f"s_add_u32 s{S_SB}, s{S_SB}, s{S_T1}")
    a(f"s_and_b32 s{S_CW}, s{S_W}, 3")
    a(f"s_lshr_b32 s{S_KH}, s{S_W}, 2")
    M=2; HH=3
    a(f"v_and_b32 v1, 63, v0")
    a(f"v_and_b32 v{M}, 31, v1")
    a(f"v_lshrrev_b32 v{HH}, 5, v1")
    a(f"v_lshlrev_b32 v4, 4, v1")
    a(f"v_and_b32 v7, 7, v1")
    a(f"v_lshlrev_b32 v7, 8, v7")
    a(f"s_and_b32 s92, s2, 7"); a("s_lshl_b32 s92, s92, 11")
    a(f"v_add_u32 v7, s92, v7")
    fw_loads(a)
    a(f"s_lshl_b32 s{S_T0}, s{S_SB}, 5")
    a(f"s_lshl_b32 s{S_T1}, s{S_W}, 2")
    a(f"s_add_u32 s{S_T0}, s{S_T0}, s{S_T1}")
    a(f"s_lshl_b32 s{S_T0}, s{S_T0}, 10")
    a(f"s_add_u32 s{S_T0}, s{S_T0}, {WS_PQ}")
    a(f"v_add_u32 v5, s{S_T0}, v4")
    a(f"s_lshl_b32 s{S_T0}, s{S_SB}, 7")
    a(f"s_add_u32 s{S_T0}, s{S_T0}, {WS_KV + G_OFF}")
    a(f"v_lshlrev_b32 v8, 2, v{M}")
    a(f"v_add_u32 v8, s{S_T0}, v8")
    a(f"s_lshl_b32 s{S_T0}, s{S_CB}, 7")
    a(f"s_lshl_b32 s{S_T1}, s{S_CW}, 5")
    a(f"s_add_u32 s{S_T0}, s{S_T0}, s{S_T1}")
    a(f"v_add_u32 v9, s{S_T0}, v{M}")
    a(f"v_lshlrev_b32 v9, 12, v9")
    a(f"v_lshl_add_u32 v9, v{HH}, 4, v9")
    a(f"s_lshl_b32 s{S_T0}, s{S_SB}, 6")
    a(f"v_add_u32 v9, s{S_T0}, v9")
    OF=65536; ZS=32768; XCHG=98304
    OFA=12; OWN=11
    a(f"s_lshl_b32 s{S_T0}, s{S_KH}, 14")
    a(f"s_add_u32 s{S_T0}, s{S_T0}, {OF}")
    a(f"v_add_u32 v{OFA}, s{S_T0}, v4")
    a(f"s_lshl_b32 s{S_T0}, s{S_W}, 12")
    a(f"s_add_u32 s{S_T1}, s{S_T0}, {OF}")
    a(f"v_add_u32 v{OWN}, s{S_T1}, v4")
    KVA=[16,17,18,19]
    a(f"v_lshlrev_b32 v24, 6, v{M}")
    a(f"v_lshl_add_u32 v24, v{HH}, 5, v24")
    a(f"v_add_u32 v24, s{S_T0}, v24")
    a(f"s_lshl_b32 s{S_T1}, s{S_W}, 8")
    a(f"s_add_u32 s{S_T1}, s{S_T1}, {ZS}")
    a(f"v_lshlrev_b32 v25, 5, v{HH}")
    a(f"v_add_u32 v25, s{S_T1}, v25")
    a(f"v_cmp_gt_u32_e64 s[98:99], 16, v{M}")
    a(f"v_cndmask_b32_e64 v{KVA[0]}, v25, v24, s[98:99]")
    a(f"v_mov_b32 v26, 64"); a(f"v_mov_b32 v27, 1024")
    a(f"v_cndmask_b32_e64 v26, v26, v27, s[98:99]")
    for n in range(1, 4):
        a(f"v_add_u32 v{KVA[n]}, v{KVA[n-1]}, v26")
    a(f"v_and_b32 v192, 7, v{M}")
    a(f"v_and_b32 v193, 1, v192")
    a(f"v_lshlrev_b32 v193, 4, v193")
    a(f"v_mov_b32 v194, 0x3f80")
    a(f"v_lshlrev_b32 v194, v193, v194")
    a(f"v_lshrrev_b32 v192, 1, v192")
    a(f"v_bfe_u32 v193, v{M}, 3, 1")
    a(f"v_cmp_eq_u32_e64 s[98:99], v193, v{HH}")
    a(f"v_cndmask_b32_e64 v194, 0, v194, s[98:99]")
    a(f"v_lshrrev_b32 v193, 4, v{M}")
    a(f"v_lshl_add_u32 v192, v193, 2, v192")
    for k in range(8):
        a(f"v_cmp_eq_u32_e64 s[98:99], {k}, v192")
        a(f"v_cndmask_b32_e64 v{24+k}, 0, v194, s[98:99]")
    a(f"s_add_u32 s{SKV}, s{S_WS}, {WS_KV}"); a(f"s_addc_u32 s{SKV+1}, s{S_WS+1}, 0"); a(f"s_mov_b32 s{SKV+2}, {KV16_BYTES + 2048}"); a(f"s_mov_b32 s{SKV+3}, 0x20000")
    a(f"s_lshl_b32 s{S_T0}, s{S_SB}, 5")
    a(f"v_add_u32 v6, s{S_T0}, v{M}")
    a(f"v_lshlrev_b32 v6, 10, v6")
    a(f"v_lshl_add_u32 v6, v{HH}, 4, v6")
    a(f"s_lshl_b32 s{S_T0}, s{S_CB}, 8")
    a(f"s_lshl_b32 s{S_T1}, s{S_CW}, 6")
    a(f"s_add_u32 s{S_T0}, s{S_T0}, s{S_T1}")
    a(f"s_lshl_b32 s{S_T1}, s{S_KH}, 5")
    a(f"s_add_u32 s{S_T0}, s{S_T0}, s{S_T1}")
    a(f"v_add_u32 v6, s{S_T0}, v6")
    FW=128
    a(f"s_cmp_lg_u32 s{S_W}, 0")
    a("s_cbranch_scc1 L_p2_wait")
    a("s_mov_b32 s92, 0")
    a("s_mov_b64 exec, 0xff")
    a.label("L_p2_poll")
    a(f"global_load_dword v13, v7, {s(S_CN,2)} sc1")
    a("s_waitcnt vmcnt(0)")
    a(f"v_add_u32_dpp v13, v13, v13 row_shr:1 row_mask:0xf bank_mask:0xf bound_ctrl:0")
    a(f"v_add_u32_dpp v13, v13, v13 row_shr:2 row_mask:0xf bank_mask:0xf bound_ctrl:0")
    a(f"v_add_u32_dpp v13, v13, v13 row_shr:4 row_mask:0xf bank_mask:0xf bound_ctrl:0")
    a(f"v_readlane_b32 s93, v13, 7")
    a("s_add_u32 s92, s92, 1")
    a("s_cmp_eq_u32 s93, 256")
    a("s_cbranch_scc1 L_p2_got")
    a(f"s_sleep {G.PSLEEP}")
    a("s_cmp_lt_u32 s92, 0x100000")
    a("s_cbranch_scc1 L_p2_poll")
    a.label("L_p2_got")
    a("s_mov_b64 exec, -1")
    a.label("L_p2_wait")
    a("s_waitcnt lgkmcnt(0)")
    a("s_barrier")
    st.stamp(a, "p2_go")
    if st.on:
        a("s_memrealtime s[96:97]"); a("s_waitcnt lgkmcnt(0)"); a("s_mov_b32 s83, s96")
    PQ=32; KVF=64; G_=13; AT=48
    a(f"s_lshl_b32 s{S_M0}, s{S_W}, 12")
    for n in range(4):
        a(f"s_add_u32 m0, s{S_M0}, {1024*n}")
        a(f"s_add_u32 s{S_T0}, s{S_M0}, {1024*n}")
        a(f"buffer_load_dwordx4 v4, {s(SKV,4)}, s{S_T0} offen{G.HL} lds")
    a(f"s_lshl_b32 s{S_T1}, s{S_W}, 8")
    a(f"s_add_u32 m0, s{S_T1}, {ZS}")
    a(f"s_add_u32 s{S_T0}, s{S_T1}, {Z_OFF}")
    a("s_mov_b64 exec, 0xffff")
    a(f"buffer_load_dwordx4 v4, {s(SKV,4)}, s{S_T0} offen{G.HL} lds")
    a("s_mov_b64 exec, -1")
    for n in range(4):
        a(f"global_load_dwordx4 {v(PQ+4*n,4)}, v5, {ws} offset:{n*1024}{G.HL}")
    a("s_waitcnt vmcnt(4)")
    for n in range(4):
        a(f"ds_read_b128 {v(KVF+8*n,4)}, v{KVA[n]}")
        a(f"ds_read_b128 {v(KVF+8*n+4,4)}, v{KVA[n]} offset:16")
    a("s_waitcnt vmcnt(0) lgkmcnt(0)")
    st.stamp(a, "p2_in")
    a(f"global_load_dword v{G_}, v8, {ws}{G.HL}")
    a(f"s_cmp_eq_u32 s{S_KH}, 0")
    a("s_mov_b32 s93, 0xffff0000")
    a("s_cselect_b32 s92, 0x0000ffff, s93")
    a("s_mov_b32 s93, s92")
    a("s_mov_b64 exec, s[92:93]")
    a(f"global_load_dwordx4 {v(AT,4)}, v9, {ws}{G.HL}")
    a(f"global_load_dwordx4 {v(AT+4,4)}, v9, {ws} offset:32{G.HL}")
    a("s_mov_b64 exec, -1")
    D=192; AF=224; OO=232
    a("s_mov_b32 s92, 0x358637bd")
    def kvcvt(n):
        for k in range(4):
            a(f"v_cvt_pk_bf16_f32 v{AF+4*(n%2)+k}, v{KVF+8*n+2*k}, v{KVF+8*n+2*k+1}")
    def omfma(n):
        a(f"v_mfma_f32_32x32x16_bf16 {v(D+16*(n%2),16)}, {v(AF+4*(n%2),4)}, {v(PQ+4*n,4)}, 0")
    def onorm(n):
        d = D + 16*(n%2); o = OO + 4*(n%2)
        a(f"v_add_f32 v{d+8}, s92, v{d+8}")
        a(f"v_rcp_f32 v{d+8}, v{d+8}")
        for k in range(0, 8, 2):
            a(f"v_pk_mul_f32 {v(d+k,2)}, {v(d+k,2)}, {v(d+8,2)} op_sel_hi:[1,0]")
        for k in range(4):
            a(f"v_cvt_pk_bf16_f32 v{o+k}, v{d+2*k}, v{d+2*k+1}")
        a(f"ds_write_b128 v{OWN}, {v(o,4)} offset:{1024*n}")
    kvcvt(0); omfma(0); kvcvt(1); omfma(1)
    onorm(0); kvcvt(2); omfma(2); onorm(1); kvcvt(3); omfma(3); onorm(2); onorm(3)
    ACCA=240; ACCB=96
    a(f"s_waitcnt lgkmcnt(0)")
    a("s_barrier")
    st.stamp(a, "p2_of")
    FO=192
    for hl in range(8):
        a(f"ds_read_b128 {v(FO+4*hl,4)}, v{OFA} offset:{1024*hl}")
    for hl in range(16):
        left = min(16, hl + 8) - hl - 1
        a(f"s_waitcnt lgkmcnt({left})")
        c = "0" if hl == 0 else v(ACCB,16)
        a(f"v_mfma_f32_32x32x16_bf16 {v(ACCB,16)}, {v(FW+4*hl,4)}, {v(FO+4*(hl%8),4)}, {c}")
        if hl + 8 < 16: a(f"ds_read_b128 {v(FO+4*(hl%8),4)}, v{OFA} offset:{1024*(hl+8)}")
        if hl == 11:
            a(f"s_waitcnt vmcnt(0)")
            a(f"v_mul_f32 v{G_}, 0xbfb8aa3b, v{G_}")
            a(f"v_exp_f32 v{G_}, v{G_}")
        if hl == 12:
            a(f"v_add_f32 v{G_}, 1.0, v{G_}")
            a(f"v_rcp_f32 v{G_}, v{G_}")
    a(f"v_mfma_f32_32x32x16_bf16 {v(ACCA,16)}, {v(AT,4)}, v[24:27], 0")
    a(f"v_mfma_f32_32x32x16_bf16 {v(ACCA,16)}, {v(AT+4,4)}, v[28:31], {v(ACCA,16)}")
    st.stamp(a, "p2_gemm")
    XA_=20
    a(f"s_lshl_b32 s{S_T0}, s{S_CW}, 12")
    a(f"s_add_u32 s{S_T0}, s{S_T0}, {XCHG}")
    a(f"v_add_u32 v{XA_}, s{S_T0}, v4")
    a(f"s_cmp_eq_u32 s{S_KH}, 0")
    a("s_cbranch_scc0 L_p2_x1")
    a(f"ds_write_b128 v{XA_}, {v(ACCB+8,4)} offset:0")
    a(f"ds_write_b128 v{XA_}, {v(ACCB+12,4)} offset:1024")
    a("s_waitcnt lgkmcnt(0)")
    a("s_barrier")
    a(f"ds_read_b128 v[32:35], v{XA_} offset:2048")
    a(f"ds_read_b128 v[36:39], v{XA_} offset:3072")
    a("s_waitcnt lgkmcnt(0)")
    for k in range(8):
        a(f"v_add_f32 v{40+k}, v{ACCB+k}, v{32+k}")
        a(f"v_sub_f32 v{48+k}, v{ACCA+k}, v{40+k}")
    a("s_branch L_p2_x2")
    a.label("L_p2_x1")
    a(f"ds_write_b128 v{XA_}, {v(ACCB,4)} offset:2048")
    a(f"ds_write_b128 v{XA_}, {v(ACCB+4,4)} offset:3072")
    a("s_waitcnt lgkmcnt(0)")
    a("s_barrier")
    a(f"ds_read_b128 v[32:35], v{XA_} offset:0")
    a(f"ds_read_b128 v[36:39], v{XA_} offset:1024")
    a("s_waitcnt lgkmcnt(0)")
    for k in range(8):
        a(f"v_add_f32 v{40+k}, v{ACCB+8+k}, v{32+k}")
        a(f"v_sub_f32 v{48+k}, v{ACCA+8+k}, v{40+k}")
    a.label("L_p2_x2")
    for k in range(8):
        a(f"v_fma_f32 v{48+k}, v{48+k}, v{G_}, v{40+k}")
    P=56
    for k in range(4):
        a(f"v_cvt_pk_bf16_f32 v{P+k}, v{48+2*k}, v{48+2*k+1}")
    a(f"v_permlane32_swap_b32 v{P}, v{P+2}")
    a(f"v_permlane32_swap_b32 v{P+1}, v{P+3}")
    a(f"global_store_dwordx4 v6, {v(P,4)}, {s(S_OUT,2)}")
    st.stamp(a, "p2_end")
```

```python
import sys, math
from asmlib import Asm

NAME = "gated_mix__ssm_conv_s4__linear_attn_block__prompt"
WS_AT = 0
WS_PQ = 2 << 20
WS_KV = 4 << 20
ZERO_BYTES = 32*1024 + 2048 + 8192 + 16*256
NPRE = int(([x[5:] for x in sys.argv if x.startswith('npre=')] + ['0'])[0])
DEEP = 'shallow' not in sys.argv
ITERSTAMP = 'iter' in sys.argv
FMODE = ([x[2:] for x in sys.argv if x.startswith('f=')] + ['rb'])[0]
PNT = '' if 'nont' in sys.argv else ' nt'
LOG2E = 0x3fb8aa3b
INV2PI = 0x3e22f983

FT_STRIDE = 60 * 528
ROWB = 528
U_BASE = 4 * FT_STRIDE
U_CH = 9280
U1_OFF = 4640
KC1 = 4224
XCH = 8704

def v(i, n=1):
    return f"v{i}" if n == 1 else f"v[{i}:{i+n-1}]"
def s(i, n=1):
    return f"s{i}" if n == 1 else f"s[{i}:{i+n-1}]"

class Stamps:
    def __init__(self, on): self.on = on; self.n = 0; self.base = 70
    def stamp(self, a, name):
        if not self.on: return
        a(f"s_memtime s[96:97]")
        a(f"s_waitcnt lgkmcnt(0)")
        a(f"s_mov_b32 s{self.base+self.n}, s96")
        self.n += 1

def cmul(a, dst, x, y, tmp):
    a(f"v_pk_mul_f32 {v(tmp,2)}, {v(x,2)}, {v(y,2)} op_sel:[0,0] op_sel_hi:[0,1]")
    a(f"v_pk_fma_f32 {v(dst,2)}, {v(x,2)}, {v(y,2)}, {v(tmp,2)} op_sel:[1,1,0] op_sel_hi:[1,0,1] neg_lo:[1,0,0]")

def cmul2(a, dsts, xs, ys, tmps):
    for d, x, y, t in zip(dsts, xs, ys, tmps):
        a(f"v_pk_mul_f32 {v(t,2)}, {v(x,2)}, {v(y,2)} op_sel:[0,0] op_sel_hi:[0,1]")
    for d, x, y, t in zip(dsts, xs, ys, tmps):
        a(f"v_pk_fma_f32 {v(d,2)}, {v(x,2)}, {v(y,2)}, {v(t,2)} op_sel:[1,1,0] op_sel_hi:[1,0,1] neg_lo:[1,0,0]")

def cexp(a, dst, ar, ai, scale, t0, t1):
    if scale is None:
        a(f"v_exp_f32 {v(t0)}, {v(ar)}")
        a(f"v_fract_f32 {v(t1)}, {v(ai)}")
    else:
        a(f"v_mul_f32 {v(t0)}, {scale}, {v(ar)}")
        a(f"v_mul_f32 {v(t1)}, {scale}, {v(ai)}")
        a(f"v_exp_f32 {v(t0)}, {v(t0)}")
        a(f"v_fract_f32 {v(t1)}, {v(t1)}")
    a(f"v_cos_f32 {v(dst)}, {v(t1)}")
    a(f"v_sin_f32 {v(dst+1)}, {v(t1)}")
    a(f"v_mul_f32 {v(dst)}, {v(dst)}, {v(t0)}")
    a(f"v_mul_f32 {v(dst+1)}, {v(dst+1)}, {v(t0)}")

S_U=16; S_ARE=18; S_AIM=20; S_BRE=22; S_BIM=24; S_CRE=26; S_CIM=28; S_LDT=30
S_DSK=32; S_WQKV=36; S_WO=38; S_GW=40; S_OUT=42; S_DBG=44; S_WS=46
S_WAVE=48; S_XCD=49; S_IDX=50

def k1_prologue(a, st):
    a("s_cmp_ge_u32 s2, 256")
    a("s_cbranch_scc1 L_k1_end")
    a("s_load_dwordx16 s[16:31], s[0:1], 0")
    a("s_load_dwordx4 s[32:35], s[0:1], 64")
    a("s_load_dwordx4 s[36:39], s[0:1], 80")
    a("s_load_dwordx4 s[40:43], s[0:1], 96")
    a("s_load_dwordx4 s[44:47], s[0:1], 112")
    if st.on:
        a("s_memtime s[68:69]")
        a("s_memrealtime s[100:101]")
    a("v_lshrrev_b32 v1, 6, v0")
    a(f"v_readfirstlane_b32 s{S_WAVE}, v1")
    a("v_and_b32 v1, 63, v0")
    a(f"s_and_b32 s{S_XCD}, s2, 7")
    a(f"s_lshr_b32 s{S_IDX}, s2, 4")
    a("s_bitcmp1_b32 s2, 3")
    a("s_cbranch_scc1 L_roleB")

def role_a(a, st):
    S_CH=51; S_HALF=52; S_CHN=53; S_CH0=54; S_FT=55; S_T0=56; S_T1=57; S_DT=58; S_DSKV=59; S_UB=90
    SRD_U=64
    GA0=72; GA1=73; GM=74
    def grow(r): return f"buffer_load_dwordx2 v[{4+2*r}:{5+2*r}], v{GA0 if r < 4 else GA1}, {s(SRD_U,4)}, 0 offen offset:{(r%4)*1024}"
    a.label("L_roleA")
    a(f"s_and_b32 s{S_CH}, s{S_WAVE}, 3")
    a(f"s_lshr_b32 s{S_HALF}, s{S_WAVE}, 2")
    a(f"s_lshl_b32 s{S_CH0}, s{S_XCD}, 6")
    a(f"s_lshl_b32 s{S_T0}, s{S_IDX}, 2")
    a(f"s_add_u32 s{S_CH0}, s{S_CH0}, s{S_T0}")
    a(f"s_add_u32 s{S_CHN}, s{S_CH0}, s{S_CH}")
    a(f"s_mul_i32 s{S_FT}, s{S_CH}, {FT_STRIDE}")
    a(f"s_mul_i32 s{S_UB}, s{S_CH}, {U_CH}")
    a(f"s_add_u32 s{S_UB}, s{S_UB}, {U_BASE}")
    a(f"s_lshl_b32 s{S_T0}, s{S_CHN}, 8")
    a(f"v_lshlrev_b32 v26, 2, v1")
    a(f"v_add_u32 v26, s{S_T0}, v26")
    a("s_waitcnt lgkmcnt(0)")
    a("s_cmp_lg_u32 s2, 0")
    a("s_cbranch_scc1 L_a_nozero")
    a(f"s_add_u32 s60, s{S_WS}, {WS_KV}")
    a(f"s_addc_u32 s61, s{S_WS+1}, 0")
    a(f"s_mov_b32 s62, {ZERO_BYTES}")
    a("s_mov_b32 s63, 0x20000")
    a("v_lshlrev_b32 v27, 4, v0")
    for i in range(4): a(f"v_mov_b32 v{28+i}, 0")
    for i in range(6):
        a(f"buffer_store_dwordx4 v[28:31], v27, s[60:63], 0 offen sc1")
        if i < 5: a(f"v_add_u32 v27, 8192, v27")
    a.label("L_a_nozero")
    a(f"global_load_dword v20, v26, {s(S_ARE,2)}{PNT}")
    a(f"global_load_dword v21, v26, {s(S_AIM,2)}{PNT}")
    a(f"s_lshl_b32 s{S_T0}, s{S_CHN}, 1")
    a(f"s_and_b32 s{S_T0}, s{S_T0}, 0xfffffffc")
    a(f"s_load_dword s{S_DT}, {s(S_LDT,2)}, s{S_T0}")
    a(f"s_load_dword s{S_DSKV}, {s(S_DSK,2)}, s{S_T0}")
    a(f"s_cmp_eq_u32 s{S_HALF}, 0")
    a("s_cbranch_scc0 L_a_gather")
    a(f"global_load_dword v22, v26, {s(S_BRE,2)}{PNT}")
    a(f"global_load_dword v23, v26, {s(S_BIM,2)}{PNT}")
    a(f"global_load_dword v24, v26, {s(S_CRE,2)}{PNT}")
    a(f"global_load_dword v25, v26, {s(S_CIM,2)}{PNT}")
    a("s_branch L_a_p1")
    a.label("L_a_gather")
    a(f"s_mov_b32 s{SRD_U}, s{S_U}")
    a(f"s_mov_b32 s{SRD_U+1}, s{S_U+1}")
    a(f"s_mov_b32 s{SRD_U+2}, {2048*1024}")
    a(f"s_mov_b32 s{SRD_U+3}, 0x20000")
    a(f"v_and_b32 v27, 255, v0")
    a(f"v_lshrrev_b32 v28, 3, v27")
    a(f"s_lshl_b32 s{S_T0}, s{S_IDX}, 7")
    a(f"v_add_u32 v28, s{S_T0}, v28")
    a(f"v_lshlrev_b32 v28, 10, v28")
    a(f"v_and_b32 v29, 7, v27")
    a(f"v_lshl_add_u32 v28, v29, 4, v28")
    a(f"s_lshl_b32 s{S_T0}, s{S_XCD}, 7")
    a(f"v_add_u32 v28, s{S_T0}, v28")
    for j in range(4):
        a(f"s_mov_b32 s{S_T1}, {j*32768}")
        a(f"buffer_load_dwordx4 v[224:227], v28, {s(SRD_U,4)}, s{S_T1} offen")
    a(f"v_lshlrev_b32 v{GA0}, 13, v27")
    a(f"s_lshl_b32 s{S_T0}, s{S_CH0}, 1")
    a(f"v_add_u32 v{GA0}, s{S_T0}, v{GA0}")
    a(f"v_add_u32 v{GA1}, 4096, v{GA0}")
    a(f"v_subrev_u32 v{GM}, 1024, v{GA0}")
    a(f"v_cmp_eq_u32_e64 s[98:99], 0, v27")
    a(f"v_mov_b32 v31, 0x7ffffff0")
    a(f"v_cndmask_b32_e64 v{GM}, v{GM}, v31, s[98:99]")
    a.label("L_a_p1")
    st.stamp(a, "a_start")
    a("s_waitcnt lgkmcnt(0)")
    a(f"s_bitcmp1_b32 s{S_CHN}, 0")
    a(f"s_cselect_b32 s{S_T0}, 16, 0")
    a(f"s_lshr_b32 s{S_DT}, s{S_DT}, s{S_T0}")
    a(f"s_lshl_b32 s{S_DT}, s{S_DT}, 16")
    a(f"s_lshr_b32 s{S_DSKV}, s{S_DSKV}, s{S_T0}")
    a(f"s_lshl_b32 s{S_DSKV}, s{S_DSKV}, 16")
    DT=68
    a(f"v_mov_b32 v{DT}, {LOG2E}")
    a(f"v_mul_f32 v{DT}, s{S_DT}, v{DT}")
    a(f"v_exp_f32 v{DT}, v{DT}")
    a(f"v_cvt_pk_bf16_f32 v{DT}, v{DT}, v{DT}")
    a(f"v_lshlrev_b32 v{DT}, 16, v{DT}")
    WA=69
    a(f"v_lshlrev_b32 v{WA}, 3, v1")
    a(f"v_add_u32 v{WA}, s{S_FT}, v{WA}")
    a(f"s_cmp_eq_u32 s{S_HALF}, 0")
    a("s_cbranch_scc0 L_a_p1B")
    a("s_waitcnt vmcnt(0)")
    st.stamp(a, "a_params")
    AR=[26,27]; AI=[28,29]
    def unpack(dst0, dst1, src):
        a(f"v_lshlrev_b32 v{dst0}, 16, v{src}")
        a(f"v_and_b32 v{dst1}, 0xffff0000, v{src}")
    def arai():
        unpack(AR[0], AR[1], 20); unpack(AI[0], AI[1], 21)
        a(f"s_mov_b32 s{S_T0}, {LOG2E}")
        a(f"s_mov_b32 s{S_T1}, {INV2PI}")
        for m in range(2):
            a(f"v_mul_f32 v{AR[m]}, v{AR[m]}, v{DT}")
            a(f"v_mul_f32 v{AI[m]}, v{AI[m]}, v{DT}")
        for m in range(2):
            a(f"v_mul_f32 v{AR[m]}, s{S_T0}, v{AR[m]}")
            a(f"v_mul_f32 v{AI[m]}, s{S_T1}, v{AI[m]}")
    arai()
    E1=[30,32]; E256=[34,36]; G0=[38,40]; G2=[42,44]; G4=[46,48]; G6=[50,52]; G8=[54,56]; CUR=[58,60]; TMP=[62,64]; O=[66,70]
    for m in range(2):
        cexp(a, E1[m], AR[m], AI[m], None, TMP[m], TMP[m]+1)
    a(f"s_mov_b32 s{S_T0}, 0x43800000")
    for m in range(2):
        cexp(a, E256[m], AR[m], AI[m], f"s{S_T0}", TMP[m], TMP[m]+1)
    unpack(CUR[0], CUR[1], 22)
    a.items = a.items[:-2]
    a(f"v_lshlrev_b32 v{CUR[0]}, 16, v22"); a(f"v_and_b32 v{CUR[1]}, 0xffff0000, v22")
    a(f"v_lshlrev_b32 v{CUR[0]+1}, 16, v23"); a(f"v_and_b32 v{CUR[1]+1}, 0xffff0000, v23")
    a(f"v_lshlrev_b32 v{G2[0]}, 16, v24"); a(f"v_and_b32 v{G2[1]}, 0xffff0000, v24")
    a(f"v_lshlrev_b32 v{G2[0]+1}, 16, v25"); a(f"v_and_b32 v{G2[1]+1}, 0xffff0000, v25")
    for m in range(2):
        a(f"v_mul_f32 v{CUR[m]}, v{CUR[m]}, v{DT}")
        a(f"v_mul_f32 v{CUR[m]+1}, v{CUR[m]+1}, v{DT}")
    cmul2(a, G0, G2, CUR, TMP)
    st.stamp(a, "a_setup")
    tog = [0]
    def wrow(src, rho):
        o = O[tog[0]]; tog[0] ^= 1
        for m in range(2):
            a(f"v_cvt_pk_bf16_f32 v{o+m}, v{src[m]}, -v{src[m]+1}")
        for r in (rho if isinstance(rho, (list,tuple)) else [rho]):
            a(f"ds_write_b64 v{WA}, {v(o,2)} offset:{r*ROWB}")
    wrow(G0, 0)
    cmul2(a, CUR, G0, E1, TMP); wrow(CUR, 1)
    cmul2(a, G2, CUR, E1, TMP); wrow(G2, 2)
    cmul2(a, CUR, G2, E1, TMP); wrow(CUR, 3)
    cmul2(a, G4, CUR, E1, TMP); wrow(G4, 4)
    cmul2(a, CUR, G4, E1, TMP); wrow(CUR, 5)
    cmul2(a, G6, CUR, E1, TMP); wrow(G6, 6)
    cmul2(a, CUR, G6, E1, TMP); wrow(CUR, 7)
    cmul2(a, G8, CUR, E1, TMP)
    cmul2(a, G0, G0, E256, TMP); wrow(G0, 8)
    cmul2(a, G2, G2, E256, TMP); wrow(G2, 9)
    cmul2(a, G4, G4, E256, TMP); wrow(G4, [10, 11])
    cmul2(a, G6, G6, E256, TMP); wrow(G6, 12)
    cmul2(a, G8, G8, E256, TMP); wrow(G8, 13)
    for base in (14, 17):
        cmul2(a, G0, G0, E256, TMP); wrow(G0, base)
        cmul2(a, G4, G4, E256, TMP); wrow(G4, base+1)
        cmul2(a, G8, G8, E256, TMP); wrow(G8, base+2)
    for base in (20, 22, 24, 26):
        cmul2(a, G0, G0, E256, TMP); wrow(G0, base)
        cmul2(a, G8, G8, E256, TMP); wrow(G8, base+1)
    a("s_branch L_a_p1done")
    a.label("L_a_p1B")
    st.n -= 2
    a("s_waitcnt vmcnt(4)")
    st.stamp(a, "a_params")
    a("s_mov_b64 exec, 1")
    a(f"buffer_load_dwordx2 v[2:3], v{GM}, {s(SRD_U,4)}, 0 offen")
    a("s_mov_b64 exec, -1")
    for r in range(4): a(grow(r))
    arai()
    E8=[30,32]; F=[34,36]
    a(f"s_mov_b32 s{S_T0}, 0x41000000")
    for m in range(2):
        cexp(a, E8[m], AR[m], AI[m], f"s{S_T0}", TMP[m], TMP[m]+1)
    for m in range(2):
        a(f"v_mov_b32 v{F[m]}, 1.0"); a(f"v_mov_b32 v{F[m]+1}, 0")
    a(f"v_add_u32 v{WA}, {28*ROWB}, v{WA}")
    st.stamp(a, "a_setup")
    def brows(n):
        for k in range(n):
            o = O[k & 1]
            for m in range(2):
                a(f"v_cvt_pk_bf16_f32 v{o+m}, v{F[m]}, v{F[m]+1}")
            cmul2(a, F, F, E8, TMP)
            a(f"ds_write_b64 v{WA}, {v(o,2)} offset:{(k%4)*ROWB}")
            if k % 4 == 3: a(f"v_add_u32 v{WA}, {4*ROWB}, v{WA}")
    a(f"s_mov_b32 s{S_T0}, 3")
    a.label("L_a_p1Bloop1")
    brows(4)
    a(f"s_sub_u32 s{S_T0}, s{S_T0}, 1")
    a(f"s_cmp_lg_u32 s{S_T0}, 0")
    a("s_cbranch_scc1 L_a_p1Bloop1")
    a(f"s_mov_b32 s{S_T0}, 3")
    a.label("L_a_p1Bloop2")
    brows(4)
    a(f"s_sub_u32 s{S_T0}, s{S_T0}, 1")
    a(f"s_cmp_lg_u32 s{S_T0}, 0")
    a("s_cbranch_scc1 L_a_p1Bloop2")
    brows(8)
    a.label("L_a_p1done")
    st.stamp(a, "a_p1end")
    a("s_waitcnt lgkmcnt(0)")
    a("s_barrier")
    st.stamp(a, "a_p1done")
    a("s_cmp_lg_u32 s2, 0")
    a("s_cbranch_scc1 L_a_noflag")
    a(f"s_cmp_lg_u32 s{S_WAVE}, 0")
    a("s_cbranch_scc1 L_a_noflag")
    a("v_mov_b32 v26, 0")
    a("v_mov_b32 v27, 1")
    a("s_mov_b64 exec, 1")
    a(f"global_store_dword v26, v27, {s(S_DBG,2)} sc1")
    a("s_mov_b64 exec, -1")
    a.label("L_a_noflag")
    a(f"s_cmp_eq_u32 s{S_HALF}, 0")
    a("s_cbranch_scc0 L_a_utab")
    RA=26; RB=27; C=28; H=29
    a(f"v_and_b32 v{C}, 31, v1")
    a(f"v_lshrrev_b32 v{H}, 5, v1")
    a(f"v_subrev_u32 v30, 8, v{C}")
    a(f"v_max_i32 v30, 0, v30")
    a(f"v_lshrrev_b32 v30, 2, v30")
    a(f"v_min_u32 v30, 4, v30")
    a(f"v_sub_u32 v30, v{C}, v30")
    a(f"v_mul_u32_u24 v{RA}, {ROWB}, v30")
    a(f"v_mul_u32_u24 v{RB}, {ROWB}, v{C}")
    a(f"v_lshlrev_b32 v31, 4, v{H}")
    a(f"v_add_u32 v31, s{S_FT}, v31")
    a(f"v_add_u32 v{RA}, v{RA}, v31")
    a(f"v_add_u32 v{RB}, v{RB}, v31")
    D=100
    FA=36; FB=68+4
    FB=116
    def rd(sidx):
        a(f"ds_read_b128 {v(FA+4*(sidx%8),4)}, v{RA} offset:{32*sidx}")
        a(f"ds_read_b128 {v(FB+4*(sidx%8),4)}, v{RB} offset:{28*ROWB+32*sidx}")
    for sidx in range(6): rd(sidx)
    for sidx in range(16):
        issued = min(16, sidx + 6)
        a(f"s_waitcnt lgkmcnt({2*(issued - sidx - 1)})")
        c = "0" if sidx == 0 else v(D,16)
        a(f"v_mfma_f32_32x32x16_bf16 {v(D,16)}, {v(FA+4*(sidx%8),4)}, {v(FB+4*(sidx%8),4)}, {c}")
        if sidx + 6 < 16: rd(sidx + 6)
    st.stamp(a, "a_p2")
    B2=30; B3=31; Z=36; FX=32
    a(f"v_sub_u32 v{B2}, 31, v{C}")
    a(f"v_lshlrev_b32 v{B2}, 4, v{B2}")
    a(f"v_add_u32 v{B2}, s{S_FT}, v{B2}")
    a(f"v_sub_u32 v37, 1, v{H}")
    a(f"v_lshl_add_u32 v{B3}, v37, 10, v{B2}")
    a(f"v_lshl_add_u32 v{B2}, v37, 9, v{B2}")
    a(f"v_lshlrev_b32 v38, 2, v1")
    a(f"v_add_u32 v38, s{S_FT}, v38")
    a(f"v_mov_b32 v{Z}, 0")
    a(f"v_and_b32 v39, 1, v{C}")
    a(f"v_cmp_eq_u32_e64 s[98:99], 1, v39")
    a(f"ds_write_b32 v38, v{Z} offset:4096")
    a(f"ds_write_b32 v38, v{Z} offset:{KC1-4+4096}")
    d = lambda i: f"v{D+i}"
    P=40
    a(f"v_cvt_pk_bf16_f32 v{P+2}, {d(3)}, {d(2)}")
    a(f"v_cvt_pk_bf16_f32 v{P+3}, {d(1)}, {d(0)}")
    a(f"v_cvt_pk_bf16_f32 v{P}, {d(6)}, {d(5)}")
    a(f"v_cvt_pk_bf16_f32 v{P+1}, {d(4)}, {d(4)}")
    a(f"v_cvt_pk_bf16_f32 v{P+4}, {d(10)}, {d(10)}")
    a(f"v_cvt_pk_bf16_f32 v{P+5}, {d(9)}, {d(9)}")
    a(f"v_cvt_pk_bf16_f32 v{P+6}, {d(9)}, {d(8)}")
    a(f"v_cvt_pk_bf16_f32 v{P+7}, {d(8)}, {d(8)}")
    a(f"v_permlane32_swap_b32 v{P+2}, v{P}")
    a(f"v_permlane32_swap_b32 v{P+3}, v{P+1}")
    for io in range(2):
        k0 = 12 + 2*io; k8 = k0 + 1; q = P + 8 + 4*io
        a(f"v_cndmask_b32_e64 v{q+1}, {d(k0)}, {d(k8)}, s[98:99]")
        a(f"v_cvt_pk_bf16_f32 v{q}, {d(k8)}, {d(k8)}")
        a(f"v_cvt_pk_bf16_f32 v{q+1}, {d(k8)}, v{q+1}")
        a(f"v_cvt_pk_bf16_f32 v{q+2}, {d(k0)}, {d(k0)}")
        a(f"v_mov_b32 v{q+3}, v{q+2}")
    chunks = [(P, B2, 3072), (P+4, B2, 2048), (P+8, B3, 512), (P+12, B3, 0)]
    for (q, br, off) in chunks:
        a(f"ds_write_b128 v{br}, {v(q,4)} offset:{off}")
    for n, (q, br, off) in enumerate(chunks):
        c1 = 56 + 4*n
        a(f"v_mov_b32 v{c1}, v{q+1}")
        a(f"v_mov_b32 v{c1+1}, v{q+2}")
        a(f"v_mov_b32 v{c1+2}, v{q+3}")
        a(f"v_mov_b32_dpp v{c1+3}, v{q} wave_shr:1 row_mask:0xf bank_mask:0xf")
        a(f"ds_write_b128 v{br}, {v(c1,4)} offset:{off + KC1}")
    a("s_mov_b32 s92, 0x80000000"); a("s_mov_b32 s93, 0x80000000")
    a("s_mov_b64 exec, s[92:93]")
    for (q, br, off) in chunks:
        a(f"ds_write_b32 v{br}, v{q} offset:{off + KC1 - 4}")
    a("s_mov_b64 exec, 1")
    a(f"ds_write_b32 v{B2}, v{Z} offset:{3072 + KC1 + 12}")
    a("s_mov_b64 exec, -1")
    a("s_branch L_a_p3done")
    a.label("L_a_utab")
    st.n -= 1
    for r in range(4, 8): a(grow(r))
    a("s_waitcnt vmcnt(0)")
    st.stamp(a, "a_gather")
    a(f"v_and_b32 v27, 255, v0")
    a(f"v_lshlrev_b32 v28, 4, v27")
    a(f"v_add_u32 v28, {U_BASE+512}, v28")
    a(f"v_mov_b32_dpp v2, v18 wave_shr:1 row_mask:0xf bank_mask:0xf")
    a(f"v_mov_b32_dpp v3, v19 wave_shr:1 row_mask:0xf bank_mask:0xf")
    a(f"s_mov_b32 s{S_T0}, 0x05040100")
    a(f"s_mov_b32 s{S_T1}, 0x07060302")
    row = lambda r, dw: f"v{2+2*(r+1)+dw}"
    T=32
    n = 0
    for cc in range(4):
        dw = cc >> 1; sel = S_T0 if (cc & 1) == 0 else S_T1
        for cp in range(2):
            t = T + 4*(n % 4); n += 1
            for i in range(4):
                lo = 2*i - 1 if cp == 0 else 2*i
                a(f"v_perm_b32 v{t+i}, {row(lo+1,dw)}, {row(lo,dw)}, s{sel}")
            a(f"ds_write_b128 v28, {v(t,4)} offset:{cc*U_CH + cp*U1_OFF}")
    a(f"v_and_b32 v29, 255, v0")
    a(f"v_lshrrev_b32 v30, 5, v29")
    a(f"v_mul_u32_u24 v30, {U1_OFF}, v30")
    a(f"v_and_b32 v29, 31, v29")
    a(f"v_lshl_add_u32 v30, v29, 4, v30")
    a(f"v_add_u32 v30, {U_BASE}, v30")
    for i in range(4): a(f"v_mov_b32 v{48+i}, 0")
    a(f"ds_write_b128 v30, v[48:51]")
    a.label("L_a_p3done")
    st.stamp(a, "a_p3end")
    a("s_waitcnt lgkmcnt(0)")
    a("s_barrier")
    st.stamp(a, "a_p3done")
    UB=20; KB=21; COL=22; G=23; CP=24; AL=25
    a(f"v_and_b32 v{COL}, 15, v1")
    a(f"v_lshrrev_b32 v{G}, 4, v1")
    a(f"v_and_b32 v{CP}, 1, v{COL}")
    a(f"v_lshrrev_b32 v{AL}, 1, v{COL}")
    a(f"v_mul_u32_u24 v{UB}, {U1_OFF}, v{CP}")
    a(f"v_lshl_add_u32 v{UB}, v{AL}, 6, v{UB}")
    a(f"v_lshl_add_u32 v{UB}, v{G}, 4, v{UB}")
    a(f"s_lshl_b32 s{S_T0}, s{S_HALF}, 8")
    a(f"s_sub_u32 s{S_T1}, s{S_UB}, s{S_T0}")
    a(f"s_add_u32 s{S_T1}, s{S_T1}, 512")
    a(f"v_add_u32 v{UB}, s{S_T1}, v{UB}")
    a(f"v_mov_b32 v26, v{UB}")
    a(f"v_sub_u32 v{KB}, 1023, v{COL}")
    a(f"v_lshl_add_u32 v{KB}, v{G}, 2, v{KB}")
    a(f"v_lshlrev_b32 v{KB}, 2, v{KB}")
    a(f"v_sub_u32 v27, 1, v{CP}")
    a(f"v_mul_u32_u24 v27, {KC1-4}, v27")
    a(f"v_add_u32 v{KB}, v{KB}, v27")
    a(f"s_sub_u32 s{S_T1}, s{S_FT}, s{S_T0}")
    a(f"s_sub_u32 s{S_T1}, s{S_T1}, 3584")
    a(f"v_add_u32 v{KB}, s{S_T1}, v{KB}")
    ACC=128
    SETB=[160, 64]; SETA=[192, 96]
    def reads(setidx, lst):
        pass
    def rd_list(setidx):
        L = []
        for t in range(8):
            L.append(f"ds_read_b128 {v(SETB[setidx]+4*t,4)}, v{UB} offset:{512*t}")
        for q in range(8):
            L.append(f"ds_read_b64 {v(SETA[setidx]+4*q,2)}, v{KB} offset:{512*(7-q)}")
            L.append(f"ds_read_b64 {v(SETA[setidx]+4*q+2,2)}, v{KB} offset:{512*(7-q)+8}")
        order = [8, 9] + list(range(8)) + list(range(10, 24))
        return [L[i] for i in order]
    a(f"v_lshlrev_b32 v27, 4, v0")
    a(f"s_lshl_b32 s{S_T0}, s{S_IDX}, 15")
    a(f"v_add_u32 v27, s{S_T0}, v27")
    for x in rd_list(0): a(x)
    for j in range(4):
        a(f"global_load_dwordx4 v[224:227], v27, {s(S_WO,2)}")
        if j < 3: a(f"v_add_u32 v27, 8192, v27")
    a("v_mov_b32 v228, 0")
    a(f"global_load_dword v229, v228, {s(S_DBG,2)} sc1")
    for it in range(4):
        cur = it & 1
        nxt = []
        if it < 3:
            a(f"v_subrev_u32 v{UB}, 64, v{UB}")
            a(f"v_subrev_u32 v{KB}, 64, v{KB}")
            nxt = rd_list(cur ^ 1)
        a("s_waitcnt lgkmcnt(0)")
        k = 0
        mf = [(q, t) for q in range(8) for t in range(8 - q)]
        for idx, (q, t) in enumerate(mf):
            acc = v(ACC + 4*(t+q), 4)
            c = "0" if (it == 0 and q == 0) else acc
            a(f"v_mfma_f32_16x16x32_bf16 {acc}, {v(SETA[cur]+4*q,4)}, {v(SETB[cur]+4*t,4)}, {c}")
            if nxt and idx >= 2 and k < len(nxt):
                a(nxt[k]); k += 1
        while k < len(nxt):
            a(nxt[k]); k += 1
    st.stamp(a, "a_convdone")
    XA=27
    a(f"v_lshlrev_b32 v{XA}, 4, v1")
    a(f"v_add_u32 v{XA}, s{S_FT}, v{XA}")
    R=64
    RX=96
    a(f"s_cmp_eq_u32 s{S_HALF}, 0")
    a("s_cbranch_scc0 L_a_x1")
    for t in range(4):
        a(f"ds_write_b128 v{XA}, {v(ACC+16+4*t,4)} offset:{XCH + 1024*t}")
    a("s_branch L_a_x2")
    a.label("L_a_x1")
    for t in range(4):
        a(f"ds_write_b128 v{XA}, {v(ACC+4*t,4)} offset:{XCH + 4096 + 1024*t}")
    a.label("L_a_x2")
    UE=28
    a(f"v_lshlrev_b32 v{UE}, 6, v{AL}")
    a(f"v_lshl_add_u32 v{UE}, v{G}, 4, v{UE}")
    a(f"s_lshl_b32 s{S_T0}, s{S_HALF}, 11")
    a(f"s_add_u32 s{S_T1}, s{S_UB}, s{S_T0}")
    a(f"s_add_u32 s{S_T1}, s{S_T1}, {U1_OFF+512}")
    a(f"v_add_u32 v29, s{S_T1}, v{UE}")
    UU=112
    for t in range(4):
        a(f"ds_read_b128 {v(UU+4*t,4)}, v29 offset:{512*t}")
    a(f"v_lshl_add_u32 v{UE}, v{CP}, 3, v{UE}")
    a(f"s_lshl_b32 s{S_T1}, s{S_CHN}, 12")
    a(f"s_add_u32 s{S_T1}, s{S_T1}, s{S_T0}")
    a(f"v_add_u32 v{UE}, s{S_T1}, v{UE}")
    a(f"v_cmp_eq_u32_e64 s[98:99], 1, v{CP}")
    a(f"v_mov_b32 v30, 0x01000c0c"); a(f"v_mov_b32 v31, 0x03020c0c")
    a(f"v_cndmask_b32_e64 v30, v30, v31, s[98:99]")
    a(f"v_mov_b32 v31, 0x05040100"); a(f"v_mov_b32 v32, 0x01000504")
    a(f"v_cndmask_b32_e64 v31, v31, v32, s[98:99]")
    a(f"v_mov_b32 v32, 0x07060302"); a(f"v_mov_b32 v33, 0x03020706")
    a(f"v_cndmask_b32_e64 v32, v32, v33, s[98:99]")
    a("s_waitcnt lgkmcnt(0)")
    a("s_barrier")
    st.stamp(a, "a_xbar")
    a(f"s_cmp_eq_u32 s{S_HALF}, 0")
    a("s_cbranch_scc0 L_a_x3")
    for t in range(4):
        a(f"ds_read_b128 {v(RX+4*t,4)}, v{XA} offset:{XCH + 4096 + 1024*t}")
    a("s_waitcnt lgkmcnt(0)")
    for i in range(16):
        a(f"v_add_f32 v{R+i}, v{ACC+i}, v{RX+i}")
    a("s_branch L_a_x4")
    a.label("L_a_x3")
    for t in range(4):
        a(f"ds_read_b128 {v(RX+4*t,4)}, v{XA} offset:{XCH + 1024*t}")
    a("s_waitcnt lgkmcnt(0)")
    for i in range(16):
        a(f"v_add_f32 v{R+i}, v{ACC+16+i}, v{RX+i}")
    a.label("L_a_x4")
    for t in range(4):
        for i in range(4):
            a(f"v_perm_b32 v{UU+4*t+i}, v{UU+4*t+i}, v{UU+4*t+i}, v30")
        for i in range(4):
            a(f"v_fma_f32 v{R+4*t+i}, v{UU+4*t+i}, s{S_DSKV}, v{R+4*t+i}")
        P_, Q_, SN, KP, RV = 34, 35, 36, 37, 38
        a(f"v_cvt_pk_bf16_f32 v{P_}, v{R+4*t}, v{R+4*t+1}")
        a(f"v_cvt_pk_bf16_f32 v{Q_}, v{R+4*t+2}, v{R+4*t+3}")
        a(f"v_cndmask_b32_e64 v{SN}, v{Q_}, v{P_}, s[98:99]")
        a(f"v_cndmask_b32_e64 v{KP}, v{P_}, v{Q_}, s[98:99]")
        a(f"v_mov_b32_dpp v{RV}, v{SN} quad_perm:[1,0,3,2] row_mask:0xf bank_mask:0xf")
        o = 40 + 2*t
        a(f"v_perm_b32 v{o}, v{RV}, v{KP}, v31")
        a(f"v_perm_b32 v{o+1}, v{RV}, v{KP}, v32")
        a(f"global_store_dwordx2 v{UE}, {v(o,2)}, {s(S_WS,2)} offset:{512*t} sc1")
    st.stamp(a, "a_end")
    a("s_waitcnt vmcnt(0)")
    a.label("L_a_poll")
    a("v_readfirstlane_b32 s66, v229")
    a("s_cmp_eq_u32 s66, 1")
    a("s_cbranch_scc1 L_k1_fin")
    a(f"global_load_dword v229, v228, {s(S_DBG,2)} sc1")
    a("s_waitcnt vmcnt(0)")
    a("s_branch L_a_poll")

def diag_store(a, st, label_end):
    if not st.on: return
    a(f"s_lshl_b32 s94, s2, 3")
    a(f"s_add_u32 s94, s94, s{S_WAVE}")
    a(f"s_lshl_b32 s94, s94, 6")
    a(f"s_add_u32 s94, s94, {8<<20}")
    a("v_mov_b32 v250, s94")
    for i in range(14):
        a(f"v_mov_b32 v251, s{68+i}" if i else "v_mov_b32 v251, s68")
        a("s_mov_b64 exec, 1")
        a(f"global_store_dword v250, v251, {s(S_WS,2)} offset:{4*i}")
        a("s_mov_b64 exec, -1")

def descriptor(name, vgpr, sgpr=102):
    return f""".p2align 6
.amdhsa_kernel {name}
  .amdhsa_next_free_vgpr {vgpr}
  .amdhsa_next_free_sgpr {sgpr}
  .amdhsa_accum_offset {vgpr}
  .amdhsa_group_segment_fixed_size 0
  .amdhsa_kernarg_size 128
  .amdhsa_user_sgpr_count 2
  .amdhsa_user_sgpr_kernarg_segment_ptr 1
  .amdhsa_system_sgpr_workgroup_id_x 1
.end_amdhsa_kernel
"""

HEADER_LAYOUT = open("cdna_kernels/" + NAME + ".s.ref").read().split("; Override launch geometry")[0]

def build(diag=False):
    import gen_b
    k1 = f"{NAME}_kernel"
    st = Stamps(diag)
    a = Asm()
    k1_prologue(a, st)
    role_a(a, st)
    nA = st.n; st.n = 0
    a.label("L_roleB")
    gen_b.role_b(a, st)
    a("s_waitcnt vmcnt(0)")
    a.label("L_k1_fin")
    a("s_barrier")
    if diag:
        st.n = 0; st.base = 4
    gen_b.phase2_fused(a, st)
    if diag:
        a("s_memrealtime s[84:85]"); a("s_waitcnt lgkmcnt(0)")
        a(f"s_lshl_b32 s94, s2, 3")
        a(f"s_add_u32 s94, s94, s{S_WAVE}")
        a(f"s_lshl_b32 s94, s94, 7")
        a(f"s_add_u32 s94, s94, {8<<20}")
        a("v_mov_b32 v250, s94")
        regs = [68, 69] + list(range(70, 82)) + list(range(4, 14)) + [100, 82, 83, 84]
        a("s_mov_b64 exec, 1")
        for i, r in enumerate(regs):
            a(f"v_mov_b32 v251, s{r}")
            a(f"global_store_dword v250, v251, {s(S_WS,2)} offset:{4*i}")
            a("s_nop 0")
        a("s_mov_b64 exec, -1")
    a.label("L_k1_end")
    a("s_endpgm")
    t1 = a.finalize()
    out = HEADER_LAYOUT
    out += f"; @launch grid=(256,1,1) block=(512,1,1) lds=163840\n"
    out += '.amdgcn_target "amdgcn-amd-amdhsa--gfx950"\n.text\n'
    out += f".globl {k1}\n.p2align 8\n.type {k1},@function\n{k1}:\n" + t1
    out += '.section .rodata,"a"\n' + descriptor(k1, 256)
    return out

if __name__ == "__main__":
    diag = "diag" in sys.argv
    outp = [x for x in sys.argv[1:] if x.endswith(".s")]
    txt = build(diag)
    open(outp[0] if outp else "k.s", "w").write(txt)
```

```python
from gen import *
import gen as G

K2_LDS = 163840
K2_VGPR = 256
KV16_BYTES = 32*1024
Z_OFF = KV16_BYTES
G_OFF = KV16_BYTES + 2048

def interleave(main, fill, per, start=0):
    out = []; k = 0
    for i, m in enumerate(main):
        out.append(m)
        if i >= start:
            n = per[i - start] if isinstance(per, (list, tuple)) and i - start < len(per) else (per if not isinstance(per, (list, tuple)) else 0)
            for _ in range(n):
                if k < len(fill): out.append(fill[k]); k += 1
    out += fill[k:]
    return out

def phi_list(src, n, dst, tmpbase, s_l2e, s_eps):
    L = []
    np_ = n // 2
    T = lambda p: tmpbase + 2*(p % 4)
    for g0 in range(0, np_, 4):
        ps = list(range(g0, min(np_, g0+4)))
        for p in ps:
            L.append(f"v_pk_mul_f32 {v(T(p),2)}, {v(src+2*p,2)}, {s(s_l2e,2)}")
        for p in ps:
            x = src + 2*p
            L.append(f"v_exp_f32_e64 v{T(p)}, v{T(p)} clamp")
            L.append(f"v_max_f32 v{x}, 0, v{x}")
            L.append(f"v_exp_f32_e64 v{T(p)+1}, v{T(p)+1} clamp")
            L.append(f"v_max_f32 v{x+1}, 0, v{x+1}")
        for p in ps:
            L.append(f"v_pk_add_f32 {v(src+2*p,2)}, {v(src+2*p,2)}, {s(s_eps,2)}")
        for p in ps:
            L.append(f"v_pk_add_f32 {v(src+2*p,2)}, {v(src+2*p,2)}, {v(T(p),2)}")
        for p in ps:
            x = src + 2*p
            L.append(f"v_cvt_pk_bf16_f32 v{dst+p}, v{x}, v{x+1}")
    return L

def role_b(a, st):
    S_RB=51; S_HG=52; S_RG=53; S_CG=54; S_T0=55; S_T1=64; S_T2=65
    SX=56; SW=60
    S_L2E=82; S_EPS=84; S_KVB=86; S_M=88; S_F=91; S_GI=95
    XA=[2,3,4,5]; WA=6; X0=8; X1=9; W=10; GP=11
    ACCK=16; ACCV=32; FR=[48,80]; ACCQ=112; XF=128; GW=112; GT=120
    a(f"s_and_b32 s{S_T0}, s{S_XCD}, 3")
    a(f"s_lshl_b32 s{S_RB}, s{S_T0}, 2")
    a(f"s_and_b32 s{S_T0}, s{S_IDX}, 3")
    a(f"s_add_u32 s{S_RB}, s{S_RB}, s{S_T0}")
    a(f"s_lshr_b32 s{S_T0}, s{S_XCD}, 2")
    a(f"s_lshl_b32 s{S_HG}, s{S_T0}, 2")
    a(f"s_lshr_b32 s{S_T0}, s{S_IDX}, 2")
    a(f"s_add_u32 s{S_HG}, s{S_HG}, s{S_T0}")
    a(f"s_and_b32 s{S_RG}, s{S_WAVE}, 3")
    a(f"s_lshr_b32 s{S_CG}, s{S_WAVE}, 2")
    fm = G.FMODE
    if fm == "zero":
        a(f"s_mov_b32 s{S_F}, 0")
    elif fm == "hg":
        a(f"s_mov_b32 s{S_F}, s{S_HG}")
    elif fm == "rb":
        a(f"s_and_b32 s{S_F}, s{S_IDX}, 3")
        a(f"s_lshl_b32 s{S_F}, s{S_F}, 1")
        a(f"s_and_b32 s{S_T0}, s{S_XCD}, 1")
        a(f"s_add_u32 s{S_F}, s{S_F}, s{S_T0}")
    elif fm == "latin":
        a(f"s_and_b32 s{S_F}, s{S_IDX}, 3")
        a(f"s_lshr_b32 s{S_T0}, s{S_IDX}, 2")
        a(f"s_add_u32 s{S_F}, s{S_F}, s{S_T0}")
        a(f"s_lshl_b32 s{S_F}, s{S_F}, 1")
        a(f"s_lshr_b32 s{S_T0}, s{S_XCD}, 2")
        a(f"s_add_u32 s{S_F}, s{S_F}, s{S_T0}")
        a(f"s_and_b32 s{S_F}, s{S_F}, 7")
    a(f"s_sub_u32 s{S_GI}, s{S_HG}, s{S_F}")
    a(f"s_and_b32 s{S_GI}, s{S_GI}, 7")
    a(f"v_lshrrev_b32 v12, 3, v1")
    a(f"v_and_b32 v13, 7, v1")
    a(f"v_lshrrev_b32 v14, 1, v12")
    a(f"v_xor_b32 v14, v14, v13")
    a(f"s_lshl_b32 s{S_T0}, s{S_RB}, 7")
    a(f"s_lshl_b32 s{S_T1}, s{S_WAVE}, 4")
    a(f"s_add_u32 s{S_T0}, s{S_T0}, s{S_T1}")
    a(f"v_add_u32 v15, s{S_T0}, v12")
    a(f"v_lshlrev_b32 v15, 10, v15")
    a(f"v_lshl_add_u32 v{X0}, v14, 4, v15")
    a(f"v_xor_b32 v14, 4, v14")
    a(f"v_lshl_add_u32 v{X1}, v14, 4, v15")
    a(f"v_add_u32 v{X1}, 8192, v{X1}")
    a(f"v_bfe_u32 v14, v1, 4, 1")
    a(f"v_lshlrev_b32 v14, 2, v14")
    a(f"v_xor_b32 v14, v14, v13")
    a(f"s_lshl_b32 s{S_T0}, s{S_WAVE}, 3")
    a(f"v_add_u32 v15, s{S_T0}, v12")
    a(f"v_mul_u32_u24 v15, 3072, v15")
    a(f"v_lshl_add_u32 v{W}, v14, 4, v15")
    a(f"s_lshl_b32 s{S_T0}, s{S_HG}, 7")
    a(f"v_add_u32 v{W}, s{S_T0}, v{W}")
    a(f"v_and_b32 v15, 3, v0")
    a(f"v_lshlrev_b32 v15, 5, v15")
    a(f"s_lshl_b32 s{S_T0}, s{S_HG}, 7")
    a(f"v_add_u32 v15, s{S_T0}, v15")
    a(f"s_lshl_b32 s{S_M}, s{S_WAVE}, 10")
    a(f"s_lshl_b32 s{S_M+1}, s{S_WAVE}, 11")
    a("s_waitcnt lgkmcnt(0)")
    a(f"s_mov_b32 s{SX}, s{S_U}"); a(f"s_mov_b32 s{SX+1}, s{S_U+1}"); a(f"s_mov_b32 s{SX+2}, {2048*1024}"); a(f"s_mov_b32 s{SX+3}, 0x20000")
    a(f"s_mov_b32 s{SW}, s{S_WQKV}"); a(f"s_mov_b32 s{SW+1}, s{S_WQKV+1}"); a(f"s_mov_b32 s{SW+2}, {512*3072}"); a(f"s_mov_b32 s{SW+3}, 0x20000")
    def chunk_off(i):
        return [f"s_add_u32 s{S_T0}, s{S_F}, {i}", f"s_and_b32 s{S_T0}, s{S_T0}, 7",
                f"s_lshl_b32 s66, s{S_T0}, 7", f"s_mul_i32 s67, s{S_T0}, 196608"]
    def dma(m0s, m0imm, voff, srd, soff):
        return [f"s_add_u32 m0, s{m0s}, {m0imm}", f"buffer_load_dwordx4 v{voff}, {s(srd,4)}, s{soff} offen lds"]
    def chunk_groups(n):
        slot = (n & 3) * 32768
        if n < 8:
            return [chunk_off(n) + dma(S_M+1, slot, X0, SX, 66),
                    dma(S_M+1, slot + 1024, X1, SX, 66),
                    [f"s_add_u32 s{S_T1}, s67, 1024"] + dma(S_M, slot + 16384, W, SW, S_T1),
                    [f"s_add_u32 s{S_T1}, s67, 2048"] + dma(S_M, slot + 24576, W, SW, S_T1)]
        else:
            return [chunk_off(4*(n-8)+k) + dma(S_M, slot + 8192*k, W, SW, 67) for k in range(4)]
    def emit(L):
        for x in L: a(x)
    a(f"global_load_dwordx4 {v(GW,4)}, v15, {s(S_GW,2)}")
    a(f"global_load_dwordx4 {v(GW+4,4)}, v15, {s(S_GW,2)} offset:16")
    for g in chunk_groups(0): emit(g)
    a("s_barrier")
    for g in chunk_groups(1): emit(g)
    if G.DEEP:
        a("s_barrier")
        for g in chunk_groups(2): emit(g)
    st.stamp(a, "b_issued")
    a(f"v_and_b32 v12, 31, v1")
    a(f"s_lshl_b32 s{S_T0}, s{S_RG}, 5")
    a(f"v_add_u32 v12, s{S_T0}, v12")
    a(f"v_lshrrev_b32 v13, 5, v1")
    a(f"v_bfe_u32 v14, v12, 1, 3")
    a(f"v_xor_b32 v14, v14, v13")
    a(f"v_lshlrev_b32 v14, 4, v14")
    a(f"v_lshl_add_u32 v{XA[0]}, v12, 7, v14")
    for ks in range(1,4):
        a(f"v_xor_b32 v{XA[ks]}, {32*ks}, v{XA[0]}")
    a(f"v_and_b32 v12, 15, v1")
    a(f"v_lshrrev_b32 v14, 2, v12")
    a(f"v_lshl_add_u32 v15, v13, 3, v14")
    a(f"v_lshlrev_b32 v15, 7, v15")
    a(f"v_bfe_u32 v7, v1, 4, 1")
    a(f"v_lshlrev_b32 v7, 1, v7")
    a(f"s_lshl_b32 s{S_T0}, s{S_CG}, 2")
    a(f"v_add_u32 v7, s{S_T0}, v7")
    a(f"v_bfe_u32 v13, v12, 1, 1")
    a(f"v_add_u32 v7, v7, v13")
    a(f"v_bfe_u32 v13, v14, 1, 1")
    a(f"v_lshlrev_b32 v13, 2, v13")
    a(f"v_xor_b32 v7, v7, v13")
    a(f"v_lshl_add_u32 v15, v7, 4, v15")
    a(f"v_and_b32 v13, 1, v12")
    a(f"v_lshl_add_u32 v{WA}, v13, 3, v15")
    a(f"s_mov_b32 s{S_L2E}, {LOG2E}"); a(f"s_mov_b32 s{S_L2E+1}, {LOG2E}")
    a(f"s_mov_b32 s{S_EPS}, 0x358637bd"); a(f"s_mov_b32 s{S_EPS+1}, 0x358637bd")
    a(f"s_add_u32 s{S_KVB}, s{S_WS}, {WS_KV}"); a(f"s_addc_u32 s{S_KVB+1}, s{S_WS+1}, 0")
    a(f"v_lshrrev_b32 v12, 2, v0")
    a(f"v_and_b32 v13, 3, v0")
    a(f"v_lshlrev_b32 v13, 1, v13")
    a(f"v_bfe_u32 v14, v12, 1, 3")
    a(f"v_xor_b32 v13, v13, v14")
    a(f"v_lshlrev_b32 v13, 4, v13")
    a(f"v_lshl_add_u32 v12, v12, 7, v13")
    a(f"v_xor_b32 v13, 16, v12")
    def frag_reads(i):
        slot = (i & 1) * 32768; fr = FR[i & 1]; L = []
        for ks in range(4):
            L.append(f"ds_read_b128 {v(XF + 16*i + 4*ks, 4)}, v{XA[ks]} offset:{slot}")
            for T, toff in ((0, 16384), (1, 24576)):
                for rdx in range(2):
                    L.append(f"ds_read_b64_tr_b16 {v(fr + 8*ks + 4*T + 2*rdx, 2)}, v{WA} offset:{slot + toff + 2048*ks + 512*rdx}")
        return L
    def toggle():
        return [f"v_xor_b32 v{r}, 0x10000, v{r}" for r in XA + [WA]]
    def q_reads(n0, n1):
        L = []
        for n in range(n0, n1):
            off = (n // 16) * 32768 + ((n % 16) // 4) * 8192 + (n % 4) * 2048
            for rdx in range(2):
                L.append(f"ds_read_b64_tr_b16 {v(48 + 4*(n % 8) + 2*rdx, 2)}, v{WA} offset:{off + 512*rdx}")
        return L
    a(f"s_waitcnt vmcnt({8 if G.DEEP else 4})")
    a("s_barrier")
    st.stamp(a, "b_first")
    def gate_reads(c):
        lab = f"L_b_gr{c}"
        a(f"s_cmp_eq_u32 s{S_GI}, {c}")
        a(f"s_cbranch_scc0 {lab}")
        off = (c & 3) * 32768
        if off >= 65536:
            a(f"v_add_u32 v12, 65536, v12"); a(f"v_add_u32 v13, 65536, v13"); off -= 65536
        a(f"ds_read_b128 {v(GT,4)}, v12 offset:{off}")
        a(f"ds_read_b128 {v(GT+4,4)}, v13 offset:{off}")
        a.label(lab)
    def gate_dot(c):
        lab = f"L_b_gd{c}"
        a(f"s_cmp_eq_u32 s{S_GI}, {c}")
        a(f"s_cbranch_scc0 {lab}")
        a(f"v_mov_b32 v{GP}, 0")
        for k2 in range(8): a(f"v_dot2_f32_bf16 v{GP}, v{GT+k2}, v{GW+k2}, v{GP}")
        a.label(lab)
    emit(frag_reads(0))
    gate_reads(0)
    if G.DEEP:
        for g in chunk_groups(3): emit(g)
        sched = {0: [4], 1: [5], 2: [6], 3: [7], 4: [8], 5: [9]}
        vmw = [8, 8, 8, 8, 8, 8, 8, 5]
    else:
        sched = {0: [2, 3], 1: [4], 2: [5, 6], 3: [7], 4: [8], 5: [9]}
        vmw = [0, 4, 4, 8, 8, 8, 8, 5]
    for i in range(8):
        fr = FR[i & 1]
        mm = []
        for ks in range(4):
            x = v(XF + 16*i + 4*ks, 4)
            cK = "0" if (i == 0 and ks == 0) else v(ACCK,16)
            cV = "0" if (i == 0 and ks == 0) else v(ACCV,16)
            mm.append(f"v_mfma_f32_32x32x16_bf16 {v(ACCK,16)}, {x}, {v(fr+8*ks,4)}, {cK}")
            mm.append(f"v_mfma_f32_32x32x16_bf16 {v(ACCV,16)}, {x}, {v(fr+8*ks+4,4)}, {cV}")
        npre = (G.NPRE if G.DEEP else 8) if i == 0 else G.NPRE
        a("s_waitcnt lgkmcnt(0)")
        emit(mm[:npre])
        gate_dot(i)
        pre = []
        if (i + 1) in (2, 4, 6, 8): pre += toggle()
        emit(pre)
        a(f"s_waitcnt vmcnt({vmw[i]})")
        a("s_barrier")
        if G.ITERSTAMP: st.stamp(a, f"it{i}")
        if i + 1 <= 7: gate_reads(i + 1)
        rd = frag_reads(i+1) if i + 1 <= 7 else q_reads(0, 6)
        groups = []
        for n in sched.get(i, []): groups += chunk_groups(n)
        rest = mm[npre:]
        seq = []
        if rest:
            nm = len(rest)
            k = 0; gi = 0
            for m in range(nm):
                seq.append(rest[m])
                take = (len(rd) - k + (nm - m) - 1) // (nm - m) if m < nm - 1 else len(rd) - k
                take = min(take, 3) if m < nm - 1 else take
                seq += rd[k:k+take]; k += take
                if m % 2 == 1 or m == nm - 1:
                    left = len(groups) - gi
                    slots_left = max(1, (nm - m + 1) // 2)
                    ng = left if m == nm - 1 else (left + slots_left - 1) // slots_left
                    for _ in range(ng):
                        seq += groups[gi]; gi += 1
        else:
            seq += rd
            for g_ in groups: seq += g_
        if i == 6:
            seq += ["v_mov_b32 v14, 0", f"global_load_dword v15, v14, {s(S_DBG,2)} sc1"]
        emit(seq)
    st.stamp(a, "b_pass1")
    if G.ITERSTAMP: st.on = False
    PK=80; VV=88; ONE=96; TMP=100
    PF = 6
    KVL = 65536
    D1=ACCK; D2=ACCV
    def qm(n):
        c = "0" if n == 0 else v(ACCQ,16)
        return f"v_mfma_f32_32x32x16_bf16 {v(ACCQ,16)}, {v(48+4*(n%8),4)}, {v(XF+4*n,4)}, {c}"
    fill = [f"v_add_f32_dpp v{GP}, v{GP}, v{GP} quad_perm:[1,0,3,2] row_mask:0xf bank_mask:0xf"]
    fill += [f"v_mov_b32 v{ONE+k}, 0x3f803f80" for k in range(4)]
    fill += phi_list(ACCK, 16, PK, TMP, S_L2E, S_EPS)
    fill += [f"v_add_f32_dpp v{GP}, v{GP}, v{GP} quad_perm:[2,3,0,1] row_mask:0xf bank_mask:0xf"]
    fill += [f"v_cvt_pk_bf16_f32 v{VV+p}, v{ACCV+2*p}, v{ACCV+2*p+1}" for p in range(8)]
    kvm = []
    for sg in range(2):
        c = "0" if sg == 0 else v(D1,16)
        kvm.append(f"v_mfma_f32_32x32x16_bf16 {v(D1,16)}, {v(PK+4*sg,4)}, {v(VV+4*sg,4)}, {c}")
    for sg in range(2):
        c = "0" if sg == 0 else v(D2,16)
        kvm.append(f"v_mfma_f32_32x32x16_bf16 {v(D2,16)}, {v(PK+4*sg,4)}, {v(ONE,4)}, {c}")
    fill += kvm
    fill += [
      f"v_and_b32 v12, 15, v1", f"v_bfe_u32 v13, v1, 4, 1", f"v_lshrrev_b32 v7, 5, v1",
      f"v_mul_u32_u24 v12, 68, v12", f"v_mul_u32_u24 v8, 1156, v13", f"v_add_u32 v12, v12, v8",
      f"v_lshl_add_u32 v12, v7, 5, v12",
      f"s_mul_i32 s{S_T0}, s{S_RG}, 4624", f"s_mul_i32 s{S_T1}, s{S_CG}, 2312", f"s_add_u32 s{S_T0}, s{S_T0}, s{S_T1}",
      f"s_add_u32 s{S_T0}, s{S_T0}, {KVL}", f"v_add_u32 v12, s{S_T0}, v12",
      f"v_cmp_eq_u32_e64 s[98:99], 1, v13",
      f"s_lshr_b32 s64, s{S_WAVE}, 1", f"s_and_b32 s65, s{S_WAVE}, 1",
      f"v_lshrrev_b32 v2, 4, v1", f"v_and_b32 v3, 15, v1", f"s_lshl_b32 s{S_T0}, s65, 3", f"v_add_u32 v2, s{S_T0}, v2",
      f"v_mul_u32_u24 v8, 68, v2", f"v_lshl_add_u32 v8, v3, 2, v8", f"s_mul_i32 s{S_T0}, s64, 1156",
      f"s_add_u32 s{S_T0}, s{S_T0}, {KVL}", f"v_add_u32 v8, s{S_T0}, v8",
      f"s_lshl_b32 s{S_T0}, s{S_HG}, 2", f"s_add_u32 s{S_T0}, s{S_T0}, s64", f"s_lshl_b32 s{S_T1}, s{S_T0}, 10",
      f"v_lshlrev_b32 v9, 6, v2", f"v_lshl_add_u32 v9, v3, 2, v9", f"v_add_u32 v9, s{S_T1}, v9",
      f"s_lshl_b32 s{S_T1}, s{S_T0}, 6", f"s_add_u32 s{S_T1}, s{S_T1}, {Z_OFF}", f"v_lshlrev_b32 v10, 2, v3", f"v_add_u32 v10, s{S_T1}, v10",
      f"v_lshrrev_b32 v7, 2, v0", f"s_lshl_b32 s{S_T0}, s{S_RB}, 7", f"v_add_u32 v7, s{S_T0}, v7", f"v_lshlrev_b32 v7, 2, v7",
      f"v_add_u32 v7, {G_OFF}, v7"]
    fill += [f"v_cndmask_b32_e64 v{100+j}, v{D1+j}, v{D1+8+j}, s[98:99]" for j in range(8)]
    fill += [f"v_cndmask_b32_e64 v{80+j}, v{D2+j}, v{D2+8+j}, s[98:99]" for j in range(8)]
    nper = (len(fill) + 30) // 31
    k = 0
    for n in range(32):
        issued = min(32, n + PF)
        if n == 10:
            a("s_waitcnt vmcnt(1)")
            a("s_barrier")
        a(f"s_waitcnt lgkmcnt({2*(issued - n - 1)})")
        a(qm(n))
        if n + PF < 32: emit(q_reads(n + PF, n + PF + 1))
        if n >= 1:
            emit(fill[k:k+nper]); k += nper
    emit(fill[k:])
    st.stamp(a, "b_pass2")
    for j in range(0, 8, 2):
        a(f"ds_write2_b32 v12, v{100+j}, v{101+j} offset0:{j} offset1:{j+1}")
    a(f"v_add_u32 v12, {16*68}, v12")
    a("s_mov_b32 s66, 0x00010001"); a("s_mov_b32 s67, 0x00010001")
    a("s_mov_b64 exec, s[66:67]")
    for j in range(0, 8, 2):
        a(f"ds_write2_b32 v12, v{80+j}, v{81+j} offset0:{j} offset1:{j+1}")
    a("s_mov_b64 exec, -1")
    emit([f"s_lshl_b32 s{S_T0}, s{S_RB}, 2", f"s_add_u32 s{S_T0}, s{S_T0}, s{S_RG}", f"s_lshl_b32 s{S_T0}, s{S_T0}, 5",
          f"s_lshl_b32 s{S_T1}, s{S_HG}, 2", f"s_add_u32 s{S_T0}, s{S_T0}, s{S_T1}", f"s_lshl_b32 s{S_T1}, s{S_CG}, 1",
          f"s_add_u32 s{S_T0}, s{S_T0}, s{S_T1}", f"s_lshl_b32 s{S_T0}, s{S_T0}, 10", f"s_add_u32 s{S_T0}, s{S_T0}, {WS_PQ}",
          f"v_lshlrev_b32 v12, 4, v1", f"v_add_u32 v12, s{S_T0}, v12"])
    emit(phi_list(ACCQ, 8, 40, 32, S_L2E, S_EPS))
    a(f"global_store_dwordx4 v12, v[40:43], {s(S_WS,2)} sc1")
    a("s_waitcnt vmcnt(1) lgkmcnt(0)")
    a("s_barrier")
    st.stamp(a, "b_kvbar")
    for n in range(3):
        for rg in range(4):
            a(f"ds_read_b32 v{80+4*n+rg}, v8 offset:{rg*4624 + n*4*68}")
    emit(phi_list(ACCQ+8, 8, 44, 32, S_L2E, S_EPS))
    a(f"global_store_dwordx4 v12, v[44:47], {s(S_WS,2)} offset:1024 sc1")
    a.label("L_b_poll")
    a("v_readfirstlane_b32 s66, v15")
    a("s_cmp_eq_u32 s66, 1")
    a("s_cbranch_scc1 L_b_flagok")
    a("s_sleep 2")
    a(f"global_load_dword v15, v14, {s(S_DBG,2)} sc1")
    a("s_waitcnt vmcnt(0)")
    a("s_branch L_b_poll")
    a.label("L_b_flagok")
    a("s_waitcnt lgkmcnt(0)")
    for n in range(3):
        a(f"v_add_f32 v{80+4*n}, v{80+4*n}, v{81+4*n}")
        a(f"v_add_f32 v{82+4*n}, v{82+4*n}, v{83+4*n}")
    for n in range(3):
        a(f"v_add_f32 v{80+4*n}, v{80+4*n}, v{82+4*n}")
    a(f"global_atomic_add_f32 v9, v80, {s(S_KVB,2)} sc1")
    a(f"global_atomic_add_f32 v9, v84, {s(S_KVB,2)} offset:256 sc1")
    a("s_mov_b32 s66, 0x11111111"); a("s_mov_b32 s67, 0x11111111"); a("s_mov_b64 exec, s[66:67]")
    a(f"global_atomic_add_f32 v7, v{GP}, {s(S_KVB,2)} sc1")
    a("s_mov_b64 exec, -1")
    a(f"s_cmp_eq_u32 s65, 1")
    a("s_cbranch_scc0 L_b_noz")
    a("s_mov_b64 exec, 0xffff")
    a(f"global_atomic_add_f32 v10, v88, {s(S_KVB,2)} sc1")
    a("s_mov_b64 exec, -1")
    a.label("L_b_noz")
    st.stamp(a, "b_end")
    if G.ITERSTAMP: st.on = True


CNT_OFF = 34816 + 8192
NSHARD = 16

def phase2_fused(a, st):
    S_W=S_WAVE; S_SB=51; S_CB=52; S_T0=53; S_T1=54; S_CW=55; S_KH=56; SRD=60; S_M0=57; S_SO=58; SKV=64; S_CN=86
    def emit(L):
        for x in L: a(x)
    ws = s(S_WS,2)
    a(f"s_add_u32 s{S_CN}, s{S_WS}, {WS_KV + CNT_OFF}")
    a(f"s_addc_u32 s{S_CN+1}, s{S_WS+1}, 0")
    a(f"s_cmp_lg_u32 s{S_W}, 0")
    a("s_cbranch_scc1 L_p2_noarr")
    a(f"s_and_b32 s{S_T0}, s2, {NSHARD-1}")
    a(f"s_lshl_b32 s{S_T0}, s{S_T0}, 8")
    a(f"v_mov_b32 v2, s{S_T0}")
    a("v_mov_b32 v3, 1")
    a("s_mov_b64 exec, 1")
    a(f"global_atomic_add v2, v3, {s(S_CN,2)} sc1")
    a("s_mov_b64 exec, -1")
    a.label("L_p2_noarr")
    st.stamp(a, "p2_arr")
    if st.on:
        a("s_memrealtime s[96:97]"); a("s_waitcnt lgkmcnt(0)"); a("s_mov_b32 s82, s96")
    a(f"s_and_b32 s{S_T0}, s2, 7")
    a(f"s_lshr_b32 s{S_T1}, s2, 3")
    a(f"s_and_b32 s{S_CB}, s{S_T1}, 3")
    a(f"s_lshr_b32 s{S_T1}, s{S_T1}, 2")
    a(f"s_lshl_b32 s{S_SB}, s{S_T0}, 3")
    a(f"s_add_u32 s{S_SB}, s{S_SB}, s{S_T1}")
    a(f"s_and_b32 s{S_CW}, s{S_W}, 3")
    a(f"s_lshr_b32 s{S_KH}, s{S_W}, 2")
    M=2; HH=3
    a(f"v_and_b32 v1, 63, v0")
    a(f"v_and_b32 v{M}, 31, v1")
    a(f"v_lshrrev_b32 v{HH}, 5, v1")
    a(f"v_lshlrev_b32 v4, 4, v1")
    a(f"v_lshrrev_b32 v10, 4, v1")
    a(f"v_and_b32 v11, 15, v1")
    a(f"v_lshlrev_b32 v12, 2, v10")
    a(f"v_xor_b32 v11, v11, v12")
    a(f"v_lshlrev_b32 v11, 4, v11")
    a(f"v_lshl_add_u32 v10, v10, 10, v11")
    a(f"s_lshl_b32 s{S_T0}, s{S_CB}, 8")
    a(f"v_add_u32 v10, s{S_T0}, v10")
    a(f"s_mov_b32 s{SRD}, s{S_WO}"); a(f"s_mov_b32 s{SRD+1}, s{S_WO+1}"); a(f"s_mov_b32 s{SRD+2}, {512*1024}"); a(f"s_mov_b32 s{SRD+3}, 0x20000")
    a(f"s_lshl_b32 s{S_M0}, s{S_W}, 10")
    a(f"s_lshl_b32 s{S_SO}, s{S_W}, 12")
    for n in range(16):
        a(f"s_add_u32 m0, s{S_M0}, {n*8192}")
        a(f"buffer_load_dwordx4 v10, {s(SRD,4)}, s{S_SO} offen lds")
        if n < 15: a(f"s_add_u32 s{S_SO}, s{S_SO}, 32768")
    a(f"s_lshl_b32 s{S_T0}, s{S_SB}, 5")
    a(f"s_lshl_b32 s{S_T1}, s{S_W}, 2")
    a(f"s_add_u32 s{S_T0}, s{S_T0}, s{S_T1}")
    a(f"s_lshl_b32 s{S_T0}, s{S_T0}, 10")
    a(f"s_add_u32 s{S_T0}, s{S_T0}, {WS_PQ}")
    a(f"v_add_u32 v5, s{S_T0}, v4")
    a(f"s_lshl_b32 s{S_T0}, s{S_SB}, 7")
    a(f"s_add_u32 s{S_T0}, s{S_T0}, {WS_KV + G_OFF}")
    a(f"v_lshlrev_b32 v8, 2, v{M}")
    a(f"v_add_u32 v8, s{S_T0}, v8")
    a(f"s_lshl_b32 s{S_T0}, s{S_CB}, 7")
    a(f"s_lshl_b32 s{S_T1}, s{S_CW}, 5")
    a(f"s_add_u32 s{S_T0}, s{S_T0}, s{S_T1}")
    a(f"v_add_u32 v9, s{S_T0}, v{M}")
    a(f"v_lshlrev_b32 v9, 12, v9")
    a(f"v_lshl_add_u32 v9, v{HH}, 4, v9")
    a(f"s_lshl_b32 s{S_T0}, s{S_SB}, 6")
    a(f"v_add_u32 v9, s{S_T0}, v9")
    a(f"v_and_b32 v11, 15, v1")
    a(f"v_lshrrev_b32 v12, 2, v11")
    a(f"v_lshl_add_u32 v14, v{HH}, 2, v12")
    a(f"v_lshlrev_b32 v14, 8, v14")
    a(f"v_bfe_u32 v15, v1, 4, 1")
    a(f"v_lshlrev_b32 v15, 1, v15")
    a(f"s_lshl_b32 s{S_T0}, s{S_CW}, 2")
    a(f"v_add_u32 v15, s{S_T0}, v15")
    a(f"v_bfe_u32 v24, v11, 1, 1")
    a(f"v_add_u32 v15, v15, v24")
    a(f"v_lshlrev_b32 v24, 2, v12")
    a(f"v_xor_b32 v15, v15, v24")
    a(f"v_lshl_add_u32 v14, v15, 4, v14")
    a(f"v_and_b32 v24, 1, v11")
    WR=14
    a(f"v_lshl_add_u32 v{WR}, v24, 3, v14")
    a(f"s_lshl_b32 s{S_T0}, s{S_KH}, 16")
    a(f"v_add_u32 v{WR}, s{S_T0}, v{WR}")
    OF=65536; ZS=32768; XCHG=98304
    OFA=12; OWN=11
    a(f"s_lshl_b32 s{S_T0}, s{S_KH}, 14")
    a(f"s_add_u32 s{S_T0}, s{S_T0}, {OF}")
    a(f"v_add_u32 v{OFA}, s{S_T0}, v4")
    a(f"s_lshl_b32 s{S_T0}, s{S_W}, 12")
    a(f"s_add_u32 s{S_T1}, s{S_T0}, {OF}")
    a(f"v_add_u32 v{OWN}, s{S_T1}, v4")
    KVA=[16,17,18,19]
    a(f"v_lshlrev_b32 v24, 6, v{M}")
    a(f"v_lshl_add_u32 v24, v{HH}, 5, v24")
    a(f"v_add_u32 v24, s{S_T0}, v24")
    a(f"s_lshl_b32 s{S_T1}, s{S_W}, 8")
    a(f"s_add_u32 s{S_T1}, s{S_T1}, {ZS}")
    a(f"v_lshlrev_b32 v25, 5, v{HH}")
    a(f"v_add_u32 v25, s{S_T1}, v25")
    a(f"v_cmp_gt_u32_e64 s[98:99], 16, v{M}")
    a(f"v_cndmask_b32_e64 v{KVA[0]}, v25, v24, s[98:99]")
    a(f"v_mov_b32 v26, 64"); a(f"v_mov_b32 v27, 1024")
    a(f"v_cndmask_b32_e64 v26, v26, v27, s[98:99]")
    for n in range(1, 4):
        a(f"v_add_u32 v{KVA[n]}, v{KVA[n-1]}, v26")
    a(f"v_and_b32 v128, 7, v{M}")
    a(f"v_and_b32 v129, 1, v128")
    a(f"v_lshlrev_b32 v129, 4, v129")
    a(f"v_mov_b32 v130, 0x3f80")
    a(f"v_lshlrev_b32 v130, v129, v130")
    a(f"v_lshrrev_b32 v128, 1, v128")
    a(f"v_bfe_u32 v129, v{M}, 3, 1")
    a(f"v_cmp_eq_u32_e64 s[98:99], v129, v{HH}")
    a(f"v_cndmask_b32_e64 v130, 0, v130, s[98:99]")
    a(f"v_lshrrev_b32 v129, 4, v{M}")
    a(f"v_lshl_add_u32 v128, v129, 2, v128")
    for k in range(8):
        a(f"v_cmp_eq_u32_e64 s[98:99], {k}, v128")
        a(f"v_cndmask_b32_e64 v{24+k}, 0, v130, s[98:99]")
    a(f"s_add_u32 s{SKV}, s{S_WS}, {WS_KV}"); a(f"s_addc_u32 s{SKV+1}, s{S_WS+1}, 0"); a(f"s_mov_b32 s{SKV+2}, {KV16_BYTES + 2048}"); a(f"s_mov_b32 s{SKV+3}, 0x20000")
    a(f"s_lshl_b32 s{S_T0}, s{S_SB}, 5")
    a(f"v_add_u32 v6, s{S_T0}, v{M}")
    a(f"v_lshlrev_b32 v6, 10, v6")
    a(f"v_lshl_add_u32 v6, v{HH}, 4, v6")
    a(f"s_lshl_b32 s{S_T0}, s{S_CB}, 8")
    a(f"s_lshl_b32 s{S_T1}, s{S_CW}, 6")
    a(f"s_add_u32 s{S_T0}, s{S_T0}, s{S_T1}")
    a(f"s_lshl_b32 s{S_T1}, s{S_KH}, 5")
    a(f"s_add_u32 s{S_T0}, s{S_T0}, s{S_T1}")
    a(f"v_add_u32 v6, s{S_T0}, v6")
    FW=192
    a("s_waitcnt vmcnt(0)")
    a("s_barrier")
    st.stamp(a, "p2_wo")
    for hl in range(16):
        a(f"ds_read_b64_tr_b16 {v(FW+4*hl,2)}, v{WR} offset:{hl*4096}")
        a(f"ds_read_b64_tr_b16 {v(FW+4*hl+2,2)}, v{WR} offset:{hl*4096+2048}")
    a(f"s_cmp_lg_u32 s{S_W}, 0")
    a("s_cbranch_scc1 L_p2_wait")
    a(f"v_and_b32 v7, {NSHARD-1}, v1")
    a(f"v_lshlrev_b32 v7, 8, v7")
    a("s_mov_b32 s92, 0")
    a.label("L_p2_poll")
    a(f"global_load_dword v13, v7, {s(S_CN,2)} sc1")
    a("s_waitcnt vmcnt(0)")
    a(f"v_add_u32_dpp v13, v13, v13 row_shr:1 row_mask:0xf bank_mask:0xf bound_ctrl:0")
    a(f"v_add_u32_dpp v13, v13, v13 row_shr:2 row_mask:0xf bank_mask:0xf bound_ctrl:0")
    a(f"v_add_u32_dpp v13, v13, v13 row_shr:4 row_mask:0xf bank_mask:0xf bound_ctrl:0")
    a(f"v_add_u32_dpp v13, v13, v13 row_shr:8 row_mask:0xf bank_mask:0xf bound_ctrl:0")
    a(f"v_readlane_b32 s93, v13, 15")
    a("s_add_u32 s92, s92, 1")
    a("s_cmp_eq_u32 s93, 256")
    a("s_cbranch_scc1 L_p2_wait")
    a("s_cmp_lt_u32 s92, 0x100000")
    a("s_cbranch_scc1 L_p2_poll")
    a.label("L_p2_wait")
    a("s_waitcnt lgkmcnt(0)")
    a("s_barrier")
    st.stamp(a, "p2_go")
    if st.on:
        a("s_memrealtime s[96:97]"); a("s_waitcnt lgkmcnt(0)"); a("s_mov_b32 s83, s96")
    PQ=32; KVF=64; G_=13; AT=48
    a(f"s_lshl_b32 s{S_M0}, s{S_W}, 12")
    for n in range(4):
        a(f"s_add_u32 m0, s{S_M0}, {1024*n}")
        a(f"s_add_u32 s{S_T0}, s{S_M0}, {1024*n}")
        a(f"buffer_load_dwordx4 v4, {s(SKV,4)}, s{S_T0} offen sc1 lds")
    a(f"s_lshl_b32 s{S_T1}, s{S_W}, 8")
    a(f"s_add_u32 m0, s{S_T1}, {ZS}")
    a(f"s_add_u32 s{S_T0}, s{S_T1}, {Z_OFF}")
    a("s_mov_b64 exec, 0xffff")
    a(f"buffer_load_dwordx4 v4, {s(SKV,4)}, s{S_T0} offen sc1 lds")
    a("s_mov_b64 exec, -1")
    for n in range(4):
        a(f"global_load_dwordx4 {v(PQ+4*n,4)}, v5, {ws} offset:{n*1024} sc1")
    a(f"global_load_dword v{G_}, v8, {ws} sc1")
    a(f"s_cmp_eq_u32 s{S_KH}, 0")
    a("s_mov_b32 s93, 0xffff0000")
    a("s_cselect_b32 s92, 0x0000ffff, s93")
    a("s_mov_b32 s93, s92")
    a("s_mov_b64 exec, s[92:93]")
    a(f"global_load_dwordx4 {v(AT,4)}, v9, {ws} sc1")
    a(f"global_load_dwordx4 {v(AT+4,4)}, v9, {ws} offset:32 sc1")
    a("s_mov_b64 exec, -1")
    a("s_waitcnt vmcnt(7)")
    for n in range(4):
        a(f"ds_read_b128 {v(KVF+8*n,4)}, v{KVA[n]}")
        a(f"ds_read_b128 {v(KVF+8*n+4,4)}, v{KVA[n]} offset:16")
    a("s_waitcnt vmcnt(3) lgkmcnt(0)")
    st.stamp(a, "p2_in")
    D=128; AF=160; OO=168
    a("s_mov_b32 s92, 0x358637bd")
    def kvcvt(n):
        for k in range(4):
            a(f"v_cvt_pk_bf16_f32 v{AF+4*(n%2)+k}, v{KVF+8*n+2*k}, v{KVF+8*n+2*k+1}")
    def omfma(n):
        a(f"v_mfma_f32_32x32x16_bf16 {v(D+16*(n%2),16)}, {v(AF+4*(n%2),4)}, {v(PQ+4*n,4)}, 0")
    def onorm(n):
        d = D + 16*(n%2); o = OO + 4*(n%2)
        a(f"v_add_f32 v{d+8}, s92, v{d+8}")
        a(f"v_rcp_f32 v{d+8}, v{d+8}")
        for k in range(0, 8, 2):
            a(f"v_pk_mul_f32 {v(d+k,2)}, {v(d+k,2)}, {v(d+8,2)} op_sel_hi:[1,0]")
        for k in range(4):
            a(f"v_cvt_pk_bf16_f32 v{o+k}, v{d+2*k}, v{d+2*k+1}")
        a(f"ds_write_b128 v{OWN}, {v(o,4)} offset:{1024*n}")
    kvcvt(0); omfma(0); kvcvt(1); omfma(1)
    onorm(0); kvcvt(2); omfma(2); onorm(1); kvcvt(3); omfma(3); onorm(2); onorm(3)
    ACCA=176; ACCB=96
    a(f"s_waitcnt lgkmcnt(0)")
    a("s_barrier")
    st.stamp(a, "p2_of")
    FO=128
    for hl in range(8):
        a(f"ds_read_b128 {v(FO+4*hl,4)}, v{OFA} offset:{1024*hl}")
    for hl in range(16):
        left = min(16, hl + 8) - hl - 1
        a(f"s_waitcnt lgkmcnt({left})")
        c = "0" if hl == 0 else v(ACCB,16)
        a(f"v_mfma_f32_32x32x16_bf16 {v(ACCB,16)}, {v(FW+4*hl,4)}, {v(FO+4*(hl%8),4)}, {c}")
        if hl + 8 < 16: a(f"ds_read_b128 {v(FO+4*(hl%8),4)}, v{OFA} offset:{1024*(hl+8)}")
        if hl == 11:
            a(f"s_waitcnt vmcnt(0)")
            a(f"v_mul_f32 v{G_}, 0xbfb8aa3b, v{G_}")
            a(f"v_exp_f32 v{G_}, v{G_}")
        if hl == 12:
            a(f"v_add_f32 v{G_}, 1.0, v{G_}")
            a(f"v_rcp_f32 v{G_}, v{G_}")
    a(f"v_mfma_f32_32x32x16_bf16 {v(ACCA,16)}, {v(AT,4)}, v[24:27], 0")
    a(f"v_mfma_f32_32x32x16_bf16 {v(ACCA,16)}, {v(AT+4,4)}, v[28:31], {v(ACCA,16)}")
    st.stamp(a, "p2_gemm")
    XA_=20
    a(f"s_lshl_b32 s{S_T0}, s{S_CW}, 12")
    a(f"s_add_u32 s{S_T0}, s{S_T0}, {XCHG}")
    a(f"v_add_u32 v{XA_}, s{S_T0}, v4")
    a(f"s_cmp_eq_u32 s{S_KH}, 0")
    a("s_cbranch_scc0 L_p2_x1")
    a(f"ds_write_b128 v{XA_}, {v(ACCB+8,4)} offset:0")
    a(f"ds_write_b128 v{XA_}, {v(ACCB+12,4)} offset:1024")
    a("s_waitcnt lgkmcnt(0)")
    a("s_barrier")
    a(f"ds_read_b128 v[32:35], v{XA_} offset:2048")
    a(f"ds_read_b128 v[36:39], v{XA_} offset:3072")
    a("s_waitcnt lgkmcnt(0)")
    for k in range(8):
        a(f"v_add_f32 v{40+k}, v{ACCB+k}, v{32+k}")
        a(f"v_sub_f32 v{48+k}, v{ACCA+k}, v{40+k}")
    a("s_branch L_p2_x2")
    a.label("L_p2_x1")
    a(f"ds_write_b128 v{XA_}, {v(ACCB,4)} offset:2048")
    a(f"ds_write_b128 v{XA_}, {v(ACCB+4,4)} offset:3072")
    a("s_waitcnt lgkmcnt(0)")
    a("s_barrier")
    a(f"ds_read_b128 v[32:35], v{XA_} offset:0")
    a(f"ds_read_b128 v[36:39], v{XA_} offset:1024")
    a("s_waitcnt lgkmcnt(0)")
    for k in range(8):
        a(f"v_add_f32 v{40+k}, v{ACCB+8+k}, v{32+k}")
        a(f"v_sub_f32 v{48+k}, v{ACCA+8+k}, v{40+k}")
    a.label("L_p2_x2")
    for k in range(8):
        a(f"v_fma_f32 v{48+k}, v{48+k}, v{G_}, v{40+k}")
    P=56
    for k in range(4):
        a(f"v_cvt_pk_bf16_f32 v{P+k}, v{48+2*k}, v{48+2*k+1}")
    a(f"v_permlane32_swap_b32 v{P}, v{P+2}")
    a(f"v_permlane32_swap_b32 v{P+1}, v{P+3}")
    a(f"global_store_dwordx4 v6, {v(P,4)}, {s(S_OUT,2)}")
    st.stamp(a, "p2_end")
```

```python
import sys, math
from asmlib import Asm

NAME = "gated_mix__ssm_conv_s4__linear_attn_block__prompt"
WS_AT = 0
WS_PQ = 2 << 20
WS_WF = 5 << 20
WS_KV = 4 << 20
ZERO_BYTES = 32*1024 + 2048 + 8192 + 64*256 + 16*256
NPRE = int(([x[5:] for x in sys.argv if x.startswith('npre=')] + ['0'])[0])
DEEP = 'shallow' not in sys.argv
ITERSTAMP = 'iter' in sys.argv
FMODE = ([x[2:] for x in sys.argv if x.startswith('f=')] + ['rb'])[0]
PNT = '' if 'nont' in sys.argv else ' nt'
PSLEEP = int(([x[7:] for x in sys.argv if x.startswith('psleep=')] + ['4'])[0])
HL = ' sc1' if 'hlsc1' in sys.argv else ''
XNT = 'xnt' in sys.argv
WNT = 'wnt' in sys.argv
SNT = 'snt' in sys.argv
LOG2E = 0x3fb8aa3b
INV2PI = 0x3e22f983

FT_STRIDE = 60 * 528
ROWB = 528
U_BASE = 4 * FT_STRIDE
U_CH = 9280
U1_OFF = 4640
KC1 = 4224
WOC_OFF = 32*1024 + 2048 + 8192 + 64*256
LFLAG = 20480
XCH = 8704

def v(i, n=1):
    return f"v{i}" if n == 1 else f"v[{i}:{i+n-1}]"
def s(i, n=1):
    return f"s{i}" if n == 1 else f"s[{i}:{i+n-1}]"

class Stamps:
    def __init__(self, on): self.on = on; self.n = 0; self.base = 70
    def stamp(self, a, name):
        if not self.on: return
        a(f"s_memtime s[96:97]")
        a(f"s_waitcnt lgkmcnt(0)")
        a(f"s_mov_b32 s{self.base+self.n}, s96")
        self.n += 1

def sum16(a, r, sdst):
    for sh in (1, 2, 4, 8):
        a(f"v_add_u32_dpp v{r}, v{r}, v{r} row_shr:{sh} row_mask:0xf bank_mask:0xf bound_ctrl:0")
    a(f"v_readlane_b32 s{sdst}, v{r}, 15")

def sum8(a, r, sdst):
    for sh in (1, 2, 4):
        a(f"v_add_u32_dpp v{r}, v{r}, v{r} row_shr:{sh} row_mask:0xf bank_mask:0xf bound_ctrl:0")
    a(f"v_readlane_b32 s{sdst}, v{r}, 7")

def cmul(a, dst, x, y, tmp):
    a(f"v_pk_mul_f32 {v(tmp,2)}, {v(x,2)}, {v(y,2)} op_sel:[0,0] op_sel_hi:[0,1]")
    a(f"v_pk_fma_f32 {v(dst,2)}, {v(x,2)}, {v(y,2)}, {v(tmp,2)} op_sel:[1,1,0] op_sel_hi:[1,0,1] neg_lo:[1,0,0]")

def cmul2(a, dsts, xs, ys, tmps):
    for d, x, y, t in zip(dsts, xs, ys, tmps):
        a(f"v_pk_mul_f32 {v(t,2)}, {v(x,2)}, {v(y,2)} op_sel:[0,0] op_sel_hi:[0,1]")
    for d, x, y, t in zip(dsts, xs, ys, tmps):
        a(f"v_pk_fma_f32 {v(d,2)}, {v(x,2)}, {v(y,2)}, {v(t,2)} op_sel:[1,1,0] op_sel_hi:[1,0,1] neg_lo:[1,0,0]")

def cexp(a, dst, ar, ai, scale, t0, t1):
    if scale is None:
        a(f"v_exp_f32 {v(t0)}, {v(ar)}")
        a(f"v_fract_f32 {v(t1)}, {v(ai)}")
    else:
        a(f"v_mul_f32 {v(t0)}, {scale}, {v(ar)}")
        a(f"v_mul_f32 {v(t1)}, {scale}, {v(ai)}")
        a(f"v_exp_f32 {v(t0)}, {v(t0)}")
        a(f"v_fract_f32 {v(t1)}, {v(t1)}")
    a(f"v_cos_f32 {v(dst)}, {v(t1)}")
    a(f"v_sin_f32 {v(dst+1)}, {v(t1)}")
    a(f"v_mul_f32 {v(dst)}, {v(dst)}, {v(t0)}")
    a(f"v_mul_f32 {v(dst+1)}, {v(dst+1)}, {v(t0)}")

S_U=16; S_ARE=18; S_AIM=20; S_BRE=22; S_BIM=24; S_CRE=26; S_CIM=28; S_LDT=30
S_DSK=32; S_WQKV=36; S_WO=38; S_GW=40; S_OUT=42; S_DBG=44; S_WS=46
S_WAVE=48; S_XCD=49; S_IDX=50

def k1_prologue(a, st):
    a("s_cmp_ge_u32 s2, 256")
    a("s_cbranch_scc1 L_k1_end")
    a("s_load_dwordx16 s[16:31], s[0:1], 0")
    a("s_load_dwordx4 s[32:35], s[0:1], 64")
    a("s_load_dwordx4 s[36:39], s[0:1], 80")
    a("s_load_dwordx4 s[40:43], s[0:1], 96")
    a("s_load_dwordx4 s[44:47], s[0:1], 112")
    if st.on:
        a("s_memtime s[68:69]")
        a("s_memrealtime s[100:101]")
    a("v_lshrrev_b32 v1, 6, v0")
    a(f"v_readfirstlane_b32 s{S_WAVE}, v1")
    a("v_and_b32 v1, 63, v0")
    a(f"s_and_b32 s{S_XCD}, s2, 7")
    a(f"s_lshr_b32 s{S_IDX}, s2, 4")
    a("s_bitcmp1_b32 s2, 3")
    a("s_cbranch_scc1 L_roleB")

def role_a(a, st):
    S_CH=51; S_HALF=52; S_CHN=53; S_CH0=54; S_FT=55; S_T0=56; S_T1=57; S_DT=58; S_DSKV=59; S_UB=90
    SRD_U=64
    GA0=72; GA1=73; GM=74
    def grow(r): return f"buffer_load_dwordx2 v[{4+2*r}:{5+2*r}], v{GA0 if r < 4 else GA1}, {s(SRD_U,4)}, 0 offen offset:{(r%4)*1024}"
    a.label("L_roleA")
    a(f"s_and_b32 s{S_CH}, s{S_WAVE}, 3")
    a(f"s_lshr_b32 s{S_HALF}, s{S_WAVE}, 2")
    a(f"s_lshl_b32 s{S_CH0}, s{S_XCD}, 6")
    a(f"s_lshl_b32 s{S_T0}, s{S_IDX}, 2")
    a(f"s_add_u32 s{S_CH0}, s{S_CH0}, s{S_T0}")
    a(f"s_add_u32 s{S_CHN}, s{S_CH0}, s{S_CH}")
    a(f"s_mul_i32 s{S_FT}, s{S_CH}, {FT_STRIDE}")
    a(f"s_mul_i32 s{S_UB}, s{S_CH}, {U_CH}")
    a(f"s_add_u32 s{S_UB}, s{S_UB}, {U_BASE}")
    a(f"s_lshl_b32 s{S_T0}, s{S_CHN}, 8")
    a(f"v_lshlrev_b32 v26, 2, v1")
    a(f"v_add_u32 v26, s{S_T0}, v26")
    a("s_waitcnt lgkmcnt(0)")
    a("s_cmp_ge_u32 s2, 8")
    a("s_cbranch_scc1 L_a_nozero")
    a(f"s_add_u32 s60, s{S_WS}, {WS_KV}")
    a(f"s_addc_u32 s61, s{S_WS+1}, 0")
    a(f"s_mov_b32 s62, {ZERO_BYTES}")
    a("s_mov_b32 s63, 0x20000")
    a("v_lshlrev_b32 v27, 4, v0")
    a("s_lshl_b32 s66, s2, 13")
    a("v_add_u32 v27, s66, v27")
    for i in range(4): a(f"v_mov_b32 v{28+i}, 0")
    a(f"buffer_store_dwordx4 v[28:31], v27, s[60:63], 0 offen sc1")
    a.label("L_a_nozero")
    a(f"global_load_dword v20, v26, {s(S_ARE,2)}{PNT}")
    a(f"global_load_dword v21, v26, {s(S_AIM,2)}{PNT}")
    a(f"s_lshl_b32 s{S_T0}, s{S_CHN}, 1")
    a(f"s_and_b32 s{S_T0}, s{S_T0}, 0xfffffffc")
    a(f"s_load_dword s{S_DT}, {s(S_LDT,2)}, s{S_T0}")
    a(f"s_load_dword s{S_DSKV}, {s(S_DSK,2)}, s{S_T0}")
    a(f"s_cmp_eq_u32 s{S_HALF}, 0")
    a("s_cbranch_scc0 L_a_gather")
    a(f"global_load_dword v22, v26, {s(S_BRE,2)}{PNT}")
    a(f"global_load_dword v23, v26, {s(S_BIM,2)}{PNT}")
    a(f"global_load_dword v24, v26, {s(S_CRE,2)}{PNT}")
    a(f"global_load_dword v25, v26, {s(S_CIM,2)}{PNT}")
    S_AI=92
    a(f"s_lshl_b32 s{S_AI}, s{S_XCD}, 4"); a(f"s_add_u32 s{S_AI}, s{S_AI}, s{S_IDX}")
    a(f"s_mov_b32 s4, s{S_WO}"); a(f"s_mov_b32 s5, s{S_WO+1}"); a(f"s_mov_b32 s6, {512*1024}"); a(f"s_mov_b32 s7, 0x20000")
    a(f"s_and_b32 s{S_T0}, s{S_AI}, 3"); a(f"s_lshl_b32 s{S_T0}, s{S_T0}, 2"); a(f"s_add_u32 s93, s{S_T0}, s{S_CH}")
    a(f"v_lshrrev_b32 v27, 2, v1")
    a(f"v_lshlrev_b32 v27, 10, v27")
    a(f"v_and_b32 v28, 3, v1")
    a(f"v_lshl_add_u32 v27, v28, 4, v27")
    a(f"s_lshr_b32 s{S_T0}, s{S_AI}, 2"); a(f"s_lshl_b32 s{S_T0}, s{S_T0}, 14")
    a(f"s_lshl_b32 s{S_T1}, s93, 6"); a(f"s_add_u32 s{S_T0}, s{S_T0}, s{S_T1}")
    a(f"s_lshl_b32 s{S_T1}, s{S_CH}, 10"); a(f"s_add_u32 m0, s{S_T1}, {U_BASE}")
    a(f"buffer_load_dwordx4 v27, s[4:7], s{S_T0} offen lds")
    a("s_branch L_a_p1")
    a.label("L_a_gather")
    a(f"s_mov_b32 s{SRD_U}, s{S_U}")
    a(f"s_mov_b32 s{SRD_U+1}, s{S_U+1}")
    a(f"s_mov_b32 s{SRD_U+2}, {2048*1024}")
    a(f"s_mov_b32 s{SRD_U+3}, 0x20000")
    a(f"v_and_b32 v27, 255, v0")
    a(f"v_lshrrev_b32 v28, 3, v27")
    a(f"s_lshl_b32 s{S_T0}, s{S_IDX}, 7")
    a(f"v_add_u32 v28, s{S_T0}, v28")
    a(f"v_lshlrev_b32 v28, 10, v28")
    a(f"v_and_b32 v29, 7, v27")
    a(f"v_lshl_add_u32 v28, v29, 4, v28")
    a(f"s_lshl_b32 s{S_T0}, s{S_XCD}, 7")
    a(f"v_add_u32 v28, s{S_T0}, v28")
    for j in range(4):
        a(f"s_mov_b32 s{S_T1}, {j*32768}")
        a(f"buffer_load_dwordx4 v[224:227], v28, {s(SRD_U,4)}, s{S_T1} offen" + (" nt" if SNT else ""))
    a(f"v_lshlrev_b32 v{GA0}, 13, v27")
    a(f"s_lshl_b32 s{S_T0}, s{S_CH0}, 1")
    a(f"v_add_u32 v{GA0}, s{S_T0}, v{GA0}")
    a(f"v_add_u32 v{GA1}, 4096, v{GA0}")
    a(f"v_subrev_u32 v{GM}, 1024, v{GA0}")
    a(f"v_cmp_eq_u32_e64 s[98:99], 0, v27")
    a(f"v_mov_b32 v31, 0x7ffffff0")
    a(f"v_cndmask_b32_e64 v{GM}, v{GM}, v31, s[98:99]")
    a.label("L_a_p1")
    a(f"s_lshl_b32 s91, s{S_XCD}, 4"); a(f"s_add_u32 s91, s91, s{S_IDX}")
    a("s_waitcnt lgkmcnt(0)")
    a(f"s_bitcmp1_b32 s{S_CHN}, 0")
    a(f"s_cselect_b32 s{S_T0}, 16, 0")
    a(f"s_lshr_b32 s{S_DT}, s{S_DT}, s{S_T0}")
    a(f"s_lshl_b32 s{S_DT}, s{S_DT}, 16")
    a(f"s_lshr_b32 s{S_DSKV}, s{S_DSKV}, s{S_T0}")
    a(f"s_lshl_b32 s{S_DSKV}, s{S_DSKV}, 16")
    DT=68
    a(f"v_mov_b32 v{DT}, {LOG2E}")
    a(f"v_mul_f32 v{DT}, s{S_DT}, v{DT}")
    a(f"v_exp_f32 v{DT}, v{DT}")
    a(f"v_cvt_pk_bf16_f32 v{DT}, v{DT}, v{DT}")
    a(f"v_lshlrev_b32 v{DT}, 16, v{DT}")
    WA=69
    a(f"v_lshlrev_b32 v{WA}, 3, v1")
    a(f"v_add_u32 v{WA}, s{S_FT}, v{WA}")
    a(f"s_cmp_eq_u32 s{S_HALF}, 0")
    a("s_cbranch_scc0 L_a_p1B")
    a("s_waitcnt vmcnt(0)")
    a("s_cmp_ge_u32 s2, 8")
    a("s_cbranch_scc1 L_a_ezA")
    a("s_barrier")
    a(f"s_cmp_lg_u32 s{S_WAVE}, 0")
    a("s_cbranch_scc1 L_a_ezA")
    a("s_lshl_b32 s66, s2, 2")
    a("v_mov_b32 v26, s66")
    a("v_mov_b32 v27, 1")
    a("s_mov_b64 exec, 1")
    a(f"global_store_dword v26, v27, {s(S_DBG,2)} sc1")
    a("s_mov_b64 exec, -1")
    a.label("L_a_ezA")
    st.stamp(a, "a_params")
    AR=[26,27]; AI=[28,29]
    def unpack(dst0, dst1, src):
        a(f"v_lshlrev_b32 v{dst0}, 16, v{src}")
        a(f"v_and_b32 v{dst1}, 0xffff0000, v{src}")
    def arai():
        unpack(AR[0], AR[1], 20); unpack(AI[0], AI[1], 21)
        a(f"s_mov_b32 s{S_T0}, {LOG2E}")
        a(f"s_mov_b32 s{S_T1}, {INV2PI}")
        for m in range(2):
            a(f"v_mul_f32 v{AR[m]}, v{AR[m]}, v{DT}")
            a(f"v_mul_f32 v{AI[m]}, v{AI[m]}, v{DT}")
        for m in range(2):
            a(f"v_mul_f32 v{AR[m]}, s{S_T0}, v{AR[m]}")
            a(f"v_mul_f32 v{AI[m]}, s{S_T1}, v{AI[m]}")
    arai()
    E1=[30,32]; E256=[34,36]; G0=[38,40]; G2=[42,44]; G4=[46,48]; G6=[50,52]; G8=[54,56]; CUR=[58,60]; TMP=[62,64]; O=[66,70]
    for m in range(2):
        cexp(a, E1[m], AR[m], AI[m], None, TMP[m], TMP[m]+1)
    a(f"s_mov_b32 s{S_T0}, 0x43800000")
    for m in range(2):
        cexp(a, E256[m], AR[m], AI[m], f"s{S_T0}", TMP[m], TMP[m]+1)
    unpack(CUR[0], CUR[1], 22)
    a.items = a.items[:-2]
    a(f"v_lshlrev_b32 v{CUR[0]}, 16, v22"); a(f"v_and_b32 v{CUR[1]}, 0xffff0000, v22")
    a(f"v_lshlrev_b32 v{CUR[0]+1}, 16, v23"); a(f"v_and_b32 v{CUR[1]+1}, 0xffff0000, v23")
    a(f"v_lshlrev_b32 v{G2[0]}, 16, v24"); a(f"v_and_b32 v{G2[1]}, 0xffff0000, v24")
    a(f"v_lshlrev_b32 v{G2[0]+1}, 16, v25"); a(f"v_and_b32 v{G2[1]+1}, 0xffff0000, v25")
    for m in range(2):
        a(f"v_mul_f32 v{CUR[m]}, v{CUR[m]}, v{DT}")
        a(f"v_mul_f32 v{CUR[m]+1}, v{CUR[m]+1}, v{DT}")
    cmul2(a, G0, G2, CUR, TMP)
    tog = [0]
    def wrow(src, rho):
        o = O[tog[0]]; tog[0] ^= 1
        for m in range(2):
            a(f"v_cvt_pk_bf16_f32 v{o+m}, v{src[m]}, -v{src[m]+1}")
        for r in (rho if isinstance(rho, (list,tuple)) else [rho]):
            a(f"ds_write_b64 v{WA}, {v(o,2)} offset:{r*ROWB}")
    wrow(G0, 0)
    cmul2(a, CUR, G0, E1, TMP); wrow(CUR, 1)
    cmul2(a, G2, CUR, E1, TMP); wrow(G2, 2)
    cmul2(a, CUR, G2, E1, TMP); wrow(CUR, 3)
    cmul2(a, G4, CUR, E1, TMP); wrow(G4, 4)
    cmul2(a, CUR, G4, E1, TMP); wrow(CUR, 5)
    cmul2(a, G6, CUR, E1, TMP); wrow(G6, 6)
    cmul2(a, CUR, G6, E1, TMP); wrow(CUR, 7)
    cmul2(a, G8, CUR, E1, TMP)
    cmul2(a, G0, G0, E256, TMP); wrow(G0, 8)
    cmul2(a, G2, G2, E256, TMP); wrow(G2, 9)
    cmul2(a, G4, G4, E256, TMP); wrow(G4, [10, 11])
    cmul2(a, G6, G6, E256, TMP); wrow(G6, 12)
    cmul2(a, G8, G8, E256, TMP); wrow(G8, 13)
    for base in (14, 17):
        cmul2(a, G0, G0, E256, TMP); wrow(G0, base)
        cmul2(a, G4, G4, E256, TMP); wrow(G4, base+1)
        cmul2(a, G8, G8, E256, TMP); wrow(G8, base+2)
    for base in (20, 22, 24, 26):
        cmul2(a, G0, G0, E256, TMP); wrow(G0, base)
        cmul2(a, G8, G8, E256, TMP); wrow(G8, base+1)
    a(f"v_and_b32 v38, 15, v1")
    a(f"v_lshrrev_b32 v39, 2, v38")
    a(f"v_lshrrev_b32 v40, 5, v1")
    a(f"v_lshl_add_u32 v39, v40, 2, v39")
    a(f"v_lshlrev_b32 v39, 6, v39")
    a(f"v_bfe_u32 v40, v1, 4, 1")
    a(f"v_lshl_add_u32 v39, v40, 5, v39")
    a(f"v_and_b32 v40, 3, v38")
    a(f"v_lshl_add_u32 v39, v40, 3, v39")
    a(f"s_lshl_b32 s{S_T1}, s{S_CH}, 10"); a(f"s_add_u32 s{S_T1}, s{S_T1}, {U_BASE}")
    a(f"v_add_u32 v39, s{S_T1}, v39")
    a(f"ds_read_b64_tr_b16 v[42:43], v39")
    a(f"ds_read_b64_tr_b16 v[44:45], v39 offset:512")
    a(f"s_lshr_b32 s{S_T0}, s92, 2"); a(f"s_lshl_b32 s{S_T0}, s{S_T0}, 4"); a(f"s_add_u32 s{S_T0}, s{S_T0}, s93")
    a(f"s_lshl_b32 s{S_T0}, s{S_T0}, 10"); a(f"s_add_u32 s{S_T0}, s{S_T0}, {WS_WF}")
    a(f"v_lshlrev_b32 v40, 4, v1")
    a(f"v_add_u32 v40, s{S_T0}, v40")
    a("s_waitcnt lgkmcnt(0)")
    a(f"global_store_dwordx4 v40, v[42:45], {s(S_WS,2)} sc1")
    a("v_and_b32 v46, 7, v1")
    a("v_lshlrev_b32 v46, 2, v46")
    a(f"global_load_dword v47, v46, {s(S_DBG,2)} sc1")
    a("s_waitcnt vmcnt(0)")
    a("s_branch L_a_p1done")
    a.label("L_a_p1B")
    st.n -= 1
    a("s_waitcnt vmcnt(4)")
    a("s_cmp_ge_u32 s2, 8")
    a("s_cbranch_scc1 L_a_ezB")
    a("s_barrier")
    a(f"s_cmp_lg_u32 s{S_WAVE}, 0")
    a("s_cbranch_scc1 L_a_ezB")
    a("s_lshl_b32 s66, s2, 2")
    a("v_mov_b32 v26, s66")
    a("v_mov_b32 v27, 1")
    a("s_mov_b64 exec, 1")
    a(f"global_store_dword v26, v27, {s(S_DBG,2)} sc1")
    a("s_mov_b64 exec, -1")
    a.label("L_a_ezB")
    st.stamp(a, "a_params")
    a("s_mov_b64 exec, 1")
    a(f"buffer_load_dwordx2 v[2:3], v{GM}, {s(SRD_U,4)}, 0 offen")
    a("s_mov_b64 exec, -1")
    for r in range(4): a(grow(r))
    arai()
    E8=[30,32]; F=[34,36]
    a(f"s_mov_b32 s{S_T0}, 0x41000000")
    for m in range(2):
        cexp(a, E8[m], AR[m], AI[m], f"s{S_T0}", TMP[m], TMP[m]+1)
    for m in range(2):
        a(f"v_mov_b32 v{F[m]}, 1.0"); a(f"v_mov_b32 v{F[m]+1}, 0")
    a(f"v_add_u32 v{WA}, {28*ROWB}, v{WA}")
    def brows(n):
        for k in range(n):
            o = O[k & 1]
            for m in range(2):
                a(f"v_cvt_pk_bf16_f32 v{o+m}, v{F[m]}, v{F[m]+1}")
            cmul2(a, F, F, E8, TMP)
            a(f"ds_write_b64 v{WA}, {v(o,2)} offset:{(k%4)*ROWB}")
            if k % 4 == 3: a(f"v_add_u32 v{WA}, {4*ROWB}, v{WA}")
    a(f"s_mov_b32 s{S_T0}, 3")
    a.label("L_a_p1Bloop1")
    brows(4)
    a(f"s_sub_u32 s{S_T0}, s{S_T0}, 1")
    a(f"s_cmp_lg_u32 s{S_T0}, 0")
    a("s_cbranch_scc1 L_a_p1Bloop1")
    a(f"s_mov_b32 s{S_T0}, 3")
    a.label("L_a_p1Bloop2")
    brows(4)
    a(f"s_sub_u32 s{S_T0}, s{S_T0}, 1")
    a(f"s_cmp_lg_u32 s{S_T0}, 0")
    a("s_cbranch_scc1 L_a_p1Bloop2")
    brows(8)
    a.label("L_a_p1done")
    a("v_and_b32 v46, 7, v1")
    a("v_lshlrev_b32 v46, 2, v46")
    st.stamp(a, "a_p1end")
    a("s_waitcnt lgkmcnt(0)")
    a("s_barrier")
    st.stamp(a, "a_p1done")
    a(f"s_cmp_eq_u32 s{S_WAVE}, 1")
    a("s_cbranch_scc0 L_a_nosig")
    a.label("L_a_zpoll")
    sum8(a, 47, 66)
    a("s_cmp_eq_u32 s66, 8")
    a("s_cbranch_scc1 L_a_zok")
    a("s_sleep 4")
    a(f"global_load_dword v47, v46, {s(S_DBG,2)} sc1")
    a("s_waitcnt vmcnt(0)")
    a("s_branch L_a_zpoll")
    a.label("L_a_zok")
    a(f"s_and_b32 s66, s91, 15"); a("s_lshl_b32 s66, s66, 8"); a(f"s_add_u32 s66, s66, {WS_KV + WOC_OFF}")
    a("v_mov_b32 v46, s66"); a("v_mov_b32 v47, 1")
    a("s_mov_b64 exec, 1")
    a(f"global_atomic_add v46, v47, {s(S_WS,2)} sc1")
    a("s_mov_b64 exec, -1")
    a.label("L_a_nosig")
    a(f"s_cmp_eq_u32 s{S_HALF}, 0")
    a("s_cbranch_scc0 L_a_utab")
    RA=26; RB=27; C=28; H=29
    a(f"v_and_b32 v{C}, 31, v1")
    a(f"v_lshrrev_b32 v{H}, 5, v1")
    a(f"v_subrev_u32 v30, 8, v{C}")
    a(f"v_max_i32 v30, 0, v30")
    a(f"v_lshrrev_b32 v30, 2, v30")
    a(f"v_min_u32 v30, 4, v30")
    a(f"v_sub_u32 v30, v{C}, v30")
    a(f"v_mul_u32_u24 v{RA}, {ROWB}, v30")
    a(f"v_mul_u32_u24 v{RB}, {ROWB}, v{C}")
    a(f"v_lshlrev_b32 v31, 4, v{H}")
    a(f"v_add_u32 v31, s{S_FT}, v31")
    a(f"v_add_u32 v{RA}, v{RA}, v31")
    a(f"v_add_u32 v{RB}, v{RB}, v31")
    D=100
    FA=36; FB=68+4
    FB=116
    def rd(sidx):
        a(f"ds_read_b128 {v(FA+4*(sidx%8),4)}, v{RA} offset:{32*sidx}")
        a(f"ds_read_b128 {v(FB+4*(sidx%8),4)}, v{RB} offset:{28*ROWB+32*sidx}")
    for sidx in range(6): rd(sidx)
    for sidx in range(16):
        issued = min(16, sidx + 6)
        a(f"s_waitcnt lgkmcnt({2*(issued - sidx - 1)})")
        c = "0" if sidx == 0 else v(D,16)
        a(f"v_mfma_f32_32x32x16_bf16 {v(D,16)}, {v(FA+4*(sidx%8),4)}, {v(FB+4*(sidx%8),4)}, {c}")
        if sidx + 6 < 16: rd(sidx + 6)
    st.stamp(a, "a_p2")
    B2=30; B3=31; Z=36; FX=32
    a(f"v_sub_u32 v{B2}, 31, v{C}")
    a(f"v_lshlrev_b32 v{B2}, 4, v{B2}")
    a(f"v_add_u32 v{B2}, s{S_FT}, v{B2}")
    a(f"v_sub_u32 v37, 1, v{H}")
    a(f"v_lshl_add_u32 v{B3}, v37, 10, v{B2}")
    a(f"v_lshl_add_u32 v{B2}, v37, 9, v{B2}")
    a(f"v_lshlrev_b32 v38, 2, v1")
    a(f"v_add_u32 v38, s{S_FT}, v38")
    a(f"v_mov_b32 v{Z}, 0")
    a(f"v_and_b32 v39, 1, v{C}")
    a(f"v_cmp_eq_u32_e64 s[98:99], 1, v39")
    a(f"ds_write_b32 v38, v{Z} offset:4096")
    a(f"ds_write_b32 v38, v{Z} offset:{KC1-4+4096}")
    d = lambda i: f"v{D+i}"
    P=40
    a(f"v_cvt_pk_bf16_f32 v{P+2}, {d(3)}, {d(2)}")
    a(f"v_cvt_pk_bf16_f32 v{P+3}, {d(1)}, {d(0)}")
    a(f"v_cvt_pk_bf16_f32 v{P}, {d(6)}, {d(5)}")
    a(f"v_cvt_pk_bf16_f32 v{P+1}, {d(4)}, {d(4)}")
    a(f"v_cvt_pk_bf16_f32 v{P+4}, {d(10)}, {d(10)}")
    a(f"v_cvt_pk_bf16_f32 v{P+5}, {d(9)}, {d(9)}")
    a(f"v_cvt_pk_bf16_f32 v{P+6}, {d(9)}, {d(8)}")
    a(f"v_cvt_pk_bf16_f32 v{P+7}, {d(8)}, {d(8)}")
    a(f"v_permlane32_swap_b32 v{P+2}, v{P}")
    a(f"v_permlane32_swap_b32 v{P+3}, v{P+1}")
    for io in range(2):
        k0 = 12 + 2*io; k8 = k0 + 1; q = P + 8 + 4*io
        a(f"v_cndmask_b32_e64 v{q+1}, {d(k0)}, {d(k8)}, s[98:99]")
        a(f"v_cvt_pk_bf16_f32 v{q}, {d(k8)}, {d(k8)}")
        a(f"v_cvt_pk_bf16_f32 v{q+1}, {d(k8)}, v{q+1}")
        a(f"v_cvt_pk_bf16_f32 v{q+2}, {d(k0)}, {d(k0)}")
        a(f"v_mov_b32 v{q+3}, v{q+2}")
    chunks = [(P, B2, 3072), (P+4, B2, 2048), (P+8, B3, 512), (P+12, B3, 0)]
    for (q, br, off) in chunks:
        a(f"ds_write_b128 v{br}, {v(q,4)} offset:{off}")
    for n, (q, br, off) in enumerate(chunks):
        c1 = 56 + 4*n
        a(f"v_mov_b32 v{c1}, v{q+1}")
        a(f"v_mov_b32 v{c1+1}, v{q+2}")
        a(f"v_mov_b32 v{c1+2}, v{q+3}")
        a(f"v_mov_b32_dpp v{c1+3}, v{q} wave_shr:1 row_mask:0xf bank_mask:0xf")
        a(f"ds_write_b128 v{br}, {v(c1,4)} offset:{off + KC1}")
    a("s_mov_b32 s92, 0x80000000"); a("s_mov_b32 s93, 0x80000000")
    a("s_mov_b64 exec, s[92:93]")
    for (q, br, off) in chunks:
        a(f"ds_write_b32 v{br}, v{q} offset:{off + KC1 - 4}")
    a("s_mov_b64 exec, 1")
    a(f"ds_write_b32 v{B2}, v{Z} offset:{3072 + KC1 + 12}")
    a("s_mov_b64 exec, -1")
    a("s_branch L_a_p3done")
    a.label("L_a_utab")
    st.n -= 1
    for r in range(4, 8): a(grow(r))
    a("s_waitcnt vmcnt(0)")
    st.stamp(a, "a_gather")
    a(f"v_and_b32 v27, 255, v0")
    a(f"v_lshlrev_b32 v28, 4, v27")
    a(f"v_add_u32 v28, {U_BASE+512}, v28")
    a(f"v_mov_b32_dpp v2, v18 wave_shr:1 row_mask:0xf bank_mask:0xf")
    a(f"v_mov_b32_dpp v3, v19 wave_shr:1 row_mask:0xf bank_mask:0xf")
    a(f"s_mov_b32 s{S_T0}, 0x05040100")
    a(f"s_mov_b32 s{S_T1}, 0x07060302")
    row = lambda r, dw: f"v{2+2*(r+1)+dw}"
    T=32
    n = 0
    for cc in range(4):
        dw = cc >> 1; sel = S_T0 if (cc & 1) == 0 else S_T1
        for cp in range(2):
            t = T + 4*(n % 4); n += 1
            for i in range(4):
                lo = 2*i - 1 if cp == 0 else 2*i
                a(f"v_perm_b32 v{t+i}, {row(lo+1,dw)}, {row(lo,dw)}, s{sel}")
            a(f"ds_write_b128 v28, {v(t,4)} offset:{cc*U_CH + cp*U1_OFF}")
    a(f"v_and_b32 v29, 255, v0")
    a(f"v_lshrrev_b32 v30, 5, v29")
    a(f"v_mul_u32_u24 v30, {U1_OFF}, v30")
    a(f"v_and_b32 v29, 31, v29")
    a(f"v_lshl_add_u32 v30, v29, 4, v30")
    a(f"v_add_u32 v30, {U_BASE}, v30")
    for i in range(4): a(f"v_mov_b32 v{48+i}, 0")
    a(f"ds_write_b128 v30, v[48:51]")
    a.label("L_a_p3done")
    st.stamp(a, "a_p3end")
    a("s_waitcnt lgkmcnt(0)")
    a("s_barrier")
    st.stamp(a, "a_p3done")
    UB=20; KB=21; COL=22; G=23; CP=24; AL=25
    a(f"v_and_b32 v{COL}, 15, v1")
    a(f"v_lshrrev_b32 v{G}, 4, v1")
    a(f"v_and_b32 v{CP}, 1, v{COL}")
    a(f"v_lshrrev_b32 v{AL}, 1, v{COL}")
    a(f"v_mul_u32_u24 v{UB}, {U1_OFF}, v{CP}")
    a(f"v_lshl_add_u32 v{UB}, v{AL}, 6, v{UB}")
    a(f"v_lshl_add_u32 v{UB}, v{G}, 4, v{UB}")
    a(f"s_lshl_b32 s{S_T0}, s{S_HALF}, 8")
    a(f"s_sub_u32 s{S_T1}, s{S_UB}, s{S_T0}")
    a(f"s_add_u32 s{S_T1}, s{S_T1}, 512")
    a(f"v_add_u32 v{UB}, s{S_T1}, v{UB}")
    a(f"v_mov_b32 v26, v{UB}")
    a(f"v_sub_u32 v{KB}, 1023, v{COL}")
    a(f"v_lshl_add_u32 v{KB}, v{G}, 2, v{KB}")
    a(f"v_lshlrev_b32 v{KB}, 2, v{KB}")
    a(f"v_sub_u32 v27, 1, v{CP}")
    a(f"v_mul_u32_u24 v27, {KC1-4}, v27")
    a(f"v_add_u32 v{KB}, v{KB}, v27")
    a(f"s_sub_u32 s{S_T1}, s{S_FT}, s{S_T0}")
    a(f"s_sub_u32 s{S_T1}, s{S_T1}, 3584")
    a(f"v_add_u32 v{KB}, s{S_T1}, v{KB}")
    ACC=32
    SETB=[192, 64]; SETA=[224, 96]
    FW=128
    def rd_list(setidx):
        L = []
        for t in range(8):
            L.append(f"ds_read_b128 {v(SETB[setidx]+4*t,4)}, v{UB} offset:{512*t}")
        for q in range(8):
            L.append(f"ds_read_b64 {v(SETA[setidx]+4*q,2)}, v{KB} offset:{512*(7-q)}")
            L.append(f"ds_read_b64 {v(SETA[setidx]+4*q+2,2)}, v{KB} offset:{512*(7-q)+8}")
        order = [8, 9] + list(range(8)) + list(range(10, 24))
        return [L[i] for i in order]
    for x in rd_list(0): a(x)
    a(f"v_and_b32 v11, 15, v1")
    a(f"v_lshlrev_b32 v11, 8, v11")
    a(f"v_add_u32 v11, {WS_KV + WOC_OFF}, v11")
    XA=27; UE=28; UR=29; SU=6; SL=7; SH=8
    a(f"v_lshlrev_b32 v{XA}, 4, v1")
    a(f"v_add_u32 v{XA}, s{S_FT}, v{XA}")
    a(f"v_lshlrev_b32 v{UE}, 6, v{AL}")
    a(f"v_lshl_add_u32 v{UE}, v{G}, 4, v{UE}")
    a(f"s_lshl_b32 s{S_T0}, s{S_HALF}, 11")
    a(f"s_add_u32 s{S_T1}, s{S_UB}, s{S_T0}")
    a(f"s_add_u32 s{S_T1}, s{S_T1}, {U1_OFF+512}")
    a(f"v_add_u32 v{UR}, s{S_T1}, v{UE}")
    a(f"v_lshl_add_u32 v{UE}, v{CP}, 9, v{UE}")
    a(f"s_lshl_b32 s{S_T1}, s{S_CHN}, 12")
    a(f"s_add_u32 s{S_T1}, s{S_T1}, s{S_T0}")
    a(f"v_add_u32 v{UE}, s{S_T1}, v{UE}")
    a(f"v_cmp_eq_u32_e64 s[98:99], 1, v{CP}")
    a(f"v_mov_b32 v{SU}, 0x01000c0c"); a(f"v_mov_b32 v9, 0x03020c0c")
    a(f"v_cndmask_b32_e64 v{SU}, v{SU}, v9, s[98:99]")
    a(f"v_mov_b32 v{SL}, 0x05040100"); a(f"v_mov_b32 v9, 0x01000504")
    a(f"v_cndmask_b32_e64 v{SL}, v{SL}, v9, s[98:99]")
    a(f"v_mov_b32 v{SH}, 0x07060302"); a(f"v_mov_b32 v9, 0x03020706")
    a(f"v_cndmask_b32_e64 v{SH}, v{SH}, v9, s[98:99]")
    UU=192
    for it in range(4):
        cur = it & 1
        nxt = []
        if it < 3:
            a(f"v_subrev_u32 v{UB}, 64, v{UB}")
            a(f"v_subrev_u32 v{KB}, 64, v{KB}")
            nxt = rd_list(cur ^ 1)
        else:
            nxt = [f"ds_read_b128 {v(UU+4*t,4)}, v{UR} offset:{512*t}" for t in range(4)]
        a("s_waitcnt lgkmcnt(0)")
        extra = []
        if it == 2:
            a(f"s_cmp_eq_u32 s{S_WAVE}, 0")
            a("s_cbranch_scc0 L_a_nowc")
            a(f"global_load_dword v3, v11, {s(S_WS,2)} sc1")
            a.label("L_a_nowc")
        late = []
        if it == 3:
            late = ["s_waitcnt lgkmcnt(0)"]
            late += [f"v_perm_b32 v{UU+i}, v{UU+i}, v{UU+i}, v{SU}" for i in range(16)]
            late += [f"v_mul_f32 v{UU+i}, s{S_DSKV}, v{UU+i}" for i in range(16)]
        k = 0; ke = 0; kl = 0
        mf = [(q, t) for q in range(8) for t in range(8 - q)]
        for idx, (q, t) in enumerate(mf):
            acc = v(ACC + 4*(t+q), 4)
            c = "0" if (it == 0 and q == 0) else acc
            a(f"v_mfma_f32_16x16x32_bf16 {acc}, {v(SETA[cur]+4*q,4)}, {v(SETB[cur]+4*t,4)}, {c}")
            if nxt and idx >= 2 and k < len(nxt):
                a(nxt[k]); k += 1
            if extra and idx % 2 == 1 and ke < len(extra):
                for x in extra[ke]: a(x)
                ke += 1
            if late and idx >= 14 and kl < len(late):
                for x in late[kl:kl+2]: a(x)
                kl += 2
        while k < len(nxt):
            a(nxt[k]); k += 1
        for e_ in extra[ke:]:
            for x in e_: a(x)
        for x in late[kl:]: a(x)
    st.stamp(a, "a_convdone")
    R=64; RX=96
    a(f"s_cmp_eq_u32 s{S_HALF}, 0")
    a("s_cbranch_scc0 L_a_x1")
    for t in range(4):
        a(f"ds_write_b128 v{XA}, {v(ACC+16+4*t,4)} offset:{XCH + 1024*t}")
    for i in range(16):
        a(f"v_add_f32 v{R+i}, v{ACC+i}, v{UU+i}")
    a(f"s_cmp_eq_u32 s{S_WAVE}, 0")
    a("s_cbranch_scc0 L_a_wc")
    a("s_waitcnt vmcnt(0)")
    a.label("L_a_wfpoll")
    sum16(a, 3, 66)
    a("s_cmp_eq_u32 s66, 128")
    a("s_cbranch_scc1 L_a_wc")
    a("s_sleep 8")
    a(f"global_load_dword v3, v11, {s(S_WS,2)} sc1")
    a("s_waitcnt vmcnt(0)")
    a("s_branch L_a_wfpoll")
    a.label("L_a_wc")
    a("s_waitcnt lgkmcnt(0)")
    a("s_barrier")
    for t in range(4):
        a(f"ds_read_b128 {v(RX+4*t,4)}, v{XA} offset:{XCH + 4096 + 1024*t}")
    a("s_branch L_a_x2")
    a.label("L_a_x1")
    for t in range(4):
        a(f"ds_write_b128 v{XA}, {v(ACC+4*t,4)} offset:{XCH + 4096 + 1024*t}")
    for i in range(16):
        a(f"v_add_f32 v{R+i}, v{ACC+16+i}, v{UU+i}")
    a("s_waitcnt lgkmcnt(0)")
    a("s_barrier")
    for t in range(4):
        a(f"ds_read_b128 {v(RX+4*t,4)}, v{XA} offset:{XCH + 1024*t}")
    a.label("L_a_x2")
    st.stamp(a, "a_xbar")
    for tp in range(2):
        t0 = 2*tp; t1 = t0 + 1
        a(f"s_waitcnt lgkmcnt({2 - 2*tp})")
        for i in range(8):
            a(f"v_add_f32 v{R+4*t0+i}, v{R+4*t0+i}, v{RX+4*t0+i}")
        b_ = 208 + 16*tp
        P0, Q0, P1, Q1, SP, SQ, KP, KQ, RP, RQ = [b_ + x for x in range(10)]
        a(f"v_cvt_pk_bf16_f32 v{P0}, v{R+4*t0}, v{R+4*t0+1}")
        a(f"v_cvt_pk_bf16_f32 v{Q0}, v{R+4*t0+2}, v{R+4*t0+3}")
        a(f"v_cvt_pk_bf16_f32 v{P1}, v{R+4*t1}, v{R+4*t1+1}")
        a(f"v_cvt_pk_bf16_f32 v{Q1}, v{R+4*t1+2}, v{R+4*t1+3}")
        a(f"v_cndmask_b32_e64 v{SP}, v{P1}, v{P0}, s[98:99]")
        a(f"v_cndmask_b32_e64 v{SQ}, v{Q1}, v{Q0}, s[98:99]")
        a(f"v_cndmask_b32_e64 v{KP}, v{P0}, v{P1}, s[98:99]")
        a(f"v_cndmask_b32_e64 v{KQ}, v{Q0}, v{Q1}, s[98:99]")
        a(f"v_mov_b32_dpp v{RP}, v{SP} quad_perm:[1,0,3,2] row_mask:0xf bank_mask:0xf")
        a(f"v_mov_b32_dpp v{RQ}, v{SQ} quad_perm:[1,0,3,2] row_mask:0xf bank_mask:0xf")
        o = 240 + 4*tp
        a(f"v_perm_b32 v{o}, v{RP}, v{KP}, v{SL}")
        a(f"v_perm_b32 v{o+1}, v{RP}, v{KP}, v{SH}")
        a(f"v_perm_b32 v{o+2}, v{RQ}, v{KQ}, v{SL}")
        a(f"v_perm_b32 v{o+3}, v{RQ}, v{KQ}, v{SH}")
        a(f"global_store_dwordx4 v{UE}, {v(o,4)}, {s(S_WS,2)} offset:{1024*tp} sc1")
    st.stamp(a, "a_end")
    a("s_branch L_k1_fin")

def diag_store(a, st, label_end):
    if not st.on: return
    a(f"s_lshl_b32 s94, s2, 3")
    a(f"s_add_u32 s94, s94, s{S_WAVE}")
    a(f"s_lshl_b32 s94, s94, 6")
    a(f"s_add_u32 s94, s94, {8<<20}")
    a("v_mov_b32 v250, s94")
    for i in range(14):
        a(f"v_mov_b32 v251, s{68+i}" if i else "v_mov_b32 v251, s68")
        a("s_mov_b64 exec, 1")
        a(f"global_store_dword v250, v251, {s(S_WS,2)} offset:{4*i}")
        a("s_mov_b64 exec, -1")

def descriptor(name, vgpr, sgpr=102):
    return f""".p2align 6
.amdhsa_kernel {name}
  .amdhsa_next_free_vgpr {vgpr}
  .amdhsa_next_free_sgpr {sgpr}
  .amdhsa_accum_offset {vgpr}
  .amdhsa_group_segment_fixed_size 0
  .amdhsa_kernarg_size 128
  .amdhsa_user_sgpr_count 2
  .amdhsa_user_sgpr_kernarg_segment_ptr 1
  .amdhsa_system_sgpr_workgroup_id_x 1
.end_amdhsa_kernel
"""

HEADER_LAYOUT = open("cdna_kernels/" + NAME + ".s.ref").read().split("; Override launch geometry")[0]

def build(diag=False):
    import gen_b
    k1 = f"{NAME}_kernel"
    st = Stamps(diag)
    a = Asm()
    k1_prologue(a, st)
    role_a(a, st)
    nA = st.n; st.n = 0
    a.label("L_roleB")
    gen_b.role_b(a, st)
    a.label("L_k1_fin")
    a("s_waitcnt vmcnt(0)")
    a("s_barrier")
    if diag:
        st.n = 0; st.base = 4
    gen_b.phase2_fused(a, st)
    if diag:
        a("s_memrealtime s[84:85]"); a("s_waitcnt lgkmcnt(0)")
        a(f"s_lshl_b32 s94, s2, 3")
        a(f"s_add_u32 s94, s94, s{S_WAVE}")
        a(f"s_lshl_b32 s94, s94, 7")
        a(f"s_add_u32 s94, s94, {8<<20}")
        a("v_mov_b32 v250, s94")
        regs = [68, 69] + list(range(70, 82)) + list(range(4, 14)) + [100, 82, 83, 84] + [85, 86]
        a("s_mov_b64 exec, 1")
        for i, r in enumerate(regs):
            a(f"v_mov_b32 v251, s{r}")
            a(f"global_store_dword v250, v251, {s(S_WS,2)} offset:{4*i}")
            a("s_nop 0")
        a("s_mov_b64 exec, -1")
    a.label("L_k1_end")
    a("s_endpgm")
    t1 = a.finalize()
    out = HEADER_LAYOUT
    out += f"; @launch grid=(256,1,1) block=(512,1,1) lds=163840\n"
    out += '.amdgcn_target "amdgcn-amd-amdhsa--gfx950"\n.text\n'
    out += f".globl {k1}\n.p2align 8\n.type {k1},@function\n{k1}:\n" + t1
    out += '.section .rodata,"a"\n' + descriptor(k1, 256)
    return out

if __name__ == "__main__":
    diag = "diag" in sys.argv
    outp = [x for x in sys.argv[1:] if x.endswith(".s")]
    txt = build(diag)
    open(outp[0] if outp else "k.s", "w").write(txt)
```

```python
from gen import *
import gen as G

K2_LDS = 163840
K2_VGPR = 256
KV16_BYTES = 32*1024
Z_OFF = KV16_BYTES
G_OFF = KV16_BYTES + 2048

def interleave(main, fill, per, start=0):
    out = []; k = 0
    for i, m in enumerate(main):
        out.append(m)
        if i >= start:
            n = per[i - start] if isinstance(per, (list, tuple)) and i - start < len(per) else (per if not isinstance(per, (list, tuple)) else 0)
            for _ in range(n):
                if k < len(fill): out.append(fill[k]); k += 1
    out += fill[k:]
    return out

def phi_list(src, n, dst, tmpbase, s_l2e, s_eps):
    L = []
    np_ = n // 2
    T = lambda p: tmpbase + 2*(p % 4)
    for g0 in range(0, np_, 4):
        ps = list(range(g0, min(np_, g0+4)))
        for p in ps:
            L.append(f"v_pk_mul_f32 {v(T(p),2)}, {v(src+2*p,2)}, {s(s_l2e,2)}")
        for p in ps:
            x = src + 2*p
            L.append(f"v_exp_f32_e64 v{T(p)}, v{T(p)} clamp")
            L.append(f"v_max_f32 v{x}, 0, v{x}")
            L.append(f"v_exp_f32_e64 v{T(p)+1}, v{T(p)+1} clamp")
            L.append(f"v_max_f32 v{x+1}, 0, v{x+1}")
        for p in ps:
            L.append(f"v_pk_add_f32 {v(src+2*p,2)}, {v(src+2*p,2)}, {s(s_eps,2)}")
        for p in ps:
            L.append(f"v_pk_add_f32 {v(src+2*p,2)}, {v(src+2*p,2)}, {v(T(p),2)}")
        for p in ps:
            x = src + 2*p
            L.append(f"v_cvt_pk_bf16_f32 v{dst+p}, v{x}, v{x+1}")
    return L

def fw_loads(a):
    a("s_lshr_b32 s66, s2, 3"); a("s_and_b32 s66, s66, 3"); a("s_lshl_b32 s66, s66, 3")
    a(f"s_add_u32 s66, s66, s{S_WAVE}")
    a("s_lshl_b32 s66, s66, 10"); a(f"s_add_u32 s66, s66, {WS_WF}")
    a("v_lshlrev_b32 v21, 4, v1"); a("v_add_u32 v21, s66, v21")
    for hl in range(16):
        a(f"global_load_dwordx4 {v(128+4*hl,4)}, v21, {s(S_WS,2)}{G.HL}")
        if hl < 15: a("v_add_u32 v21, 32768, v21")

def role_b(a, st):
    S_RB=51; S_HG=52; S_RG=53; S_CG=54; S_T0=55; S_T1=64; S_T2=65
    SX=56; SW=60
    S_L2E=82; S_EPS=84; S_KVB=86; S_M=88; S_F=91; S_GI=95
    XA=[2,3,4,5]; WA=6; X0=8; X1=9; W=10; GP=11
    ACCK=16; ACCV=32; FR=[48,80]; ACCQ=112; XF=128; GW=112; GT=120
    a(f"s_and_b32 s{S_T0}, s{S_XCD}, 3")
    a(f"s_lshl_b32 s{S_RB}, s{S_T0}, 2")
    a(f"s_and_b32 s{S_T0}, s{S_IDX}, 3")
    a(f"s_add_u32 s{S_RB}, s{S_RB}, s{S_T0}")
    a(f"s_lshr_b32 s{S_T0}, s{S_XCD}, 2")
    a(f"s_lshl_b32 s{S_HG}, s{S_T0}, 2")
    a(f"s_lshr_b32 s{S_T0}, s{S_IDX}, 2")
    a(f"s_add_u32 s{S_HG}, s{S_HG}, s{S_T0}")
    a(f"s_and_b32 s{S_RG}, s{S_WAVE}, 3")
    a(f"s_lshr_b32 s{S_CG}, s{S_WAVE}, 2")
    fm = G.FMODE
    if fm == "zero":
        a(f"s_mov_b32 s{S_F}, 0")
    elif fm == "hg":
        a(f"s_mov_b32 s{S_F}, s{S_HG}")
    elif fm == "rb":
        a(f"s_and_b32 s{S_F}, s{S_IDX}, 3")
        a(f"s_lshl_b32 s{S_F}, s{S_F}, 1")
        a(f"s_and_b32 s{S_T0}, s{S_XCD}, 1")
        a(f"s_add_u32 s{S_F}, s{S_F}, s{S_T0}")
    elif fm == "latin":
        a(f"s_and_b32 s{S_F}, s{S_IDX}, 3")
        a(f"s_lshr_b32 s{S_T0}, s{S_IDX}, 2")
        a(f"s_add_u32 s{S_F}, s{S_F}, s{S_T0}")
        a(f"s_lshl_b32 s{S_F}, s{S_F}, 1")
        a(f"s_lshr_b32 s{S_T0}, s{S_XCD}, 2")
        a(f"s_add_u32 s{S_F}, s{S_F}, s{S_T0}")
        a(f"s_and_b32 s{S_F}, s{S_F}, 7")
    a(f"s_sub_u32 s{S_GI}, s{S_HG}, s{S_F}")
    a(f"s_and_b32 s{S_GI}, s{S_GI}, 7")
    a(f"v_lshrrev_b32 v12, 3, v1")
    a(f"v_and_b32 v13, 7, v1")
    a(f"v_lshrrev_b32 v14, 1, v12")
    a(f"v_xor_b32 v14, v14, v13")
    a(f"s_lshl_b32 s{S_T0}, s{S_RB}, 7")
    a(f"s_lshl_b32 s{S_T1}, s{S_WAVE}, 4")
    a(f"s_add_u32 s{S_T0}, s{S_T0}, s{S_T1}")
    a(f"v_add_u32 v15, s{S_T0}, v12")
    a(f"v_lshlrev_b32 v15, 10, v15")
    a(f"v_lshl_add_u32 v{X0}, v14, 4, v15")
    a(f"v_xor_b32 v14, 4, v14")
    a(f"v_lshl_add_u32 v{X1}, v14, 4, v15")
    a(f"v_add_u32 v{X1}, 8192, v{X1}")
    a(f"v_bfe_u32 v14, v1, 4, 1")
    a(f"v_lshlrev_b32 v14, 2, v14")
    a(f"v_xor_b32 v14, v14, v13")
    a(f"s_lshl_b32 s{S_T0}, s{S_WAVE}, 3")
    a(f"v_add_u32 v15, s{S_T0}, v12")
    a(f"v_mul_u32_u24 v15, 3072, v15")
    a(f"v_lshl_add_u32 v{W}, v14, 4, v15")
    a(f"s_lshl_b32 s{S_T0}, s{S_HG}, 7")
    a(f"v_add_u32 v{W}, s{S_T0}, v{W}")
    a(f"v_and_b32 v15, 3, v0")
    a(f"v_lshlrev_b32 v15, 5, v15")
    a(f"s_lshl_b32 s{S_T0}, s{S_HG}, 7")
    a(f"v_add_u32 v15, s{S_T0}, v15")
    a(f"s_lshl_b32 s{S_M}, s{S_WAVE}, 10")
    a(f"s_lshl_b32 s{S_M+1}, s{S_WAVE}, 11")
    a("s_waitcnt lgkmcnt(0)")
    a(f"s_mov_b32 s{SX}, s{S_U}"); a(f"s_mov_b32 s{SX+1}, s{S_U+1}"); a(f"s_mov_b32 s{SX+2}, {2048*1024}"); a(f"s_mov_b32 s{SX+3}, 0x20000")
    a(f"s_mov_b32 s{SW}, s{S_WQKV}"); a(f"s_mov_b32 s{SW+1}, s{S_WQKV+1}"); a(f"s_mov_b32 s{SW+2}, {512*3072}"); a(f"s_mov_b32 s{SW+3}, 0x20000")
    def chunk_off(i):
        return [f"s_add_u32 s{S_T0}, s{S_F}, {i}", f"s_and_b32 s{S_T0}, s{S_T0}, 7",
                f"s_lshl_b32 s66, s{S_T0}, 7", f"s_mul_i32 s67, s{S_T0}, 196608"]
    def dma(m0s, m0imm, voff, srd, soff):
        return [f"s_add_u32 m0, s{m0s}, {m0imm}", f"buffer_load_dwordx4 v{voff}, {s(srd,4)}, s{soff} offen lds"]
    def chunk_groups(n):
        slot = (n & 3) * 32768
        if n < 8:
            return [chunk_off(n) + dma(S_M+1, slot, X0, SX, 66),
                    dma(S_M+1, slot + 1024, X1, SX, 66),
                    [f"s_add_u32 s{S_T1}, s67, 1024"] + dma(S_M, slot + 16384, W, SW, S_T1),
                    [f"s_add_u32 s{S_T1}, s67, 2048"] + dma(S_M, slot + 24576, W, SW, S_T1)]
        else:
            return [chunk_off(4*(n-8)+k) + dma(S_M, slot + 8192*k, W, SW, 67) for k in range(4)]
    def emit(L):
        for x in L: a(x)
    a(f"global_load_dwordx4 {v(GW,4)}, v15, {s(S_GW,2)}")
    a(f"global_load_dwordx4 {v(GW+4,4)}, v15, {s(S_GW,2)} offset:16")
    for g in chunk_groups(0): emit(g)
    a("s_barrier")
    for g in chunk_groups(1): emit(g)
    if G.DEEP:
        a("s_barrier")
        for g in chunk_groups(2): emit(g)
    st.stamp(a, "b_issued")
    a(f"v_and_b32 v12, 31, v1")
    a(f"s_lshl_b32 s{S_T0}, s{S_RG}, 5")
    a(f"v_add_u32 v12, s{S_T0}, v12")
    a(f"v_lshrrev_b32 v13, 5, v1")
    a(f"v_bfe_u32 v14, v12, 1, 3")
    a(f"v_xor_b32 v14, v14, v13")
    a(f"v_lshlrev_b32 v14, 4, v14")
    a(f"v_lshl_add_u32 v{XA[0]}, v12, 7, v14")
    for ks in range(1,4):
        a(f"v_xor_b32 v{XA[ks]}, {32*ks}, v{XA[0]}")
    a(f"v_and_b32 v12, 15, v1")
    a(f"v_lshrrev_b32 v14, 2, v12")
    a(f"v_lshl_add_u32 v15, v13, 3, v14")
    a(f"v_lshlrev_b32 v15, 7, v15")
    a(f"v_bfe_u32 v7, v1, 4, 1")
    a(f"v_lshlrev_b32 v7, 1, v7")
    a(f"s_lshl_b32 s{S_T0}, s{S_CG}, 2")
    a(f"v_add_u32 v7, s{S_T0}, v7")
    a(f"v_bfe_u32 v13, v12, 1, 1")
    a(f"v_add_u32 v7, v7, v13")
    a(f"v_bfe_u32 v13, v14, 1, 1")
    a(f"v_lshlrev_b32 v13, 2, v13")
    a(f"v_xor_b32 v7, v7, v13")
    a(f"v_lshl_add_u32 v15, v7, 4, v15")
    a(f"v_and_b32 v13, 1, v12")
    a(f"v_lshl_add_u32 v{WA}, v13, 3, v15")
    a(f"s_mov_b32 s{S_L2E}, {LOG2E}"); a(f"s_mov_b32 s{S_L2E+1}, {LOG2E}")
    a(f"s_mov_b32 s{S_EPS}, 0x358637bd"); a(f"s_mov_b32 s{S_EPS+1}, 0x358637bd")
    a(f"s_add_u32 s{S_KVB}, s{S_WS}, {WS_KV}"); a(f"s_addc_u32 s{S_KVB+1}, s{S_WS+1}, 0")
    a(f"v_lshrrev_b32 v12, 2, v0")
    a(f"v_and_b32 v13, 3, v0")
    a(f"v_lshlrev_b32 v13, 1, v13")
    a(f"v_bfe_u32 v14, v12, 1, 3")
    a(f"v_xor_b32 v13, v13, v14")
    a(f"v_lshlrev_b32 v13, 4, v13")
    a(f"v_lshl_add_u32 v12, v12, 7, v13")
    a(f"v_xor_b32 v13, 16, v12")
    def frag_reads(i):
        slot = (i & 1) * 32768; fr = FR[i & 1]; L = []
        for ks in range(4):
            L.append(f"ds_read_b128 {v(XF + 16*i + 4*ks, 4)}, v{XA[ks]} offset:{slot}")
            for T, toff in ((0, 16384), (1, 24576)):
                for rdx in range(2):
                    L.append(f"ds_read_b64_tr_b16 {v(fr + 8*ks + 4*T + 2*rdx, 2)}, v{WA} offset:{slot + toff + 2048*ks + 512*rdx}")
        return L
    def toggle():
        return [f"v_xor_b32 v{r}, 0x10000, v{r}" for r in XA + [WA]]
    def q_reads(n0, n1):
        L = []
        for n in range(n0, n1):
            off = (n // 16) * 32768 + ((n % 16) // 4) * 8192 + (n % 4) * 2048
            for rdx in range(2):
                L.append(f"ds_read_b64_tr_b16 {v(48 + 4*(n % 8) + 2*rdx, 2)}, v{WA} offset:{off + 512*rdx}")
        return L
    a(f"s_waitcnt vmcnt({8 if G.DEEP else 4})")
    a("s_barrier")
    st.stamp(a, "b_first")
    def gate_reads(c):
        lab = f"L_b_gr{c}"
        a(f"s_cmp_eq_u32 s{S_GI}, {c}")
        a(f"s_cbranch_scc0 {lab}")
        off = (c & 3) * 32768
        if off >= 65536:
            a(f"v_add_u32 v12, 65536, v12"); a(f"v_add_u32 v13, 65536, v13"); off -= 65536
        a(f"ds_read_b128 {v(GT,4)}, v12 offset:{off}")
        a(f"ds_read_b128 {v(GT+4,4)}, v13 offset:{off}")
        a.label(lab)
    def gate_dot(c):
        lab = f"L_b_gd{c}"
        a(f"s_cmp_eq_u32 s{S_GI}, {c}")
        a(f"s_cbranch_scc0 {lab}")
        a(f"v_mov_b32 v{GP}, 0")
        for k2 in range(8): a(f"v_dot2_f32_bf16 v{GP}, v{GT+k2}, v{GW+k2}, v{GP}")
        a.label(lab)
    emit(frag_reads(0))
    gate_reads(0)
    if G.DEEP:
        for g in chunk_groups(3): emit(g)
        sched = {0: [4], 1: [5], 2: [6], 3: [7], 4: [8], 5: [9]}
        vmw = [8, 8, 8, 8, 8, 8, 8, 4]
    else:
        sched = {0: [2, 3], 1: [4], 2: [5, 6], 3: [7], 4: [8], 5: [9]}
        vmw = [0, 4, 4, 8, 8, 8, 8, 5]
    for i in range(8):
        fr = FR[i & 1]
        mm = []
        for ks in range(4):
            x = v(XF + 16*i + 4*ks, 4)
            cK = "0" if (i == 0 and ks == 0) else v(ACCK,16)
            cV = "0" if (i == 0 and ks == 0) else v(ACCV,16)
            mm.append(f"v_mfma_f32_32x32x16_bf16 {v(ACCK,16)}, {x}, {v(fr+8*ks,4)}, {cK}")
            mm.append(f"v_mfma_f32_32x32x16_bf16 {v(ACCV,16)}, {x}, {v(fr+8*ks+4,4)}, {cV}")
        npre = (G.NPRE if G.DEEP else 8) if i == 0 else G.NPRE
        a("s_waitcnt lgkmcnt(0)")
        emit(mm[:npre])
        gate_dot(i)
        pre = []
        if (i + 1) in (2, 4, 6, 8): pre += toggle()
        emit(pre)
        a(f"s_waitcnt vmcnt({vmw[i]})")
        a("s_barrier")
        if G.ITERSTAMP: st.stamp(a, f"it{i}")
        if i + 1 <= 7: gate_reads(i + 1)
        rd = frag_reads(i+1) if i + 1 <= 7 else q_reads(0, 6)
        if G.NOREAD and i + 1 <= 7: rd = []
        if G.NOX and i + 1 <= 7: rd = [x for x in rd if 'b128' not in x]
        if G.NOW and i + 1 <= 7: rd = [x for x in rd if 'b128' in x or 'v_' in x[:2]]
        groups = []
        for n in sched.get(i, []): groups += chunk_groups(n)
        if G.NODMA: groups = [[y for y in g_ if 'buffer_load' not in y] for g_ in groups]
        if G.NOMFMA: mm = ['s_nop 0'] * len(mm)
        rest = mm[npre:]
        seq = []
        if rest:
            nm = len(rest)
            k = 0; gi = 0
            for m in range(nm):
                seq.append(rest[m])
                take = (len(rd) - k + (nm - m) - 1) // (nm - m) if m < nm - 1 else len(rd) - k
                take = min(take, 3) if m < nm - 1 else take
                seq += rd[k:k+take]; k += take
                if m % 2 == 1 or m == nm - 1:
                    left = len(groups) - gi
                    slots_left = max(1, (nm - m + 1) // 2)
                    ng = left if m == nm - 1 else (left + slots_left - 1) // slots_left
                    for _ in range(ng):
                        seq += groups[gi]; gi += 1
        else:
            seq += rd
            for g_ in groups: seq += g_
        if i == 6:
            seq += ["v_and_b32 v7, 15, v1", "v_lshlrev_b32 v7, 8, v7", f"v_add_u32 v7, {WS_KV + WOC_OFF}, v7", "v_and_b32 v5, 7, v1", "v_lshlrev_b32 v5, 2, v5",
                    f"s_cmp_eq_u32 s{S_WAVE}, 0", "s_cbranch_scc0 L_b_nodbg",
                    f"global_load_dword v15, v7, {s(S_WS,2)} sc1", f"global_load_dword v14, v5, {s(S_DBG,2)} sc1", "L_b_nodbg:"]
        emit(seq)
    st.stamp(a, "b_pass1")
    if G.ITERSTAMP: st.on = False
    PK=80; VV=88; ONE=96; TMP=100
    PF = 6
    KVL = 65536
    D1=ACCK; D2=ACCV
    def qm(n):
        c = "0" if n == 0 else v(ACCQ,16)
        return f"v_mfma_f32_32x32x16_bf16 {v(ACCQ,16)}, {v(48+4*(n%8),4)}, {v(XF+4*n,4)}, {c}"
    fill = [f"v_add_f32_dpp v{GP}, v{GP}, v{GP} quad_perm:[1,0,3,2] row_mask:0xf bank_mask:0xf"]
    fill += [f"v_mov_b32 v{ONE+k}, 0x3f803f80" for k in range(4)]
    fill += phi_list(ACCK, 16, PK, TMP, S_L2E, S_EPS)
    fill += [f"v_add_f32_dpp v{GP}, v{GP}, v{GP} quad_perm:[2,3,0,1] row_mask:0xf bank_mask:0xf"]
    fill += [f"v_cvt_pk_bf16_f32 v{VV+p}, v{ACCV+2*p}, v{ACCV+2*p+1}" for p in range(8)]
    kvm = []
    for sg in range(2):
        c = "0" if sg == 0 else v(D1,16)
        kvm.append(f"v_mfma_f32_32x32x16_bf16 {v(D1,16)}, {v(PK+4*sg,4)}, {v(VV+4*sg,4)}, {c}")
    for sg in range(2):
        c = "0" if sg == 0 else v(D2,16)
        kvm.append(f"v_mfma_f32_32x32x16_bf16 {v(D2,16)}, {v(PK+4*sg,4)}, {v(ONE,4)}, {c}")
    fill += kvm
    fill += [
      f"v_and_b32 v12, 15, v1", f"v_bfe_u32 v13, v1, 4, 1", f"v_lshrrev_b32 v7, 5, v1",
      f"v_mul_u32_u24 v12, 68, v12", f"v_mul_u32_u24 v8, 1156, v13", f"v_add_u32 v12, v12, v8",
      f"v_lshl_add_u32 v12, v7, 5, v12",
      f"s_mul_i32 s{S_T0}, s{S_RG}, 4624", f"s_mul_i32 s{S_T1}, s{S_CG}, 2312", f"s_add_u32 s{S_T0}, s{S_T0}, s{S_T1}",
      f"s_add_u32 s{S_T0}, s{S_T0}, {KVL}", f"v_add_u32 v12, s{S_T0}, v12",
      f"v_cmp_eq_u32_e64 s[98:99], 1, v13",
      f"s_lshr_b32 s64, s{S_WAVE}, 1", f"s_and_b32 s65, s{S_WAVE}, 1",
      f"v_lshrrev_b32 v2, 4, v1", f"v_and_b32 v3, 15, v1", f"s_lshl_b32 s{S_T0}, s65, 3", f"v_add_u32 v2, s{S_T0}, v2",
      f"v_mul_u32_u24 v8, 68, v2", f"v_lshl_add_u32 v8, v3, 2, v8", f"s_mul_i32 s{S_T0}, s64, 1156",
      f"s_add_u32 s{S_T0}, s{S_T0}, {KVL}", f"v_add_u32 v8, s{S_T0}, v8",
      f"s_lshl_b32 s{S_T0}, s{S_HG}, 2", f"s_add_u32 s{S_T0}, s{S_T0}, s64", f"s_lshl_b32 s{S_T1}, s{S_T0}, 10",
      f"v_lshlrev_b32 v9, 6, v2", f"v_lshl_add_u32 v9, v3, 2, v9", f"v_add_u32 v9, s{S_T1}, v9",
      ]
    fill += [f"v_cndmask_b32_e64 v{100+j}, v{D1+j}, v{D1+8+j}, s[98:99]" for j in range(8)]
    fill += [f"v_cndmask_b32_e64 v{80+j}, v{D2+j}, v{D2+8+j}, s[98:99]" for j in range(8)]
    GL = KVL + 4*4624
    nper = (len(fill) + 14) // 15
    k = 0
    for n in range(16):
        issued = min(16, n + PF)
        a(f"s_waitcnt lgkmcnt({2*(issued - n - 1)})")
        a(qm(n))
        if n + PF < 16: emit(q_reads(n + PF, n + PF + 1))
        if n >= 1:
            emit(fill[k:k+nper]); k += nper
    emit(fill[k:])
    st.stamp(a, "b_pass2")
    for j in range(0, 8, 2):
        a(f"ds_write2_b32 v12, v{100+j}, v{101+j} offset0:{j} offset1:{j+1}")
    a(f"v_add_u32 v12, {16*68}, v12")
    a("s_mov_b32 s66, 0x00010001"); a("s_mov_b32 s67, 0x00010001")
    a("s_mov_b64 exec, s[66:67]")
    for j in range(0, 8, 2):
        a(f"ds_write2_b32 v12, v{80+j}, v{81+j} offset0:{j} offset1:{j+1}")
    a("s_mov_b32 s66, 0x11111111"); a("s_mov_b32 s67, 0x11111111"); a("s_mov_b64 exec, s[66:67]")
    a(f"v_add_u32 v13, {GL}, v0")
    a(f"ds_write_b32 v13, v{GP}")
    a("s_mov_b64 exec, -1")
    a("s_waitcnt vmcnt(0)")
    a(f"s_cmp_eq_u32 s{S_WAVE}, 0")
    a("s_cbranch_scc0 L_b_wfok")
    a("s_mov_b32 s95, 0")
    a.label("L_b_wfpoll")
    sum16(a, 15, 66)
    sum8(a, 14, 67)
    a("s_add_u32 s66, s66, s67")
    a("s_cmp_eq_u32 s66, 136")
    a("s_cbranch_scc1 L_b_wfok")
    a("s_add_u32 s95, s95, 1")
    a("s_cmp_gt_u32 s95, 0x40000")
    a("s_cbranch_scc1 L_b_wfok")
    a("s_sleep 8")
    a("v_and_b32 v5, 15, v1"); a("v_lshlrev_b32 v5, 8, v5"); a(f"v_add_u32 v5, {WS_KV + WOC_OFF}, v5")
    a(f"global_load_dword v15, v5, {s(S_WS,2)} sc1")
    a("v_and_b32 v5, 7, v1"); a("v_lshlrev_b32 v5, 2, v5")
    a(f"global_load_dword v14, v5, {s(S_DBG,2)} sc1")
    a("s_waitcnt vmcnt(0)")
    a("s_branch L_b_wfpoll")
    a.label("L_b_wfok")
    a("s_waitcnt lgkmcnt(0)")
    a("s_barrier")
    st.stamp(a, "b_kvbar")
    for n in range(2):
        for rg in range(4):
            a(f"ds_read_b32 v{80+4*n+rg}, v8 offset:{rg*4624 + n*4*68}")
    a(f"s_cmp_eq_u32 s{S_WAVE}, 0")
    a("s_cbranch_scc0 L_b_nz0")
    a("v_lshrrev_b32 v2, 4, v1"); a("v_and_b32 v3, 15, v1")
    a("v_mul_u32_u24 v2, 1156, v2"); a("v_lshl_add_u32 v2, v3, 2, v2")
    a(f"v_add_u32 v2, {KVL + 16*68}, v2")
    for rg in range(4):
        a(f"ds_read_b32 v{88+rg}, v2 offset:{rg*4624}")
    a(f"s_lshl_b32 s66, s{S_HG}, 8"); a(f"s_add_u32 s66, s66, {Z_OFF}")
    a("v_lshlrev_b32 v10, 2, v1"); a("v_add_u32 v10, s66, v10")
    a("s_branch L_b_nz1")
    a.label("L_b_nz0")
    a(f"s_cmp_le_u32 s{S_WAVE}, 2")
    a("s_cbranch_scc0 L_b_nz1")
    a(f"s_sub_u32 s66, s{S_WAVE}, 1"); a("s_lshl_b32 s66, s66, 8")
    a("v_lshlrev_b32 v2, 2, v1"); a("v_add_u32 v2, s66, v2")
    a(f"v_add_u32 v3, {GL}, v2")
    a("ds_read_b32 v88, v3")
    a("v_mov_b32 v89, 0"); a("v_mov_b32 v90, 0"); a("v_mov_b32 v91, 0")
    a(f"s_lshl_b32 s66, s{S_RB}, 9"); a(f"s_add_u32 s66, s66, {G_OFF}")
    a("v_add_u32 v10, s66, v2")
    a.label("L_b_nz1")
    emit(q_reads(16, 16 + PF))
    a(f"s_waitcnt lgkmcnt({2*PF})")
    for n in range(2):
        a(f"v_add_f32 v{80+4*n}, v{80+4*n}, v{81+4*n}")
        a(f"v_add_f32 v{82+4*n}, v{82+4*n}, v{83+4*n}")
    for n in range(2):
        a(f"v_add_f32 v{80+4*n}, v{80+4*n}, v{82+4*n}")
    a(f"global_atomic_add_f32 v9, v80, {s(S_KVB,2)} sc1")
    a(f"global_atomic_add_f32 v9, v84, {s(S_KVB,2)} offset:256 sc1")
    a(f"s_cmp_le_u32 s{S_WAVE}, 2")
    a("s_cbranch_scc0 L_b_noz")
    a("v_add_f32 v88, v88, v89"); a("v_add_f32 v90, v90, v91"); a("v_add_f32 v88, v88, v90")
    a(f"global_atomic_add_f32 v10, v88, {s(S_KVB,2)} sc1")
    a.label("L_b_noz")
    st.stamp(a, "b_atom")
    emit([f"s_lshl_b32 s{S_T0}, s{S_RB}, 2", f"s_add_u32 s{S_T0}, s{S_T0}, s{S_RG}", f"s_lshl_b32 s{S_T0}, s{S_T0}, 5",
          f"s_lshl_b32 s{S_T1}, s{S_HG}, 2", f"s_add_u32 s{S_T0}, s{S_T0}, s{S_T1}", f"s_lshl_b32 s{S_T1}, s{S_CG}, 1",
          f"s_add_u32 s{S_T0}, s{S_T0}, s{S_T1}", f"s_lshl_b32 s{S_T0}, s{S_T0}, 10", f"s_add_u32 s{S_T0}, s{S_T0}, {WS_PQ}",
          f"v_lshlrev_b32 v12, 4, v1", f"v_add_u32 v12, s{S_T0}, v12"])
    for n in range(16, 32):
        issued = min(32, n + PF)
        a(f"s_waitcnt lgkmcnt({2*(issued - n - 1)})")
        a(qm(n))
        if n + PF < 32: emit(q_reads(n + PF, n + PF + 1))
    emit(phi_list(ACCQ, 8, 40, 32, S_L2E, S_EPS))
    a(f"global_store_dwordx4 v12, v[40:43], {s(S_WS,2)} sc1")
    emit(phi_list(ACCQ+8, 8, 44, 32, S_L2E, S_EPS))
    a(f"global_store_dwordx4 v12, v[44:47], {s(S_WS,2)} offset:1024 sc1")
    st.stamp(a, "b_end")
    if G.ITERSTAMP: st.on = True


CNT_OFF = 34816 + 8192
NSHARD = 16

def phase2_fused(a, st):
    S_W=S_WAVE; S_SB=51; S_CB=52; S_T0=53; S_T1=54; S_CW=55; S_KH=56; SRD=60; S_M0=57; S_SO=58; SKV=64; S_CN=86
    def emit(L):
        for x in L: a(x)
    ws = s(S_WS,2)
    a(f"s_add_u32 s{S_CN}, s{S_WS}, {WS_KV + CNT_OFF}")
    a(f"s_addc_u32 s{S_CN+1}, s{S_WS+1}, 0")
    a(f"s_cmp_lg_u32 s{S_W}, 0")
    a("s_cbranch_scc1 L_p2_noarr")
    a(f"s_lshr_b32 s{S_T0}, s2, 3")
    a(f"s_and_b32 s{S_T0}, s{S_T0}, 7")
    a(f"s_lshl_b32 s{S_T0}, s{S_T0}, 8")
    a(f"v_and_b32 v2, 7, v0")
    a(f"v_lshlrev_b32 v2, 11, v2")
    a(f"v_add_u32 v2, s{S_T0}, v2")
    a("v_mov_b32 v3, 1")
    a("s_mov_b64 exec, 0xff")
    a(f"global_atomic_add v2, v3, {s(S_CN,2)} sc1")
    a("s_mov_b64 exec, -1")
    a.label("L_p2_noarr")
    st.stamp(a, "p2_arr")
    if st.on:
        a("s_memrealtime s[96:97]"); a("s_waitcnt lgkmcnt(0)"); a("s_mov_b32 s82, s96")
    a(f"s_and_b32 s{S_T0}, s2, 7")
    a(f"s_lshr_b32 s{S_T1}, s2, 3")
    a(f"s_and_b32 s{S_CB}, s{S_T1}, 3")
    a(f"s_lshr_b32 s{S_T1}, s{S_T1}, 2")
    a(f"s_lshl_b32 s{S_SB}, s{S_T0}, 3")
    a(f"s_add_u32 s{S_SB}, s{S_SB}, s{S_T1}")
    a(f"s_and_b32 s{S_CW}, s{S_W}, 3")
    a(f"s_lshr_b32 s{S_KH}, s{S_W}, 2")
    M=2; HH=3
    a(f"v_and_b32 v1, 63, v0")
    a(f"v_and_b32 v{M}, 31, v1")
    a(f"v_lshrrev_b32 v{HH}, 5, v1")
    a(f"v_lshlrev_b32 v4, 4, v1")
    a(f"v_and_b32 v7, 7, v1")
    a(f"v_lshlrev_b32 v7, 8, v7")
    a(f"s_and_b32 s92, s2, 7"); a("s_lshl_b32 s92, s92, 11")
    a(f"v_add_u32 v7, s92, v7")
    fw_loads(a)
    a(f"s_lshl_b32 s{S_T0}, s{S_SB}, 5")
    a(f"s_lshl_b32 s{S_T1}, s{S_W}, 2")
    a(f"s_add_u32 s{S_T0}, s{S_T0}, s{S_T1}")
    a(f"s_lshl_b32 s{S_T0}, s{S_T0}, 10")
    a(f"s_add_u32 s{S_T0}, s{S_T0}, {WS_PQ}")
    a(f"v_add_u32 v5, s{S_T0}, v4")
    N16=52; G4=53
    a(f"v_and_b32 v{N16}, 15, v1")
    a(f"v_lshrrev_b32 v{G4}, 4, v1")
    a(f"s_lshl_b32 s{S_T0}, s{S_SB}, 7")
    a(f"s_add_u32 s{S_T0}, s{S_T0}, {WS_KV + G_OFF}")
    a(f"v_lshlrev_b32 v8, 2, v{N16}")
    a(f"v_add_u32 v8, s{S_T0}, v8")
    a(f"s_lshl_b32 s{S_T0}, s{S_CB}, 7")
    a(f"s_lshl_b32 s{S_T1}, s{S_W}, 4")
    a(f"s_add_u32 s{S_T0}, s{S_T0}, s{S_T1}")
    a(f"v_add_u32 v9, s{S_T0}, v{N16}")
    a(f"v_lshlrev_b32 v9, 12, v9")
    a(f"v_lshl_add_u32 v9, v{G4}, 4, v9")
    a(f"s_lshl_b32 s{S_T0}, s{S_SB}, 6")
    a(f"v_add_u32 v9, s{S_T0}, v9")
    a(f"v_and_b32 v6, 1, v{G4}")
    a(f"v_lshl_add_u32 v6, v6, 4, v{N16}")
    a(f"s_lshl_b32 s{S_T0}, s{S_SB}, 5")
    a(f"v_add_u32 v6, s{S_T0}, v6")
    a(f"v_lshlrev_b32 v6, 10, v6")
    a(f"v_lshrrev_b32 v10, 1, v{G4}")
    a(f"v_lshl_add_u32 v6, v10, 4, v6")
    a(f"s_lshl_b32 s{S_T0}, s{S_CB}, 8")
    a(f"s_lshl_b32 s{S_T1}, s{S_W}, 5")
    a(f"s_add_u32 s{S_T0}, s{S_T0}, s{S_T1}")
    a(f"v_add_u32 v6, s{S_T0}, v6")
    OF=65536; ZS=32768
    OFA=12; OWN=11
    a(f"v_and_b32 v14, 1, v{G4}")
    a(f"v_lshl_add_u32 v14, v14, 5, v{N16}")
    a(f"v_lshlrev_b32 v14, 4, v14")
    a(f"v_lshl_add_u32 v{OFA}, v10, 10, v14")
    a(f"v_add_u32 v{OFA}, {OF}, v{OFA}")
    a(f"s_lshl_b32 s{S_T0}, s{S_W}, 12")
    a(f"s_add_u32 s{S_T1}, s{S_T0}, {OF}")
    a(f"v_add_u32 v{OWN}, s{S_T1}, v4")
    KD=54
    a(f"v_lshrrev_b32 v14, 2, v1")
    a(f"v_and_b32 v15, 3, v1")
    a(f"v_lshrrev_b32 v10, 4, v1")
    a(f"v_xor_b32 v15, v15, v10")
    a(f"v_lshlrev_b32 v15, 4, v15")
    a(f"v_lshl_add_u32 v{KD}, v14, 6, v15")
    KVA=[16,17,18,19]; KVB=[20,21,22,23]
    a(f"v_lshrrev_b32 v14, 2, v{M}")
    a(f"v_lshlrev_b32 v15, 1, v{HH}")
    a(f"v_xor_b32 v14, v14, v15")
    a(f"v_and_b32 v14, 3, v14")
    a(f"v_lshlrev_b32 v14, 4, v14")
    a(f"v_lshl_add_u32 v24, v{M}, 6, v14")
    a(f"v_add_u32 v24, s{S_T0}, v24")
    a(f"s_lshl_b32 s{S_T1}, s{S_W}, 8")
    a(f"s_add_u32 s{S_T1}, s{S_T1}, {ZS}")
    a(f"v_lshlrev_b32 v25, 5, v{HH}")
    a(f"v_add_u32 v25, s{S_T1}, v25")
    a(f"v_cmp_gt_u32_e64 s[98:99], 16, v{M}")
    a(f"v_cndmask_b32_e64 v{KVA[0]}, v25, v24, s[98:99]")
    a(f"v_mov_b32 v26, 64"); a(f"v_mov_b32 v27, 1024")
    a(f"v_cndmask_b32_e64 v26, v26, v27, s[98:99]")
    for n in range(1, 4):
        a(f"v_add_u32 v{KVA[n]}, v{KVA[n-1]}, v26")
    for n in range(4):
        a(f"v_xor_b32 v{KVB[n]}, 16, v{KVA[n]}")
    a(f"v_and_b32 v192, 7, v{N16}")
    a(f"v_and_b32 v193, 1, v192")
    a(f"v_lshlrev_b32 v193, 4, v193")
    a(f"v_mov_b32 v194, 0x3f80")
    a(f"v_lshlrev_b32 v194, v193, v194")
    a(f"v_lshrrev_b32 v192, 1, v192")
    a(f"v_lshrrev_b32 v193, 3, v{N16}")
    a(f"v_sub_u32 v193, v{G4}, v193")
    a(f"v_lshl_add_u32 v192, v193, 1, v192")
    a(f"v_and_b32 v195, 1, v193")
    a(f"v_cmp_eq_u32_e64 s[98:99], 0, v195")
    a(f"v_cndmask_b32_e64 v194, 0, v194, s[98:99]")
    for k in range(8):
        a(f"v_cmp_eq_u32_e64 s[98:99], {k}, v192")
        a(f"v_cndmask_b32_e64 v{24+k}, 0, v194, s[98:99]")
    a(f"s_add_u32 s{SKV}, s{S_WS}, {WS_KV}"); a(f"s_addc_u32 s{SKV+1}, s{S_WS+1}, 0"); a(f"s_mov_b32 s{SKV+2}, {KV16_BYTES + 2048}"); a(f"s_mov_b32 s{SKV+3}, 0x20000")
    FW=128
    a(f"s_cmp_lg_u32 s{S_W}, 0")
    a("s_cbranch_scc1 L_p2_wait")
    a("s_mov_b32 s92, 0")
    a("s_mov_b64 exec, 0xff")
    a.label("L_p2_poll")
    a(f"global_load_dword v13, v7, {s(S_CN,2)} sc1")
    a("s_waitcnt vmcnt(0)")
    a(f"v_add_u32_dpp v13, v13, v13 row_shr:1 row_mask:0xf bank_mask:0xf bound_ctrl:0")
    a(f"v_add_u32_dpp v13, v13, v13 row_shr:2 row_mask:0xf bank_mask:0xf bound_ctrl:0")
    a(f"v_add_u32_dpp v13, v13, v13 row_shr:4 row_mask:0xf bank_mask:0xf bound_ctrl:0")
    a(f"v_readlane_b32 s93, v13, 7")
    a("s_add_u32 s92, s92, 1")
    a("s_cmp_eq_u32 s93, 256")
    a("s_cbranch_scc1 L_p2_got")
    a(f"s_sleep {G.PSLEEP}")
    a("s_cmp_lt_u32 s92, 0x40000")
    a("s_cbranch_scc1 L_p2_poll")
    a.label("L_p2_got")
    a("s_mov_b64 exec, -1")
    a.label("L_p2_wait")
    a("s_waitcnt lgkmcnt(0)")
    a("s_barrier")
    st.stamp(a, "p2_go")
    if st.on:
        a("s_memrealtime s[96:97]"); a("s_waitcnt lgkmcnt(0)"); a("s_mov_b32 s83, s96")
    PQ=32; KVF=64; AT=48; G0=13; G1=14
    a(f"s_lshl_b32 s{S_M0}, s{S_W}, 12")
    for n in range(4):
        a(f"s_add_u32 m0, s{S_M0}, {1024*n}")
        a(f"s_add_u32 s{S_T0}, s{S_M0}, {1024*n}")
        a(f"buffer_load_dwordx4 v{KD}, {s(SKV,4)}, s{S_T0} offen{G.HL} lds")
    a(f"s_lshl_b32 s{S_T1}, s{S_W}, 8")
    a(f"s_add_u32 m0, s{S_T1}, {ZS}")
    a(f"s_add_u32 s{S_T0}, s{S_T1}, {Z_OFF}")
    a("s_mov_b64 exec, 0xffff")
    a(f"buffer_load_dwordx4 v4, {s(SKV,4)}, s{S_T0} offen{G.HL} lds")
    a("s_mov_b64 exec, -1")
    for n in range(4):
        a(f"global_load_dwordx4 {v(PQ+4*n,4)}, v5, {ws} offset:{n*1024}{G.HL}")
    a("s_waitcnt vmcnt(4)")
    for n in range(4):
        a(f"ds_read_b128 {v(KVF+8*n,4)}, v{KVA[n]}")
        a(f"ds_read_b128 {v(KVF+8*n+4,4)}, v{KVB[n]}")
    a(f"global_load_dwordx4 {v(AT,4)}, v9, {ws}{G.HL}")
    a(f"global_load_dword v{G0}, v8, {ws}{G.HL}")
    a(f"global_load_dword v{G1}, v8, {ws} offset:64{G.HL}")
    AF=96; D=192; OO=64
    a("s_mov_b32 s92, 0x358637bd")
    for n in range(4):
        a(f"s_waitcnt lgkmcnt({6 - 2*n})")
        for k in range(4):
            a(f"v_cvt_pk_bf16_f32 v{AF+4*n+k}, v{KVF+8*n+2*k}, v{KVF+8*n+2*k+1}")
    a("s_waitcnt vmcnt(3)")
    st.stamp(a, "p2_in")
    for n in range(4):
        a(f"v_mfma_f32_32x32x16_bf16 {v(D+16*n,16)}, {v(AF+4*n,4)}, {v(PQ+4*n,4)}, 0")
    for n in range(4):
        d = D + 16*n
        a(f"v_add_f32 v{d+8}, s92, v{d+8}")
        a(f"v_rcp_f32 v{d+8}, v{d+8}")
    for n in range(4):
        d = D + 16*n; o = OO + 4*n
        for k in range(0, 8, 2):
            a(f"v_pk_mul_f32 {v(d+k,2)}, {v(d+k,2)}, {v(d+8,2)} op_sel_hi:[1,0]")
        for k in range(4):
            a(f"v_cvt_pk_bf16_f32 v{o+k}, v{d+2*k}, v{d+2*k+1}")
        a(f"ds_write_b128 v{OWN}, {v(o,4)} offset:{1024*n}")
    a(f"s_waitcnt lgkmcnt(0)")
    a("s_barrier")
    st.stamp(a, "p2_of")
    ACCB=112; ACCA=120; FO=192
    def ord_read(q):
        hp, stt = q // 2, q % 2
        return f"ds_read_b128 {v(FO+4*(q%16),4)}, v{OFA} offset:{hp*2048 + stt*256}"
    PFN = 12
    for q in range(PFN): a(ord_read(q))
    for q in range(32):
        hp, stt = q // 2, q % 2
        issued = min(32, q + PFN)
        a(f"s_waitcnt lgkmcnt({issued - q - 1})")
        acc = v(ACCB+4*stt,4)
        c = "0" if hp == 0 else acc
        a(f"v_mfma_f32_16x16x32_bf16 {acc}, {v(FW+4*hp,4)}, {v(FO+4*(q%16),4)}, {c}")
        if q + PFN < 32: a(ord_read(q + PFN))
        if q == 20:
            a(f"s_waitcnt vmcnt(0)")
            for gg in (G0, G1): a(f"v_mul_f32 v{gg}, 0xbfb8aa3b, v{gg}")
            for gg in (G0, G1): a(f"v_exp_f32 v{gg}, v{gg}")
        if q == 22:
            for gg in (G0, G1): a(f"v_add_f32 v{gg}, 1.0, v{gg}")
            for gg in (G0, G1): a(f"v_rcp_f32 v{gg}, v{gg}")
        if q == 24:
            a(f"v_mfma_f32_16x16x32_bf16 {v(ACCA,4)}, {v(AT,4)}, v[24:27], 0")
            a(f"v_mfma_f32_16x16x32_bf16 {v(ACCA+4,4)}, {v(AT,4)}, v[28:31], 0")
    st.stamp(a, "p2_gemm")
    for stt, gg in ((0, G0), (1, G1)):
        for i in range(4):
            a(f"v_sub_f32 v{ACCA+4*stt+i}, v{ACCA+4*stt+i}, v{ACCB+4*stt+i}")
        for i in range(4):
            a(f"v_fma_f32 v{ACCA+4*stt+i}, v{ACCA+4*stt+i}, v{gg}, v{ACCB+4*stt+i}")
    P=56
    a(f"v_cvt_pk_bf16_f32 v{P}, v{ACCA}, v{ACCA+1}")
    a(f"v_cvt_pk_bf16_f32 v{P+1}, v{ACCA+2}, v{ACCA+3}")
    a(f"v_cvt_pk_bf16_f32 v{P+2}, v{ACCA+4}, v{ACCA+5}")
    a(f"v_cvt_pk_bf16_f32 v{P+3}, v{ACCA+6}, v{ACCA+7}")
    a(f"v_permlane16_swap_b32 v{P}, v{P+2}")
    a(f"v_permlane16_swap_b32 v{P+1}, v{P+3}")
    a(f"global_store_dwordx4 v6, {v(P,4)}, {s(S_OUT,2)}")
    st.stamp(a, "p2_end")
```

```python
import sys, math
from asmlib import Asm

NAME = "gated_mix__ssm_conv_s4__linear_attn_block__prompt"
WS_AT = 0
WS_PQ = 2 << 20
WS_WF = 5 << 20
WS_KV = 4 << 20
ZERO_BYTES = 32*1024 + 2048 + 8192 + 64*256 + 16*256
NPRE = int(([x[5:] for x in sys.argv if x.startswith('npre=')] + ['0'])[0])
DEEP = 'shallow' not in sys.argv
ITERSTAMP = 'iter' in sys.argv
FMODE = ([x[2:] for x in sys.argv if x.startswith('f=')] + ['rb'])[0]
PNT = '' if 'nont' in sys.argv else ' nt'
PSLEEP = int(([x[7:] for x in sys.argv if x.startswith('psleep=')] + ['4'])[0])
HL = ' sc1' if 'hlsc1' in sys.argv else ''
XNT = 'xnt' in sys.argv
WNT = 'wnt' in sys.argv
SNT = 'snt' in sys.argv
NOREAD='noread' in sys.argv; NODMA='nodma' in sys.argv; NOX='nox' in sys.argv; NOW='now' in sys.argv; NOMFMA='nomfma' in sys.argv
RMAP = int(([x[5:] for x in sys.argv if x.startswith('rmap=')] + ['1'])[0])
LOG2E = 0x3fb8aa3b
INV2PI = 0x3e22f983

FT_STRIDE = 60 * 528
ROWB = 528
U_BASE = 4 * FT_STRIDE
U_CH = 9280
U1_OFF = 4640
KC1 = 4224
WOC_OFF = 32*1024 + 2048 + 8192 + 64*256
LFLAG = 20480
XCH = 8704

def v(i, n=1):
    return f"v{i}" if n == 1 else f"v[{i}:{i+n-1}]"
def s(i, n=1):
    return f"s{i}" if n == 1 else f"s[{i}:{i+n-1}]"

class Stamps:
    def __init__(self, on): self.on = on; self.n = 0; self.base = 70
    def stamp(self, a, name):
        if not self.on: return
        a(f"s_memtime s[96:97]")
        a(f"s_waitcnt lgkmcnt(0)")
        a(f"s_mov_b32 s{self.base+self.n}, s96")
        self.n += 1

def sum16(a, r, sdst):
    for sh in (1, 2, 4, 8):
        a(f"v_add_u32_dpp v{r}, v{r}, v{r} row_shr:{sh} row_mask:0xf bank_mask:0xf bound_ctrl:0")
    a(f"v_readlane_b32 s{sdst}, v{r}, 15")

def sum8(a, r, sdst):
    for sh in (1, 2, 4):
        a(f"v_add_u32_dpp v{r}, v{r}, v{r} row_shr:{sh} row_mask:0xf bank_mask:0xf bound_ctrl:0")
    a(f"v_readlane_b32 s{sdst}, v{r}, 7")

def cmul(a, dst, x, y, tmp):
    a(f"v_pk_mul_f32 {v(tmp,2)}, {v(x,2)}, {v(y,2)} op_sel:[0,0] op_sel_hi:[0,1]")
    a(f"v_pk_fma_f32 {v(dst,2)}, {v(x,2)}, {v(y,2)}, {v(tmp,2)} op_sel:[1,1,0] op_sel_hi:[1,0,1] neg_lo:[1,0,0]")

def cmul2(a, dsts, xs, ys, tmps):
    for d, x, y, t in zip(dsts, xs, ys, tmps):
        a(f"v_pk_mul_f32 {v(t,2)}, {v(x,2)}, {v(y,2)} op_sel:[0,0] op_sel_hi:[0,1]")
    for d, x, y, t in zip(dsts, xs, ys, tmps):
        a(f"v_pk_fma_f32 {v(d,2)}, {v(x,2)}, {v(y,2)}, {v(t,2)} op_sel:[1,1,0] op_sel_hi:[1,0,1] neg_lo:[1,0,0]")

def cexp(a, dst, ar, ai, scale, t0, t1):
    if scale is None:
        a(f"v_exp_f32 {v(t0)}, {v(ar)}")
        a(f"v_fract_f32 {v(t1)}, {v(ai)}")
    else:
        a(f"v_mul_f32 {v(t0)}, {scale}, {v(ar)}")
        a(f"v_mul_f32 {v(t1)}, {scale}, {v(ai)}")
        a(f"v_exp_f32 {v(t0)}, {v(t0)}")
        a(f"v_fract_f32 {v(t1)}, {v(t1)}")
    a(f"v_cos_f32 {v(dst)}, {v(t1)}")
    a(f"v_sin_f32 {v(dst+1)}, {v(t1)}")
    a(f"v_mul_f32 {v(dst)}, {v(dst)}, {v(t0)}")
    a(f"v_mul_f32 {v(dst+1)}, {v(dst+1)}, {v(t0)}")

S_U=16; S_ARE=18; S_AIM=20; S_BRE=22; S_BIM=24; S_CRE=26; S_CIM=28; S_LDT=30
S_DSK=32; S_WQKV=36; S_WO=38; S_GW=40; S_OUT=42; S_DBG=44; S_WS=46
S_WAVE=48; S_XCD=49; S_IDX=50

def k1_prologue(a, st):
    a("s_cmp_ge_u32 s2, 256")
    a("s_cbranch_scc1 L_k1_end")
    a("s_load_dwordx16 s[16:31], s[0:1], 0")
    a("s_load_dwordx4 s[32:35], s[0:1], 64")
    a("s_load_dwordx4 s[36:39], s[0:1], 80")
    a("s_load_dwordx4 s[40:43], s[0:1], 96")
    a("s_load_dwordx4 s[44:47], s[0:1], 112")
    if st.on:
        a("s_memtime s[68:69]")
        a("s_memrealtime s[100:101]")
    a("v_lshrrev_b32 v1, 6, v0")
    a(f"v_readfirstlane_b32 s{S_WAVE}, v1")
    a("v_and_b32 v1, 63, v0")
    a(f"s_and_b32 s{S_XCD}, s2, 7")
    if RMAP == 0:
        a(f"s_lshr_b32 s{S_IDX}, s2, 4")
        a("s_bitcmp1_b32 s2, 3")
        a("s_cbranch_scc1 L_roleB")
        a("s_lshr_b32 s3, s2, 3"); a("s_lshl_b32 s3, s3, 3"); a("s_xor_b32 s3, s3, s2"); a("s_lshr_b32 s94, s2, 4"); a("s_lshl_b32 s94, s94, 3"); a("s_add_u32 s3, s3, s94")
    else:
        a(f"s_lshr_b32 s{S_IDX}, s2, 3"); a(f"s_and_b32 s{S_IDX}, s{S_IDX}, 15")
        a("s_bitcmp0_b32 s2, 7")
        a("s_cbranch_scc1 L_roleB")
        a("s_and_b32 s3, s2, 127")


def role_a(a, st):
    S_CH=51; S_HALF=52; S_CHN=53; S_CH0=54; S_FT=55; S_T0=56; S_T1=57; S_DT=58; S_DSKV=59; S_UB=90
    SRD_U=64
    GA0=72; GA1=73; GM=74
    def grow(r): return f"buffer_load_dwordx2 v[{4+2*r}:{5+2*r}], v{GA0 if r < 4 else GA1}, {s(SRD_U,4)}, 0 offen offset:{(r%4)*1024}"
    a.label("L_roleA")
    a(f"s_and_b32 s{S_CH}, s{S_WAVE}, 3")
    a(f"s_lshr_b32 s{S_HALF}, s{S_WAVE}, 2")
    a(f"s_lshl_b32 s{S_CH0}, s{S_XCD}, 6")
    a(f"s_lshl_b32 s{S_T0}, s{S_IDX}, 2")
    a(f"s_add_u32 s{S_CH0}, s{S_CH0}, s{S_T0}")
    a(f"s_add_u32 s{S_CHN}, s{S_CH0}, s{S_CH}")
    a(f"s_mul_i32 s{S_FT}, s{S_CH}, {FT_STRIDE}")
    a(f"s_mul_i32 s{S_UB}, s{S_CH}, {U_CH}")
    a(f"s_add_u32 s{S_UB}, s{S_UB}, {U_BASE}")
    a(f"s_lshl_b32 s{S_T0}, s{S_CHN}, 8")
    a(f"v_lshlrev_b32 v26, 2, v1")
    a(f"v_add_u32 v26, s{S_T0}, v26")
    a("s_waitcnt lgkmcnt(0)")
    a("s_cmp_ge_u32 s3, 8")
    a("s_cbranch_scc1 L_a_nozero")
    a(f"s_add_u32 s60, s{S_WS}, {WS_KV}")
    a(f"s_addc_u32 s61, s{S_WS+1}, 0")
    a(f"s_mov_b32 s62, {ZERO_BYTES}")
    a("s_mov_b32 s63, 0x20000")
    a("v_lshlrev_b32 v27, 4, v0")
    a("s_lshl_b32 s66, s3, 13")
    a("v_add_u32 v27, s66, v27")
    for i in range(4): a(f"v_mov_b32 v{28+i}, 0")
    a(f"buffer_store_dwordx4 v[28:31], v27, s[60:63], 0 offen sc1")
    a.label("L_a_nozero")
    a(f"global_load_dword v20, v26, {s(S_ARE,2)}{PNT}")
    a(f"global_load_dword v21, v26, {s(S_AIM,2)}{PNT}")
    a(f"s_lshl_b32 s{S_T0}, s{S_CHN}, 1")
    a(f"s_and_b32 s{S_T0}, s{S_T0}, 0xfffffffc")
    a(f"s_load_dword s{S_DT}, {s(S_LDT,2)}, s{S_T0}")
    a(f"s_load_dword s{S_DSKV}, {s(S_DSK,2)}, s{S_T0}")
    a(f"s_cmp_eq_u32 s{S_HALF}, 0")
    a("s_cbranch_scc0 L_a_gather")
    a(f"global_load_dword v22, v26, {s(S_BRE,2)}{PNT}")
    a(f"global_load_dword v23, v26, {s(S_BIM,2)}{PNT}")
    a(f"global_load_dword v24, v26, {s(S_CRE,2)}{PNT}")
    a(f"global_load_dword v25, v26, {s(S_CIM,2)}{PNT}")
    S_AI=92
    a(f"s_lshl_b32 s{S_AI}, s{S_XCD}, 4"); a(f"s_add_u32 s{S_AI}, s{S_AI}, s{S_IDX}")
    a(f"s_mov_b32 s4, s{S_WO}"); a(f"s_mov_b32 s5, s{S_WO+1}"); a(f"s_mov_b32 s6, {512*1024}"); a(f"s_mov_b32 s7, 0x20000")
    a(f"s_and_b32 s{S_T0}, s{S_AI}, 7"); a(f"s_lshl_b32 s{S_T0}, s{S_T0}, 2"); a(f"s_add_u32 s93, s{S_T0}, s{S_CH}")
    a(f"v_lshrrev_b32 v27, 1, v1")
    a(f"v_lshlrev_b32 v27, 10, v27")
    a(f"v_and_b32 v28, 1, v1")
    a(f"v_lshl_add_u32 v27, v28, 4, v27")
    a(f"s_lshr_b32 s{S_T0}, s{S_AI}, 3"); a(f"s_lshl_b32 s{S_T0}, s{S_T0}, 15")
    a(f"s_lshl_b32 s{S_T1}, s93, 5"); a(f"s_add_u32 s{S_T0}, s{S_T0}, s{S_T1}")
    a(f"s_lshl_b32 s{S_T1}, s{S_CH}, 10"); a(f"s_add_u32 m0, s{S_T1}, {U_BASE}")
    a(f"buffer_load_dwordx4 v27, s[4:7], s{S_T0} offen lds")
    a("s_branch L_a_p1")
    a.label("L_a_gather")
    a(f"s_mov_b32 s{SRD_U}, s{S_U}")
    a(f"s_mov_b32 s{SRD_U+1}, s{S_U+1}")
    a(f"s_mov_b32 s{SRD_U+2}, {2048*1024}")
    a(f"s_mov_b32 s{SRD_U+3}, 0x20000")
    a(f"v_and_b32 v27, 255, v0")
    a(f"v_lshrrev_b32 v28, 3, v27")
    a(f"s_lshl_b32 s{S_T0}, s{S_IDX}, 7")
    a(f"v_add_u32 v28, s{S_T0}, v28")
    a(f"v_lshlrev_b32 v28, 10, v28")
    a(f"v_and_b32 v29, 7, v27")
    a(f"v_lshl_add_u32 v28, v29, 4, v28")
    a(f"s_lshl_b32 s{S_T0}, s{S_XCD}, 7")
    a(f"v_add_u32 v28, s{S_T0}, v28")
    for j in range(4):
        a(f"s_mov_b32 s{S_T1}, {j*32768}")
        a(f"buffer_load_dwordx4 v[224:227], v28, {s(SRD_U,4)}, s{S_T1} offen" + (" nt" if SNT else ""))
    a(f"v_lshlrev_b32 v{GA0}, 13, v27")
    a(f"s_lshl_b32 s{S_T0}, s{S_CH0}, 1")
    a(f"v_add_u32 v{GA0}, s{S_T0}, v{GA0}")
    a(f"v_add_u32 v{GA1}, 4096, v{GA0}")
    a(f"v_subrev_u32 v{GM}, 1024, v{GA0}")
    a(f"v_cmp_eq_u32_e64 s[98:99], 0, v27")
    a(f"v_mov_b32 v31, 0x7ffffff0")
    a(f"v_cndmask_b32_e64 v{GM}, v{GM}, v31, s[98:99]")
    a.label("L_a_p1")
    a(f"s_lshl_b32 s91, s{S_XCD}, 4"); a(f"s_add_u32 s91, s91, s{S_IDX}")
    a("s_waitcnt lgkmcnt(0)")
    a(f"s_bitcmp1_b32 s{S_CHN}, 0")
    a(f"s_cselect_b32 s{S_T0}, 16, 0")
    a(f"s_lshr_b32 s{S_DT}, s{S_DT}, s{S_T0}")
    a(f"s_lshl_b32 s{S_DT}, s{S_DT}, 16")
    a(f"s_lshr_b32 s{S_DSKV}, s{S_DSKV}, s{S_T0}")
    a(f"s_lshl_b32 s{S_DSKV}, s{S_DSKV}, 16")
    DT=68
    a(f"v_mov_b32 v{DT}, {LOG2E}")
    a(f"v_mul_f32 v{DT}, s{S_DT}, v{DT}")
    a(f"v_exp_f32 v{DT}, v{DT}")
    a(f"v_cvt_pk_bf16_f32 v{DT}, v{DT}, v{DT}")
    a(f"v_lshlrev_b32 v{DT}, 16, v{DT}")
    WA=69
    a(f"v_lshlrev_b32 v{WA}, 3, v1")
    a(f"v_add_u32 v{WA}, s{S_FT}, v{WA}")
    a(f"s_cmp_eq_u32 s{S_HALF}, 0")
    a("s_cbranch_scc0 L_a_p1B")
    a("s_waitcnt vmcnt(0)")
    a("s_cmp_ge_u32 s3, 8")
    a("s_cbranch_scc1 L_a_ezA")
    a("s_barrier")
    a(f"s_cmp_lg_u32 s{S_WAVE}, 0")
    a("s_cbranch_scc1 L_a_ezA")
    a("s_lshl_b32 s66, s3, 2")
    a("v_mov_b32 v26, s66")
    a("v_mov_b32 v27, 1")
    a("s_mov_b64 exec, 1")
    a(f"global_store_dword v26, v27, {s(S_DBG,2)} sc1")
    a("s_mov_b64 exec, -1")
    a.label("L_a_ezA")
    st.stamp(a, "a_params")
    AR=[26,27]; AI=[28,29]
    def unpack(dst0, dst1, src):
        a(f"v_lshlrev_b32 v{dst0}, 16, v{src}")
        a(f"v_and_b32 v{dst1}, 0xffff0000, v{src}")
    def arai():
        unpack(AR[0], AR[1], 20); unpack(AI[0], AI[1], 21)
        a(f"s_mov_b32 s{S_T0}, {LOG2E}")
        a(f"s_mov_b32 s{S_T1}, {INV2PI}")
        for m in range(2):
            a(f"v_mul_f32 v{AR[m]}, v{AR[m]}, v{DT}")
            a(f"v_mul_f32 v{AI[m]}, v{AI[m]}, v{DT}")
        for m in range(2):
            a(f"v_mul_f32 v{AR[m]}, s{S_T0}, v{AR[m]}")
            a(f"v_mul_f32 v{AI[m]}, s{S_T1}, v{AI[m]}")
    arai()
    E1=[30,32]; E256=[34,36]; G0=[38,40]; G2=[42,44]; G4=[46,48]; G6=[50,52]; G8=[54,56]; CUR=[58,60]; TMP=[62,64]; O=[66,70]
    for m in range(2):
        cexp(a, E1[m], AR[m], AI[m], None, TMP[m], TMP[m]+1)
    a(f"s_mov_b32 s{S_T0}, 0x43800000")
    for m in range(2):
        cexp(a, E256[m], AR[m], AI[m], f"s{S_T0}", TMP[m], TMP[m]+1)
    unpack(CUR[0], CUR[1], 22)
    a.items = a.items[:-2]
    a(f"v_lshlrev_b32 v{CUR[0]}, 16, v22"); a(f"v_and_b32 v{CUR[1]}, 0xffff0000, v22")
    a(f"v_lshlrev_b32 v{CUR[0]+1}, 16, v23"); a(f"v_and_b32 v{CUR[1]+1}, 0xffff0000, v23")
    a(f"v_lshlrev_b32 v{G2[0]}, 16, v24"); a(f"v_and_b32 v{G2[1]}, 0xffff0000, v24")
    a(f"v_lshlrev_b32 v{G2[0]+1}, 16, v25"); a(f"v_and_b32 v{G2[1]+1}, 0xffff0000, v25")
    for m in range(2):
        a(f"v_mul_f32 v{CUR[m]}, v{CUR[m]}, v{DT}")
        a(f"v_mul_f32 v{CUR[m]+1}, v{CUR[m]+1}, v{DT}")
    cmul2(a, G0, G2, CUR, TMP)
    tog = [0]
    def wrow(src, rho):
        o = O[tog[0]]; tog[0] ^= 1
        for m in range(2):
            a(f"v_cvt_pk_bf16_f32 v{o+m}, v{src[m]}, -v{src[m]+1}")
        for r in (rho if isinstance(rho, (list,tuple)) else [rho]):
            a(f"ds_write_b64 v{WA}, {v(o,2)} offset:{r*ROWB}")
    wrow(G0, 0)
    cmul2(a, CUR, G0, E1, TMP); wrow(CUR, 1)
    cmul2(a, G2, CUR, E1, TMP); wrow(G2, 2)
    cmul2(a, CUR, G2, E1, TMP); wrow(CUR, 3)
    cmul2(a, G4, CUR, E1, TMP); wrow(G4, 4)
    cmul2(a, CUR, G4, E1, TMP); wrow(CUR, 5)
    cmul2(a, G6, CUR, E1, TMP); wrow(G6, 6)
    cmul2(a, CUR, G6, E1, TMP); wrow(CUR, 7)
    cmul2(a, G8, CUR, E1, TMP)
    cmul2(a, G0, G0, E256, TMP); wrow(G0, 8)
    cmul2(a, G2, G2, E256, TMP); wrow(G2, 9)
    cmul2(a, G4, G4, E256, TMP); wrow(G4, [10, 11])
    cmul2(a, G6, G6, E256, TMP); wrow(G6, 12)
    cmul2(a, G8, G8, E256, TMP); wrow(G8, 13)
    for base in (14, 17):
        cmul2(a, G0, G0, E256, TMP); wrow(G0, base)
        cmul2(a, G4, G4, E256, TMP); wrow(G4, base+1)
        cmul2(a, G8, G8, E256, TMP); wrow(G8, base+2)
    for base in (20, 22, 24, 26):
        cmul2(a, G0, G0, E256, TMP); wrow(G0, base)
        cmul2(a, G8, G8, E256, TMP); wrow(G8, base+1)
    a(f"v_and_b32 v38, 15, v1")
    a(f"v_lshrrev_b32 v39, 2, v38")
    a(f"v_bfe_u32 v40, v1, 4, 1")
    a(f"v_lshl_add_u32 v39, v40, 2, v39")
    a(f"v_lshrrev_b32 v40, 5, v1")
    a(f"v_lshl_add_u32 v39, v40, 4, v39")
    a(f"v_lshlrev_b32 v39, 5, v39")
    a(f"v_and_b32 v40, 3, v38")
    a(f"v_lshl_add_u32 v39, v40, 3, v39")
    a(f"s_lshl_b32 s{S_T1}, s{S_CH}, 10"); a(f"s_add_u32 s{S_T1}, s{S_T1}, {U_BASE}")
    a(f"v_add_u32 v39, s{S_T1}, v39")
    a(f"ds_read_b64_tr_b16 v[42:43], v39")
    a(f"ds_read_b64_tr_b16 v[44:45], v39 offset:256")
    a(f"s_lshr_b32 s{S_T0}, s92, 3"); a(f"s_lshl_b32 s{S_T0}, s{S_T0}, 5"); a(f"s_add_u32 s{S_T0}, s{S_T0}, s93")
    a(f"s_lshl_b32 s{S_T0}, s{S_T0}, 10"); a(f"s_add_u32 s{S_T0}, s{S_T0}, {WS_WF}")
    a(f"v_lshlrev_b32 v40, 4, v1")
    a(f"v_add_u32 v40, s{S_T0}, v40")
    a("s_waitcnt lgkmcnt(0)")
    a(f"global_store_dwordx4 v40, v[42:45], {s(S_WS,2)} sc1")
    a("s_branch L_a_p1done")
    a.label("L_a_p1B")
    st.n -= 1
    a("s_waitcnt vmcnt(4)")
    a("s_cmp_ge_u32 s3, 8")
    a("s_cbranch_scc1 L_a_ezB")
    a("s_barrier")
    a(f"s_cmp_lg_u32 s{S_WAVE}, 0")
    a("s_cbranch_scc1 L_a_ezB")
    a("s_lshl_b32 s66, s3, 2")
    a("v_mov_b32 v26, s66")
    a("v_mov_b32 v27, 1")
    a("s_mov_b64 exec, 1")
    a(f"global_store_dword v26, v27, {s(S_DBG,2)} sc1")
    a("s_mov_b64 exec, -1")
    a.label("L_a_ezB")
    st.stamp(a, "a_params")
    a("s_mov_b64 exec, 1")
    a(f"buffer_load_dwordx2 v[2:3], v{GM}, {s(SRD_U,4)}, 0 offen")
    a("s_mov_b64 exec, -1")
    for r in range(4): a(grow(r))
    arai()
    E8=[30,32]; F=[34,36]
    a(f"s_mov_b32 s{S_T0}, 0x41000000")
    for m in range(2):
        cexp(a, E8[m], AR[m], AI[m], f"s{S_T0}", TMP[m], TMP[m]+1)
    for m in range(2):
        a(f"v_mov_b32 v{F[m]}, 1.0"); a(f"v_mov_b32 v{F[m]+1}, 0")
    a(f"v_add_u32 v{WA}, {28*ROWB}, v{WA}")
    def brows(n):
        for k in range(n):
            o = O[k & 1]
            for m in range(2):
                a(f"v_cvt_pk_bf16_f32 v{o+m}, v{F[m]}, v{F[m]+1}")
            cmul2(a, F, F, E8, TMP)
            a(f"ds_write_b64 v{WA}, {v(o,2)} offset:{(k%4)*ROWB}")
            if k % 4 == 3: a(f"v_add_u32 v{WA}, {4*ROWB}, v{WA}")
    a(f"s_mov_b32 s{S_T0}, 3")
    a.label("L_a_p1Bloop1")
    brows(4)
    a(f"s_sub_u32 s{S_T0}, s{S_T0}, 1")
    a(f"s_cmp_lg_u32 s{S_T0}, 0")
    a("s_cbranch_scc1 L_a_p1Bloop1")
    a(f"s_mov_b32 s{S_T0}, 3")
    a.label("L_a_p1Bloop2")
    brows(4)
    a(f"s_sub_u32 s{S_T0}, s{S_T0}, 1")
    a(f"s_cmp_lg_u32 s{S_T0}, 0")
    a("s_cbranch_scc1 L_a_p1Bloop2")
    brows(8)
    a.label("L_a_p1done")
    a("v_and_b32 v24, 7, v1")
    a("v_lshlrev_b32 v24, 2, v24")
    st.stamp(a, "a_p1end")
    a("s_waitcnt lgkmcnt(0)")
    a("s_barrier")
    st.stamp(a, "a_p1done")
    a(f"s_cmp_eq_u32 s{S_HALF}, 0")
    a("s_cbranch_scc0 L_a_utab")
    a(f"global_load_dword v25, v24, {s(S_DBG,2)} sc1")
    RA=26; RB=27; C=28; H=29
    a(f"v_and_b32 v{C}, 31, v1")
    a(f"v_lshrrev_b32 v{H}, 5, v1")
    a(f"v_subrev_u32 v30, 8, v{C}")
    a(f"v_max_i32 v30, 0, v30")
    a(f"v_lshrrev_b32 v30, 2, v30")
    a(f"v_min_u32 v30, 4, v30")
    a(f"v_sub_u32 v30, v{C}, v30")
    a(f"v_mul_u32_u24 v{RA}, {ROWB}, v30")
    a(f"v_mul_u32_u24 v{RB}, {ROWB}, v{C}")
    a(f"v_lshlrev_b32 v31, 4, v{H}")
    a(f"v_add_u32 v31, s{S_FT}, v31")
    a(f"v_add_u32 v{RA}, v{RA}, v31")
    a(f"v_add_u32 v{RB}, v{RB}, v31")
    D=100
    FA=36; FB=68+4
    FB=116
    def rd(sidx):
        a(f"ds_read_b128 {v(FA+4*(sidx%8),4)}, v{RA} offset:{32*sidx}")
        a(f"ds_read_b128 {v(FB+4*(sidx%8),4)}, v{RB} offset:{28*ROWB+32*sidx}")
    for sidx in range(6): rd(sidx)
    for sidx in range(16):
        issued = min(16, sidx + 6)
        a(f"s_waitcnt lgkmcnt({2*(issued - sidx - 1)})")
        c = "0" if sidx == 0 else v(D,16)
        a(f"v_mfma_f32_32x32x16_bf16 {v(D,16)}, {v(FA+4*(sidx%8),4)}, {v(FB+4*(sidx%8),4)}, {c}")
        if sidx + 6 < 16: rd(sidx + 6)
    st.stamp(a, "a_p2")
    B2=30; B3=31; Z=36; FX=32
    a(f"v_sub_u32 v{B2}, 31, v{C}")
    a(f"v_lshlrev_b32 v{B2}, 4, v{B2}")
    a(f"v_add_u32 v{B2}, s{S_FT}, v{B2}")
    a(f"v_sub_u32 v37, 1, v{H}")
    a(f"v_lshl_add_u32 v{B3}, v37, 10, v{B2}")
    a(f"v_lshl_add_u32 v{B2}, v37, 9, v{B2}")
    a(f"v_lshlrev_b32 v38, 2, v1")
    a(f"v_add_u32 v38, s{S_FT}, v38")
    a(f"v_mov_b32 v{Z}, 0")
    a(f"v_and_b32 v39, 1, v{C}")
    a(f"v_cmp_eq_u32_e64 s[98:99], 1, v39")
    a(f"ds_write_b32 v38, v{Z} offset:4096")
    a(f"ds_write_b32 v38, v{Z} offset:{KC1-4+4096}")
    d = lambda i: f"v{D+i}"
    P=40
    a(f"v_cvt_pk_bf16_f32 v{P+2}, {d(3)}, {d(2)}")
    a(f"v_cvt_pk_bf16_f32 v{P+3}, {d(1)}, {d(0)}")
    a(f"v_cvt_pk_bf16_f32 v{P}, {d(6)}, {d(5)}")
    a(f"v_cvt_pk_bf16_f32 v{P+1}, {d(4)}, {d(4)}")
    a(f"v_cvt_pk_bf16_f32 v{P+4}, {d(10)}, {d(10)}")
    a(f"v_cvt_pk_bf16_f32 v{P+5}, {d(9)}, {d(9)}")
    a(f"v_cvt_pk_bf16_f32 v{P+6}, {d(9)}, {d(8)}")
    a(f"v_cvt_pk_bf16_f32 v{P+7}, {d(8)}, {d(8)}")
    a(f"v_permlane32_swap_b32 v{P+2}, v{P}")
    a(f"v_permlane32_swap_b32 v{P+3}, v{P+1}")
    for io in range(2):
        k0 = 12 + 2*io; k8 = k0 + 1; q = P + 8 + 4*io
        a(f"v_cndmask_b32_e64 v{q+1}, {d(k0)}, {d(k8)}, s[98:99]")
        a(f"v_cvt_pk_bf16_f32 v{q}, {d(k8)}, {d(k8)}")
        a(f"v_cvt_pk_bf16_f32 v{q+1}, {d(k8)}, v{q+1}")
        a(f"v_cvt_pk_bf16_f32 v{q+2}, {d(k0)}, {d(k0)}")
        a(f"v_mov_b32 v{q+3}, v{q+2}")
    chunks = [(P, B2, 3072), (P+4, B2, 2048), (P+8, B3, 512), (P+12, B3, 0)]
    for (q, br, off) in chunks:
        a(f"ds_write_b128 v{br}, {v(q,4)} offset:{off}")
    for n, (q, br, off) in enumerate(chunks):
        c1 = 56 + 4*n
        a(f"v_mov_b32 v{c1}, v{q+1}")
        a(f"v_mov_b32 v{c1+1}, v{q+2}")
        a(f"v_mov_b32 v{c1+2}, v{q+3}")
        a(f"v_mov_b32_dpp v{c1+3}, v{q} wave_shr:1 row_mask:0xf bank_mask:0xf")
        a(f"ds_write_b128 v{br}, {v(c1,4)} offset:{off + KC1}")
    a("s_mov_b32 s92, 0x80000000"); a("s_mov_b32 s93, 0x80000000")
    a("s_mov_b64 exec, s[92:93]")
    for (q, br, off) in chunks:
        a(f"ds_write_b32 v{br}, v{q} offset:{off + KC1 - 4}")
    a("s_mov_b64 exec, 1")
    a(f"ds_write_b32 v{B2}, v{Z} offset:{3072 + KC1 + 12}")
    a("s_mov_b64 exec, -1")
    a("s_waitcnt vmcnt(0)")
    a("s_branch L_a_p3done")
    a.label("L_a_utab")
    st.n -= 1
    for r in range(4, 8): a(grow(r))
    a("s_waitcnt vmcnt(0)")
    st.stamp(a, "a_gather")
    a(f"v_and_b32 v27, 255, v0")
    a(f"v_lshlrev_b32 v28, 4, v27")
    a(f"v_add_u32 v28, {U_BASE+512}, v28")
    a(f"v_mov_b32_dpp v2, v18 wave_shr:1 row_mask:0xf bank_mask:0xf")
    a(f"v_mov_b32_dpp v3, v19 wave_shr:1 row_mask:0xf bank_mask:0xf")
    a(f"s_mov_b32 s{S_T0}, 0x05040100")
    a(f"s_mov_b32 s{S_T1}, 0x07060302")
    row = lambda r, dw: f"v{2+2*(r+1)+dw}"
    T=32
    n = 0
    for cc in range(4):
        dw = cc >> 1; sel = S_T0 if (cc & 1) == 0 else S_T1
        for cp in range(2):
            t = T + 4*(n % 4); n += 1
            for i in range(4):
                lo = 2*i - 1 if cp == 0 else 2*i
                a(f"v_perm_b32 v{t+i}, {row(lo+1,dw)}, {row(lo,dw)}, s{sel}")
            a(f"ds_write_b128 v28, {v(t,4)} offset:{cc*U_CH + cp*U1_OFF}")
    a(f"v_and_b32 v29, 255, v0")
    a(f"v_lshrrev_b32 v30, 5, v29")
    a(f"v_mul_u32_u24 v30, {U1_OFF}, v30")
    a(f"v_and_b32 v29, 31, v29")
    a(f"v_lshl_add_u32 v30, v29, 4, v30")
    a(f"v_add_u32 v30, {U_BASE}, v30")
    for i in range(4): a(f"v_mov_b32 v{48+i}, 0")
    a(f"ds_write_b128 v30, v[48:51]")
    a.label("L_a_p3done")
    st.stamp(a, "a_p3end")
    a("s_waitcnt lgkmcnt(0)")
    a("s_barrier")
    st.stamp(a, "a_p3done")
    a(f"s_cmp_eq_u32 s{S_WAVE}, 1")
    a("s_cbranch_scc0 L_a_nosig")
    a("s_mov_b32 s89, 0")
    a.label("L_a_zpoll")
    sum8(a, 25, 66)
    a("s_cmp_eq_u32 s66, 8")
    a("s_cbranch_scc1 L_a_zok")
    a("s_add_u32 s89, s89, 1")
    a("s_cmp_gt_u32 s89, 0x40000")
    a("s_cbranch_scc1 L_a_zok")
    a("s_sleep 4")
    a(f"global_load_dword v25, v24, {s(S_DBG,2)} sc1")
    a("s_waitcnt vmcnt(0)")
    a("s_branch L_a_zpoll")
    a.label("L_a_zok")
    a(f"s_and_b32 s66, s91, 15"); a("s_lshl_b32 s66, s66, 8"); a(f"s_add_u32 s66, s66, {WS_KV + WOC_OFF}")
    a("v_mov_b32 v24, s66"); a("v_mov_b32 v25, 1")
    a("s_mov_b64 exec, 1")
    a(f"global_atomic_add v24, v25, {s(S_WS,2)} sc1")
    a("s_mov_b64 exec, -1")
    a.label("L_a_nosig")
    UB=20; KB=21; COL=22; G=23; CP=24; AL=25
    a(f"v_and_b32 v{COL}, 15, v1")
    a(f"v_lshrrev_b32 v{G}, 4, v1")
    a(f"v_and_b32 v{CP}, 1, v{COL}")
    a(f"v_lshrrev_b32 v{AL}, 1, v{COL}")
    a(f"v_mul_u32_u24 v{UB}, {U1_OFF}, v{CP}")
    a(f"v_lshl_add_u32 v{UB}, v{AL}, 6, v{UB}")
    a(f"v_lshl_add_u32 v{UB}, v{G}, 4, v{UB}")
    a(f"s_lshl_b32 s{S_T0}, s{S_HALF}, 8")
    a(f"s_sub_u32 s{S_T1}, s{S_UB}, s{S_T0}")
    a(f"s_add_u32 s{S_T1}, s{S_T1}, 512")
    a(f"v_add_u32 v{UB}, s{S_T1}, v{UB}")
    a(f"v_mov_b32 v26, v{UB}")
    a(f"v_sub_u32 v{KB}, 1023, v{COL}")
    a(f"v_lshl_add_u32 v{KB}, v{G}, 2, v{KB}")
    a(f"v_lshlrev_b32 v{KB}, 2, v{KB}")
    a(f"v_sub_u32 v27, 1, v{CP}")
    a(f"v_mul_u32_u24 v27, {KC1-4}, v27")
    a(f"v_add_u32 v{KB}, v{KB}, v27")
    a(f"s_sub_u32 s{S_T1}, s{S_FT}, s{S_T0}")
    a(f"s_sub_u32 s{S_T1}, s{S_T1}, 3584")
    a(f"v_add_u32 v{KB}, s{S_T1}, v{KB}")
    ACC=32
    SETB=[192, 64]; SETA=[224, 96]
    FW=128
    def rd_list(setidx):
        L = []
        for t in range(8):
            L.append(f"ds_read_b128 {v(SETB[setidx]+4*t,4)}, v{UB} offset:{512*t}")
        for q in range(8):
            L.append(f"ds_read_b64 {v(SETA[setidx]+4*q,2)}, v{KB} offset:{512*(7-q)}")
            L.append(f"ds_read_b64 {v(SETA[setidx]+4*q+2,2)}, v{KB} offset:{512*(7-q)+8}")
        order = [8, 9] + list(range(8)) + list(range(10, 24))
        return [L[i] for i in order]
    for x in rd_list(0): a(x)
    a(f"v_and_b32 v11, 15, v1")
    a(f"v_lshlrev_b32 v11, 8, v11")
    a(f"v_add_u32 v11, {WS_KV + WOC_OFF}, v11")
    XA=27; UE=28; UR=29; SU=6; SL=7; SH=8
    a(f"v_lshlrev_b32 v{XA}, 4, v1")
    a(f"v_add_u32 v{XA}, s{S_FT}, v{XA}")
    a(f"v_lshlrev_b32 v{UE}, 6, v{AL}")
    a(f"v_lshl_add_u32 v{UE}, v{G}, 4, v{UE}")
    a(f"s_lshl_b32 s{S_T0}, s{S_HALF}, 11")
    a(f"s_add_u32 s{S_T1}, s{S_UB}, s{S_T0}")
    a(f"s_add_u32 s{S_T1}, s{S_T1}, {U1_OFF+512}")
    a(f"v_add_u32 v{UR}, s{S_T1}, v{UE}")
    a(f"v_lshl_add_u32 v{UE}, v{CP}, 9, v{UE}")
    a(f"s_lshl_b32 s{S_T1}, s{S_CHN}, 12")
    a(f"s_add_u32 s{S_T1}, s{S_T1}, s{S_T0}")
    a(f"v_add_u32 v{UE}, s{S_T1}, v{UE}")
    a(f"v_cmp_eq_u32_e64 s[98:99], 1, v{CP}")
    a(f"v_mov_b32 v{SU}, 0x01000c0c"); a(f"v_mov_b32 v9, 0x03020c0c")
    a(f"v_cndmask_b32_e64 v{SU}, v{SU}, v9, s[98:99]")
    a(f"v_mov_b32 v{SL}, 0x05040100"); a(f"v_mov_b32 v9, 0x01000504")
    a(f"v_cndmask_b32_e64 v{SL}, v{SL}, v9, s[98:99]")
    a(f"v_mov_b32 v{SH}, 0x07060302"); a(f"v_mov_b32 v9, 0x03020706")
    a(f"v_cndmask_b32_e64 v{SH}, v{SH}, v9, s[98:99]")
    UU=192
    for it in range(4):
        cur = it & 1
        nxt = []
        if it < 3:
            a(f"v_subrev_u32 v{UB}, 64, v{UB}")
            a(f"v_subrev_u32 v{KB}, 64, v{KB}")
            nxt = rd_list(cur ^ 1)
        else:
            nxt = [f"ds_read_b128 {v(UU+4*t,4)}, v{UR} offset:{512*t}" for t in range(4)]
        a("s_waitcnt lgkmcnt(0)")
        extra = []
        if it == 2:
            a(f"s_cmp_eq_u32 s{S_WAVE}, 0")
            a("s_cbranch_scc0 L_a_nowc")
            a(f"global_load_dword v3, v11, {s(S_WS,2)} sc1")
            a.label("L_a_nowc")
        late = []
        if it == 3:
            late = ["s_waitcnt lgkmcnt(0)"]
            late += [f"v_perm_b32 v{UU+i}, v{UU+i}, v{UU+i}, v{SU}" for i in range(16)]
            late += [f"v_mul_f32 v{UU+i}, s{S_DSKV}, v{UU+i}" for i in range(16)]
        k = 0; ke = 0; kl = 0
        mf = [(q, t) for q in range(8) for t in range(8 - q)]
        for idx, (q, t) in enumerate(mf):
            acc = v(ACC + 4*(t+q), 4)
            c = "0" if (it == 0 and q == 0) else acc
            a(f"v_mfma_f32_16x16x32_bf16 {acc}, {v(SETA[cur]+4*q,4)}, {v(SETB[cur]+4*t,4)}, {c}")
            if nxt and idx >= 2 and k < len(nxt):
                a(nxt[k]); k += 1
            if extra and idx % 2 == 1 and ke < len(extra):
                for x in extra[ke]: a(x)
                ke += 1
            if late and idx >= 14 and kl < len(late):
                for x in late[kl:kl+2]: a(x)
                kl += 2
        while k < len(nxt):
            a(nxt[k]); k += 1
        for e_ in extra[ke:]:
            for x in e_: a(x)
        for x in late[kl:]: a(x)
    st.stamp(a, "a_convdone")
    R=64; RX=96
    a(f"s_cmp_eq_u32 s{S_HALF}, 0")
    a("s_cbranch_scc0 L_a_x1")
    for t in range(4):
        a(f"ds_write_b128 v{XA}, {v(ACC+16+4*t,4)} offset:{XCH + 1024*t}")
    for i in range(16):
        a(f"v_add_f32 v{R+i}, v{ACC+i}, v{UU+i}")
    a(f"s_cmp_eq_u32 s{S_WAVE}, 0")
    a("s_cbranch_scc0 L_a_wc")
    a("s_waitcnt vmcnt(0)")
    a("s_mov_b32 s89, 0")
    a.label("L_a_wfpoll")
    sum16(a, 3, 66)
    a("s_cmp_eq_u32 s66, 128")
    a("s_cbranch_scc1 L_a_wc")
    a("s_add_u32 s89, s89, 1")
    a("s_cmp_gt_u32 s89, 0x40000")
    a("s_cbranch_scc1 L_a_wc")
    a("s_sleep 8")
    a(f"global_load_dword v3, v11, {s(S_WS,2)} sc1")
    a("s_waitcnt vmcnt(0)")
    a("s_branch L_a_wfpoll")
    a.label("L_a_wc")
    a("s_waitcnt lgkmcnt(0)")
    a("s_barrier")
    for t in range(4):
        a(f"ds_read_b128 {v(RX+4*t,4)}, v{XA} offset:{XCH + 4096 + 1024*t}")
    a("s_branch L_a_x2")
    a.label("L_a_x1")
    for t in range(4):
        a(f"ds_write_b128 v{XA}, {v(ACC+4*t,4)} offset:{XCH + 4096 + 1024*t}")
    for i in range(16):
        a(f"v_add_f32 v{R+i}, v{ACC+16+i}, v{UU+i}")
    a("s_waitcnt lgkmcnt(0)")
    a("s_barrier")
    for t in range(4):
        a(f"ds_read_b128 {v(RX+4*t,4)}, v{XA} offset:{XCH + 1024*t}")
    a.label("L_a_x2")
    st.stamp(a, "a_xbar")
    for tp in range(2):
        t0 = 2*tp; t1 = t0 + 1
        a(f"s_waitcnt lgkmcnt({2 - 2*tp})")
        for i in range(8):
            a(f"v_add_f32 v{R+4*t0+i}, v{R+4*t0+i}, v{RX+4*t0+i}")
        b_ = 208 + 16*tp
        P0, Q0, P1, Q1, SP, SQ, KP, KQ, RP, RQ = [b_ + x for x in range(10)]
        a(f"v_cvt_pk_bf16_f32 v{P0}, v{R+4*t0}, v{R+4*t0+1}")
        a(f"v_cvt_pk_bf16_f32 v{Q0}, v{R+4*t0+2}, v{R+4*t0+3}")
        a(f"v_cvt_pk_bf16_f32 v{P1}, v{R+4*t1}, v{R+4*t1+1}")
        a(f"v_cvt_pk_bf16_f32 v{Q1}, v{R+4*t1+2}, v{R+4*t1+3}")
        a(f"v_cndmask_b32_e64 v{SP}, v{P1}, v{P0}, s[98:99]")
        a(f"v_cndmask_b32_e64 v{SQ}, v{Q1}, v{Q0}, s[98:99]")
        a(f"v_cndmask_b32_e64 v{KP}, v{P0}, v{P1}, s[98:99]")
        a(f"v_cndmask_b32_e64 v{KQ}, v{Q0}, v{Q1}, s[98:99]")
        a(f"v_mov_b32_dpp v{RP}, v{SP} quad_perm:[1,0,3,2] row_mask:0xf bank_mask:0xf")
        a(f"v_mov_b32_dpp v{RQ}, v{SQ} quad_perm:[1,0,3,2] row_mask:0xf bank_mask:0xf")
        o = 240 + 4*tp
        a(f"v_perm_b32 v{o}, v{RP}, v{KP}, v{SL}")
        a(f"v_perm_b32 v{o+1}, v{RP}, v{KP}, v{SH}")
        a(f"v_perm_b32 v{o+2}, v{RQ}, v{KQ}, v{SL}")
        a(f"v_perm_b32 v{o+3}, v{RQ}, v{KQ}, v{SH}")
        a(f"global_store_dwordx4 v{UE}, {v(o,4)}, {s(S_WS,2)} offset:{1024*tp} sc1")
    st.stamp(a, "a_end")
    a("s_branch L_k1_fin")

def diag_store(a, st, label_end):
    if not st.on: return
    a(f"s_lshl_b32 s94, s2, 3")
    a(f"s_add_u32 s94, s94, s{S_WAVE}")
    a(f"s_lshl_b32 s94, s94, 6")
    a(f"s_add_u32 s94, s94, {8<<20}")
    a("v_mov_b32 v250, s94")
    for i in range(14):
        a(f"v_mov_b32 v251, s{68+i}" if i else "v_mov_b32 v251, s68")
        a("s_mov_b64 exec, 1")
        a(f"global_store_dword v250, v251, {s(S_WS,2)} offset:{4*i}")
        a("s_mov_b64 exec, -1")

def descriptor(name, vgpr, sgpr=102):
    return f""".p2align 6
.amdhsa_kernel {name}
  .amdhsa_next_free_vgpr {vgpr}
  .amdhsa_next_free_sgpr {sgpr}
  .amdhsa_accum_offset {vgpr}
  .amdhsa_group_segment_fixed_size 0
  .amdhsa_kernarg_size 128
  .amdhsa_user_sgpr_count 2
  .amdhsa_user_sgpr_kernarg_segment_ptr 1
  .amdhsa_system_sgpr_workgroup_id_x 1
.end_amdhsa_kernel
"""

HEADER_LAYOUT = open("cdna_kernels/" + NAME + ".s.ref").read().split("; Override launch geometry")[0]

def build(diag=False):
    import gen_b
    k1 = f"{NAME}_kernel"
    st = Stamps(diag)
    a = Asm()
    k1_prologue(a, st)
    role_a(a, st)
    nA = st.n; st.n = 0
    a.label("L_roleB")
    gen_b.role_b(a, st)
    a.label("L_k1_fin")
    a("s_waitcnt vmcnt(0)")
    a("s_barrier")
    if diag:
        st.n = 0; st.base = 4
    gen_b.phase2_fused(a, st)
    if diag:
        a("s_memrealtime s[84:85]"); a("s_waitcnt lgkmcnt(0)")
        a(f"s_lshl_b32 s94, s2, 3")
        a(f"s_add_u32 s94, s94, s{S_WAVE}")
        a(f"s_lshl_b32 s94, s94, 7")
        a(f"s_add_u32 s94, s94, {8<<20}")
        a("v_mov_b32 v250, s94")
        regs = [68, 69] + list(range(70, 82)) + list(range(4, 14)) + [100, 82, 83, 84] + [85, 86]
        a("s_mov_b64 exec, 1")
        for i, r in enumerate(regs):
            a(f"v_mov_b32 v251, s{r}")
            a(f"global_store_dword v250, v251, {s(S_WS,2)} offset:{4*i}")
            a("s_nop 0")
        a("s_mov_b64 exec, -1")
    a.label("L_k1_end")
    a("s_endpgm")
    t1 = a.finalize()
    out = HEADER_LAYOUT
    out += f"; @launch grid=(256,1,1) block=(512,1,1) lds=163840\n"
    out += '.amdgcn_target "amdgcn-amd-amdhsa--gfx950"\n.text\n'
    out += f".globl {k1}\n.p2align 8\n.type {k1},@function\n{k1}:\n" + t1
    out += '.section .rodata,"a"\n' + descriptor(k1, 256)
    return out

if __name__ == "__main__":
    diag = "diag" in sys.argv
    outp = [x for x in sys.argv[1:] if x.endswith(".s")]
    txt = build(diag)
    open(outp[0] if outp else "k.s", "w").write(txt)
```
